```python
import torch

def _softmax(x, axis=-1):
    return torch.softmax(x, dim=axis)
def _gelu(x):
    return torch.nn.functional.gelu(x, approximate="tanh")
def _silu(x):
    return torch.nn.functional.silu(x)
def _sigmoid(x):
    return torch.sigmoid(x)
def _layernorm(x, axis=-1, eps=1e-5):
    m = x.mean(dim=axis, keepdim=True)
    v = x.var(dim=axis, keepdim=True, unbiased=False)
    return (x - m) / torch.sqrt(v + eps)
def _scatter_add(tgt, idx, src, axis=0):
    return tgt.clone().index_add_(axis, idx, src)
def _segment_sum(src, seg, n):
    out = torch.zeros((n,) + src.shape[1:], dtype=src.dtype)
    return out.index_add_(0, seg, src)
def _pad(x, pw):
    flat = tuple(v for pair in reversed(pw) for v in pair)
    return torch.nn.functional.pad(x, flat)

kernel_name = 'standalone__kernel_systems_refs_featgraph__graph'

def setup_inputs():

    _w = (lambda a: (lambda t: t.to(torch.bfloat16) if t.is_floating_point() else t)(torch.as_tensor(a)))
    N, deg, D = 25000, 16, 128
    E = N * deg
    scale = D ** -0.5
    src = (lambda lo, hi, *s: torch.randint(lo, hi, s))(0, N, E).to(torch.int64)
    dst = (lambda lo, hi, *s: torch.randint(lo, hi, s))(0, N, E).to(torch.int64)
    return {
        "x": _w((lambda *s: torch.randn(*s, dtype=torch.bfloat16) * 0.8)(N, D)),
        "src": _w(src),
        "dst": _w(dst),
        "w_q": _w((lambda *s: torch.randn(*s, dtype=torch.bfloat16) * 0.8)(D, D) * scale),
        "w_v": _w((lambda *s: torch.randn(*s, dtype=torch.bfloat16) * 0.05)(D, D) * scale),
    }

def reference(x, src, dst, w_q, w_v):
    N, D = x.shape
    xs = x[src]
    xd = x[dst]
    q = xd @ w_q
    logits = torch.einsum('ed,ed->e', xs, q) * (float(D) ** -0.5)
    alpha = _sigmoid(logits)
    msg = alpha[:, None] * (xs @ w_v)
    return _segment_sum(msg, dst, N)
```

```python
import re

class Asm:
    def __init__(self):
        self.lines = []
    def __call__(self, s):
        for l in s.split('\n'):
            l = l.strip()
            if l:
                self.lines.append(l)
    def label(self, n):
        self.lines.append(n + ':')
    def text(self):
        out = []
        for l in self.lines:
            if l.endswith(':') or l.startswith('.') :
                out.append(l)
            else:
                out.append('    ' + l)
        return '\n'.join(out) + '\n'

def regs_of(tok):
    tok = tok.strip()
    tok = tok.lstrip('-')
    m = re.match(r'^(?:abs\()?([vsa])(\d+)\)?$', tok)
    if m:
        return [(m.group(1), int(m.group(2)))]
    m = re.match(r'^([vsa])\[(\d+):(\d+)\]$', tok)
    if m:
        return [(m.group(1), i) for i in range(int(m.group(2)), int(m.group(3)) + 1)]
    if tok == 'vcc':
        return [('s', 'vcc')]
    if tok == 'exec':
        return [('s', 'exec')]
    if tok == 'm0':
        return [('s', 'm0')]
    return []

TRANS = ('v_exp_f32', 'v_log_f32', 'v_rcp_f32', 'v_rsq_f32', 'v_sqrt_f32')

def parse(line):
    line = line.split(';')[0].strip()
    if not line or line.endswith(':') or line.startswith('.'):
        return None
    parts = line.split(None, 1)
    op = parts[0]
    ops = []
    if len(parts) > 1:
        cur = ''; depth = 0
        for ch in parts[1]:
            if ch == '[': depth += 1
            if ch == ']': depth -= 1
            if ch == ',' and depth == 0:
                ops.append(cur.strip()); cur = ''
            else:
                cur += ch
        ops.append(cur.strip())
        last = ops[-1].split()
        ops[-1] = last[0] if last else ''
        mods = ' '.join(last[1:])
    else:
        mods = ''
    d = dict(op=op, ops=ops, mods=mods, line=line)
    isv = op.startswith('v_')
    d['valu'] = isv and not op.startswith('v_mfma')
    d['mfma'] = op.startswith('v_mfma')
    d['dpp'] = '_dpp' in op
    d['dot'] = op.startswith('v_dot')
    d['trans'] = op in TRANS
    d['vmem'] = op.startswith('buffer_') or op.startswith('global_')
    d['ds'] = op.startswith('ds_')
    d['salu'] = op.startswith('s_')
    dst = []; src = []
    if isv:
        dst = regs_of(ops[0])
        rest = ops[1:]
        if op.startswith('v_cmpx'):
            dst = dst + [('s', 'exec')]
        if op.startswith(('v_add_co', 'v_sub_co', 'v_addc_co')):
            dst += regs_of(ops[1]); rest = ops[2:]
        for o in rest:
            src += regs_of(o)
        if d['dpp'] or op.startswith(('v_fmac', 'v_dot2c', 'v_writelane')) or 'UNUSED_PRESERVE' in mods:
            src += regs_of(ops[0])
        if op.startswith('v_permlane'):
            dst += regs_of(ops[1]); src += regs_of(ops[0])
    elif d['vmem']:
        if 'load' in op and ' lds' not in (' ' + mods) :
            dst = regs_of(ops[0])
            for o in ops[1:]: src += regs_of(o)
        else:
            for o in ops: src += regs_of(o)
        if ' lds' in (' ' + mods): src += [('s', 'm0')]
    elif d['ds']:
        if op.startswith(('ds_read', 'ds_add_rtn', 'ds_bpermute', 'ds_swizzle')):
            dst = regs_of(ops[0])
            for o in ops[1:]: src += regs_of(o)
        else:
            for o in ops: src += regs_of(o)
    elif d['salu']:
        if op.startswith(('s_cmp', 's_cbranch', 's_branch', 's_waitcnt', 's_barrier', 's_nop', 's_endpgm', 's_setprio', 's_sleep')):
            for o in ops: src += regs_of(o)
        else:
            dst = regs_of(ops[0])
            for o in ops[1:]: src += regs_of(o)
            if 'saveexec' in op: dst += [('s', 'exec')]
    d['dst'] = dst; d['src'] = src
    return d

def mfma_passes(op):
    return 8 if '32x32' in op else 4

def check(lines, name=''):
    ins = [p for p in (parse(l) for l in lines) if p]
    errs = []
    for i, c in enumerate(ins):
        dist = 0
        j = i - 1
        while j >= 0 and dist < 24:
            p = ins[j]
            need = 0; why = ''
            pd = set(p['dst']); cs = set(c['src']); cd = set(c['dst'])
            vd = {r for r in pd if r[0] in 'va'}
            sd = {r for r in pd if r[0] == 's'}
            def upd(n, w):
                nonlocal need, why
                if n > need: need, why = n, w
            if p['valu']:
                if c['dpp'] and vd & cs: upd(2, 'valu->dpp')
                if c['mfma'] and vd & cs: upd(2, 'valu->mfma')
                if c['op'].startswith(('v_readlane', 'v_readfirstlane')) and vd & cs: upd(1, 'valu->readlane')
                if c['op'].startswith('v_permlane') and vd & cs: upd(2, 'valu->permlane')
                if p['trans'] and c['valu'] and not c['trans'] and vd & cs: upd(1, 'trans->valu')
                if p['trans'] and c['trans'] and vd & cs: upd(1, 'trans->trans(safe)')
                if p['dot'] and (vd & (cs | cd)):
                    same = c['op'] == p['op']
                    csrcC = set(regs_of(c['ops'][3])) if (same and len(c['ops']) > 3) else set()
                    ab = (set(regs_of(c['ops'][1])) | set(regs_of(c['ops'][2]))) if same else set()
                    if not same or (vd & ab): upd(3, 'dot->other')
                if 'sdwa' in p['op'] and c['valu'] and vd & (cs | cd): upd(1, 'sdwa->valu')
                sdx = sd - {('s', 'exec')}
                if sdx & cs:
                    if c['vmem']: upd(5, 'valu sgpr->vmem')
                    elif c['op'].startswith(('v_readlane', 'v_writelane')): upd(4, 'valu sgpr->lanesel')
                    elif c['valu']: upd(2, 'valu sgpr->valu')
                if ('s', 'exec') in sd:
                    if c['dpp']: upd(5, 'valu exec->dpp')
                    if c['mfma']: upd(4, 'valu exec->mfma')
                    if c['op'].startswith(('v_readlane', 'v_readfirstlane', 'v_writelane', 'v_permlane')): upd(4, 'cmpx->readlane')
            if p['salu'] and ('s', 'm0') in sd and ('s', 'm0') in cs and c['vmem']: upd(1, 'm0->ldsdma')
            if p['mfma']:
                n = mfma_passes(p['op'])
                big = {4: 8, 8: 12}[n]
                if c['mfma']:
                    cC = set(regs_of(c['ops'][3])); cAB = set(regs_of(c['ops'][1])) | set(regs_of(c['ops'][2]))
                    if vd & cAB: upd(big, 'mfma->mfma AB')
                    if vd & cC and cC != vd: upd({4: 6, 8: 10}[n], 'mfma->mfma C overlap')
                elif (c['valu'] or c['vmem'] or c['ds']) and vd & (cs | cd): upd(big, 'mfma->valu/mem')
                pC = set(regs_of(p['ops'][3]))
                if c['valu'] and pC & cd: upd({4: 3, 8: 7}[n], 'mfma C WAR')
            if p['vmem'] and 'store' in p['op'] and ('x4' in p['op'] or 'x3' in p['op']):
                data = set(regs_of(p['ops'][0]))
                if data & cd: upd(2, 'store data WAR')
            if need > dist:
                errs.append(f"{name}: need {need} have {dist} [{why}]: '{p['line']}' -> '{c['line']}'")
            if p['op'] == 's_nop':
                dist += int(p['ops'][0], 0) + 1
            else:
                dist += 1
            j -= 1
    return errs
```

```python
import sys
sys.path.insert(0, 'gen')
from asmlib import Asm, check

N = 25000; E = 400000
XB = N * 256
P = 125
CH = 3200
SLOTB = P * 128
WS_SLOTS = 0
WS_WF = 256 * SLOTB
WS_SCNT = WS_WF + 65536
WS_SPILL = WS_SCNT + 1024
NAME = 'standalone__kernel_systems_refs_featgraph__graph'

def srd(a, d, lo, hi, nrec, add=None):
    if add is None:
        a(f's_mov_b32 s{d}, s{lo}')
        a(f's_and_b32 s{d+1}, s{hi}, 0xffff')
    else:
        a(f's_add_u32 s{d}, s{lo}, {add}')
        a(f's_addc_u32 s{d+1}, s{hi}, 0')
        a(f's_and_b32 s{d+1}, s{d+1}, 0xffff')
    a(f's_mov_b32 s{d+2}, {nrec}')
    a(f's_mov_b32 s{d+3}, 0x20000')

def k1(opt):
    a = Asm()
    st = opt.get('k1store', '')
    a.label('part_kernel')
    a('s_cmp_ge_u32 s2, %d' % (P + 4))
    a('s_cbranch_scc1 K1_end')
    a('s_load_dwordx4 s[4:7], s[0:1], 8')
    a('s_load_dwordx4 s[8:11], s[0:1], 24')
    a('s_load_dwordx2 s[12:13], s[0:1], 56')
    a('s_cmp_ge_u32 s2, %d' % P)
    a('s_cbranch_scc1 K1_prep')
    a('v_lshlrev_b32 v1, 4, v0')
    a('v_mov_b32 v4, 0\nv_mov_b32 v5, 0\nv_mov_b32 v6, 0\nv_mov_b32 v7, 0')
    a('ds_write_b128 v1, v[4:7]')
    a('ds_write_b128 v1, v[4:7] offset:16384')
    a('ds_write_b128 v1, v[4:7] offset:32768')
    a('s_mul_i32 s3, s2, %d' % (CH * 4))
    a('s_waitcnt lgkmcnt(0)')
    srd(a, 16, 4, 5, E * 4)
    srd(a, 20, 6, 7, E * 4)
    a('v_cmp_gt_u32 vcc, %d, v0' % (CH // 4))
    a('s_and_saveexec_b64 s[30:31], vcc')
    a('s_cbranch_execz K1_noload')
    a('buffer_load_dwordx4 v[8:11], v1, s[16:19], s3 offen')
    a('buffer_load_dwordx4 v[12:15], v1, s[20:23], s3 offen')
    a.label('K1_noload')
    a('s_mov_b64 exec, s[30:31]')
    srd(a, 24, 12, 13, 256 * SLOTB)
    srd(a, 32, 12, 13, 1024 + P * CH * 4, add=WS_SCNT)
    a('s_barrier')
    a('s_and_b64 exec, s[30:31], vcc')
    a('s_cbranch_execz K1_placed')
    a('s_waitcnt vmcnt(0)')
    a('v_mov_b32 v3, 1')
    a('s_mov_b32 s28, 0x80')
    for j in range(4):
        s, d = 8 + j, 12 + j
        a(f'v_and_b32 v{20+j}, 0xff, v{d}')
        a(f'v_lshrrev_b32 v24, 11, v{d}')
        a(f'v_lshrrev_b32 v25, 4, v{d}')
        a(f'v_and_b32 v25, 0x70, v25')
        a(f'v_lshl_or_b32 v{16+j}, v{s}, 8, v24')
        a(f'v_or3_b32 v{16+j}, v{16+j}, v25, s28')
        a(f'v_lshl_or_b32 v{16+j}, v{20+j}, 24, v{16+j}')
        a(f'v_lshlrev_b32 v{20+j}, 2, v{20+j}')
        a(f'ds_add_rtn_u32 v{8+j}, v{20+j}, v3 offset:32768')
    a('s_mov_b64 s[36:37], exec')
    a('s_mov_b64 s[38:39], 0')
    for j in range(4):
        a(f's_waitcnt lgkmcnt({3-j})')
        a(f'v_lshlrev_b32 v24, 5, v{20+j}')
        a(f'v_lshl_add_u32 v{12+j}, v{8+j}, 2, v24')
        a(f'v_cmp_lt_u32 s[{40+2*j}:{41+2*j}], 31, v{8+j}')
        a(f'v_cmpx_gt_u32 vcc, 32, v{8+j}')
        a(f'ds_write_b32 v{12+j}, v{16+j}')
        a('s_mov_b64 exec, s[36:37]')
        a(f's_or_b64 s[38:39], s[38:39], s[{40+2*j}:{41+2*j}]')
    a('s_cbranch_scc0 K1_placed')
    a('v_mov_b32 v26, %d' % (32768 + 1024))
    a('s_add_u32 s29, s3, 1024')
    for j in range(4):
        a(f's_mov_b64 exec, s[{40+2*j}:{41+2*j}]')
        a(f's_cbranch_execz K1_sp{j}')
        a('ds_add_rtn_u32 v24, v26, v3')
        a('s_waitcnt lgkmcnt(0)')
        a('v_lshlrev_b32 v24, 2, v24')
        a(f'buffer_store_dword v{16+j}, v24, s[32:35], s29 offen')
        a.label(f'K1_sp{j}')
    a.label('K1_placed')
    a('s_mov_b64 exec, -1')
    a('s_waitcnt lgkmcnt(0)')
    a('s_barrier')
    a('ds_read_b128 v[4:7], v1')
    a('ds_read_b128 v[8:11], v1 offset:16384')
    a('v_mov_b32 v26, %d' % (32768 + 1024))
    a('ds_read_b32 v12, v26')
    a('v_lshrrev_b32 v2, 3, v0')
    a('v_mul_u32_u24 v2, %d, v2' % SLOTB)
    a('v_and_b32 v3, 7, v0')
    a('v_lshl_add_u32 v2, v3, 4, v2')
    a('s_lshl_b32 s28, s2, 7')
    a('s_add_u32 s29, s28, %d' % (128 * SLOTB))
    a('s_waitcnt lgkmcnt(2)')
    a(f'buffer_store_dwordx4 v[4:7], v2, s[24:27], s28 offen {st}')
    a('s_waitcnt lgkmcnt(1)')
    a(f'buffer_store_dwordx4 v[8:11], v2, s[24:27], s29 offen {st}')
    a('v_cmp_eq_u32 vcc, 0, v0')
    a('s_and_saveexec_b64 s[30:31], vcc')
    a('s_cbranch_execz K1_end')
    a('s_lshl_b32 s28, s2, 2')
    a('v_mov_b32 v13, 0')
    a('s_waitcnt lgkmcnt(0)')
    a(f'buffer_store_dword v12, v13, s[32:35], s28 offen {st}')
    a('s_endpgm')
    a.label('K1_prep')
    a('s_sub_u32 s3, s2, %d' % P)
    a('s_waitcnt lgkmcnt(0)')
    a('s_cmp_ge_u32 s3, 2')
    a('s_cselect_b32 s8, s10, s8')
    a('s_cselect_b32 s9, s11, s9')
    srd(a, 16, 8, 9, 32768)
    srd(a, 20, 12, 13, 65536, add=WS_WF)
    a('s_and_b32 s28, s3, 1')
    a('s_lshl_b32 s28, s28, 10')
    a('v_add_u32 v1, s28, v0')
    a('v_lshrrev_b32 v2, 8, v1')
    a('v_bfe_u32 v3, v1, 6, 2')
    a('v_bfe_u32 v4, v1, 4, 2')
    a('v_and_b32 v5, 15, v1')
    a('v_lshlrev_b32 v6, 13, v4')
    a('v_lshl_add_u32 v6, v3, 11, v6')
    a('v_lshl_add_u32 v6, v5, 4, v6')
    a('v_lshl_add_u32 v6, v2, 1, v6')
    for j in range(8):
        a(f'buffer_load_ushort v{8+j}, v6, s[16:19], 0 offen offset:{256*j}')
    a('s_lshl_b32 s28, s3, 14')
    a('v_lshlrev_b32 v7, 4, v0')
    a('s_waitcnt vmcnt(0)')
    for j in range(4):
        a(f'v_lshl_or_b32 v{16+j}, v{9+2*j}, 16, v{8+2*j}')
    a(f'buffer_store_dwordx4 v[16:19], v7, s[20:23], s28 offen {st}')
    a.label('K1_end')
    a('s_endpgm')
    return a

L_WQ = 0; L_Q = 32768; L_WV = 65536; L_LIST = 98304; L_CNT = 114688
LDS2 = L_CNT + 64
CAP = 384
vT, vLO, vKEY, vZ, vLA, vWA, vWVA = 0, 1, 2, 3, 4, 5, 6
vR, vS, vU = 7, 8, 9
vB = 12
vACC = 16
vQ = 48
vE = 80
vP = 88
vQA = 96
vX = 120
vPE = 216
vRK = 224
vSC = 240
vAD = 242
NV = 250
C0 = [0, 8, 4, 12, 2, 10, 6, 14]

def s2stage(a, b):
    for j in range(8):
        a(f'v_and_or_b32 v{vAD+j}, v{vE+j}, s40, v{vLO}')
        a(f'buffer_load_dwordx4 v[{vX+32*b+4*j}:{vX+32*b+4*j+3}], v{vAD+j}, s[4:7], 0 offen')
    for j in range(8):
        a(f'v_perm_b32 v{vQA+8*b+j}, v{vE+j}, v{vLO}, s41')

def eread(a, off):
    a(f'ds_read_b128 v[{vE}:{vE+3}], v{vLA} offset:{off}')
    a(f'ds_read_b128 v[{vE+4}:{vE+7}], v{vLA} offset:{off+16}')

def qread(a, b):
    for j in range(8):
        a(f'ds_read_b128 v[{vQ+4*j}:{vQ+4*j+3}], v{vQA+8*b+j}')

def compute(a, b):
    X = lambda j, w: vX + 32 * b + 4 * j + w
    a('s_waitcnt vmcnt(16)')
    for jj in range(0, 8, 2):
        a(f's_waitcnt lgkmcnt({8-jj})')
        for w in range(4):
            for j in (jj, jj + 1):
                c = '0' if w == 0 else f'v{vP+j}'
                a(f'v_dot2_f32_bf16 v{vP+j}, v{X(j,w)}, v{vQ+4*j+w}, {c}')
    perms = []
    for f in range(8):
        w = f >> 1
        sel = 's42' if f % 2 == 0 else 's43'
        for p in range(4):
            perms.append(f'v_perm_b32 v{vQ+4*f+p}, v{X(2*p+1,w)}, v{X(2*p,w)}, {sel}')
    pi = iter(perms)
    def fill(n):
        for _ in range(n):
            try: a(next(pi))
            except StopIteration: a('s_nop 0')
    dpp = lambda d, s, ctl, bm: f'v_add_f32_dpp v{d}, v{s}, v{s} {ctl} row_mask:0xf bank_mask:{bm}'
    fill(1)
    for j in (0, 2, 4, 6):
        if j == 6: fill(1)
        a(dpp(vP + j, vP + j, 'row_ror:8', '0x3'))
    for j in (0, 2, 4, 6):
        a(dpp(vP + j, vP + j + 1, 'row_ror:8', '0xc'))
    a(dpp(vP + 0, vP + 0, 'row_half_mirror', '0x5'))
    fill(1)
    a(dpp(vP + 4, vP + 4, 'row_half_mirror', '0x5'))
    a(dpp(vP + 0, vP + 2, 'row_half_mirror', '0xa'))
    fill(1)
    a(dpp(vP + 4, vP + 6, 'row_half_mirror', '0xa'))
    a(f'v_cndmask_b32 v{vS}, v{vP+4}, v{vP+0}, s[44:45]')
    a(f'v_cndmask_b32 v{vR}, v{vP+0}, v{vP+4}, s[44:45]')
    fill(2)
    a(f'v_add_f32_dpp v{vR}, v{vS}, v{vR} quad_perm:[2,3,0,1] row_mask:0xf bank_mask:0xf')
    fill(2)
    a(f'v_add_f32_dpp v{vR}, v{vR}, v{vR} quad_perm:[1,0,3,2] row_mask:0xf bank_mask:0xf')
    fill(1)
    a(f'v_cvt_pk_bf16_f32 v{vR}, v{vR}, v{vR}')
    fill(1)
    a(f'v_and_b32 v{vR}, 0xffff0000, v{vR}')
    fill(1)
    a(f'v_mul_f32 v{vR}, s46, v{vR}')
    fill(1)
    a(f'v_cvt_pk_bf16_f32 v{vR}, v{vR}, v{vR}')
    fill(1)
    a(f'v_and_b32 v{vR}, 0xffff0000, v{vR}')
    fill(1)
    a(f'v_mul_f32 v{vR}, s47, v{vR}')
    fill(1)
    a(f'v_exp_f32 v{vR}, v{vR}')
    fill(1)
    a(f'v_add_f32 v{vR}, 1.0, v{vR}')
    fill(1)
    a(f'v_rcp_f32 v{vR}, v{vR}')
    for j in range(8):
        a(f'v_cmp_ne_u32 vcc, v{vQA+8*b+j}, v{vKEY}')
        fill(2)
        a(f'v_cndmask_b32_dpp v{vP+j}, v{vR}, v{vZ}, vcc row_newbcast:{C0[j]} row_mask:0xf bank_mask:0xf')
        if j % 2 == 1:
            a(f'v_cvt_pk_bf16_f32 v{vB+j//2}, v{vP+j-1}, v{vP+j}')
    rest = list(pi)
    for r in rest: a(r)
    if len(rest) < 2: a('s_nop 1')
    for f in range(8):
        a(f'v_mfma_f32_16x16x32_bf16 v[{vACC+4*f}:{vACC+4*f+3}], v[{vQ+4*f}:{vQ+4*f+3}], v[{vB}:{vB+3}], v[{vACC+4*f}:{vACC+4*f+3}]')

def gemm(a, areg, waddr, wregs, dreg):
    nb = len(wregs)
    order = [(t, s) for t in range(8) for s in range(4)]
    issued = 0
    def issue():
        nonlocal issued
        t, s = order[issued]
        r = wregs[issued % nb]
        a(f'ds_read_b128 v[{r}:{r+3}], v{waddr} offset:{(t*4+s)*1024}')
        issued += 1
    pre = min(nb, 15)
    for _ in range(pre): issue()
    for i, (t, s) in enumerate(order):
        out = issued - i - 1
        a(f's_waitcnt lgkmcnt({out})')
        r = wregs[i % nb]
        c = '0' if s == 0 else f'v[{dreg+4*t}:{dreg+4*t+3}]'
        a(f'v_mfma_f32_16x16x32_bf16 v[{dreg+4*t}:{dreg+4*t+3}], v[{areg+4*s}:{areg+4*s+3}], v[{r}:{r+3}], {c}')
        if issued < 32 and issued - i <= nb and (issued % nb) == (i % nb) or (issued < 32 and pre < nb):
            issue()

def k2(opt):
    a = Asm()
    a.label(f'{NAME}_kernel')
    a('s_cmp_ge_u32 s2, 256')
    a('s_cbranch_scc1 K2_end')
    a('s_load_dwordx2 s[24:25], s[0:1], 0')
    a('s_load_dwordx2 s[26:27], s[0:1], 40')
    a('s_load_dwordx2 s[28:29], s[0:1], 56')
    a('v_lshrrev_b32 v7, 6, v0')
    a(f'v_and_b32 v8, 15, v0')
    a('v_readfirstlane_b32 s3, v7')
    a(f'v_lshlrev_b32 v{vLO}, 4, v8')
    a(f'v_bfe_u32 v9, v0, 4, 2')
    a(f'v_and_b32 v10, 63, v0')
    a(f'v_lshlrev_b32 v{vWA}, 4, v10')
    a(f'v_add_u32 v{vWVA}, {L_WV}, v{vWA}')
    a(f'v_mov_b32 v{vZ}, 0')
    a('s_lshl_b32 s30, s3, 4')
    a('s_or_b32 s30, s30, 0x80')
    a(f'v_or_b32 v{vKEY}, s30, v8')
    a(f'v_lshl_or_b32 v{vKEY}, v{vKEY}, 8, v{vLO}')
    a('s_lshl_b32 s31, s3, 11')
    a(f's_add_u32 s31, s31, {L_LIST}')
    a('s_mul_i32 s32, s2, %d' % SLOTB)
    a('v_lshlrev_b32 v11, 4, v0')
    a('s_waitcnt lgkmcnt(0)')
    srd(a, 8, 28, 29, SLOTB, add='s32')
    a(f'buffer_load_dwordx4 v[{vPE}:{vPE+3}], v11, s[8:11], 0 offen')
    a('v_add_u32 v11, 0x2000, v11')
    a(f'buffer_load_dwordx4 v[{vPE+4}:{vPE+7}], v11, s[8:11], 0 offen')
    srd(a, 20, 28, 29, P * 4, add=WS_SCNT)
    a('v_lshlrev_b32 v12, 2, v10')
    a(f'buffer_load_dword v{vSC}, v12, s[20:23], 0 offen')
    a(f'buffer_load_dword v{vSC+1}, v12, s[20:23], 0 offen offset:256')
    srd(a, 4, 24, 25, XB)
    a('s_lshl_b32 s34, s3, 8')
    a('s_add_u32 s34, s34, s2')
    a('s_lshl_b32 s34, s34, 8')
    a('v_lshlrev_b32 v12, 19, v8')
    a('v_lshl_add_u32 v12, v9, 6, v12')
    a('v_add_u32 v12, s34, v12')
    for s in range(4):
        a(f'buffer_load_dwordx4 v[{vRK+4*s}:{vRK+4*s+3}], v12, s[4:7], 0 offen offset:{16*s}')
    srd(a, 12, 28, 29, 65536, add=WS_WF)
    a('s_lshl_b32 s35, s3, 12')
    a('s_mov_b32 m0, s35')
    a(f'v_add_u32 v12, s35, v{vWA}')
    for i in range(4):
        a(f'buffer_load_dwordx4 v12, s[12:15], 0 offen offset:{1024*i} lds')
    a(f's_add_u32 s36, s35, {L_WV}')
    a('s_mov_b32 m0, s36')
    a('s_mov_b32 s36, 0x8000')
    for i in range(4):
        a(f'buffer_load_dwordx4 v12, s[12:15], s36 offen offset:{1024*i} lds')
    srd(a, 16, 26, 27, XB)
    a('s_mov_b32 s40, 0x7fff00')
    a('s_mov_b32 s41, 0x0c0c0400')
    a('s_mov_b32 s42, 0x05040100')
    a('s_mov_b32 s43, 0x07060302')
    a('s_mov_b32 s44, 0xcccccccc')
    a('s_mov_b32 s45, 0xcccccccc')
    a('s_mov_b32 s46, 0x3db504f3')
    a('s_mov_b32 s47, 0xbfb8aa3b')
    a('s_mov_b32 s48, 0')
    a('s_or_b32 s49, s30, 0x7fff0f')
    a('s_lshl_b32 s50, s3, 2')
    a(f's_add_u32 s50, s50, {L_CNT}')
    def listinit():
        a(f'v_add_u32 v12, s31, v{vWA}')
        for i in range(4): a(f'v_mov_b32 v{vE+i}, s49')
        a(f'ds_write_b128 v12, v[{vE}:{vE+3}]')
        a(f'ds_write_b128 v12, v[{vE}:{vE+3}] offset:1024')
        a('v_mov_b32 v13, s50')
        a(f'ds_write_b32 v13, v{vZ}')
        a(f'v_mov_b32 v13, {L_CNT+32}')
        a(f'ds_write_b32 v13, v{vZ}')
    listinit()
    a('s_waitcnt lgkmcnt(0)')
    a('s_barrier')
    a('s_waitcnt vmcnt(14)')
    a.label('K2_place')
    a(f'v_mov_b32 v13, 1')
    for j in range(8):
        a(f'v_lshrrev_b32 v{vP+j}, 2, v{vPE+j}')
        a(f'v_and_b32 v{vP+j}, 0x1c, v{vP+j}')
        a(f'v_add_u32 v{vP+j}, {L_CNT}, v{vP+j}')
        a(f'v_mov_b32 v{vE+j}, -1')
    for j in range(8):
        a(f'v_cmpx_ne_u32 vcc, 0, v{vPE+j}')
        a(f'ds_add_rtn_u32 v{vE+j}, v{vP+j}, v13')
        a('s_mov_b64 exec, -1')
    for j in range(8):
        a(f'v_lshlrev_b32 v{vP+j}, 9, v{vP+j}')
    a(f's_mov_b32 s51, {CAP}')
    cst = (L_LIST - L_CNT * 512) & 0xffffffff
    a(f's_mov_b32 s52, {cst}')
    for j in range(8):
        a(f's_waitcnt lgkmcnt({7-j})')
        a(f'v_lshl_add_u32 v{vP+j}, v{vE+j}, 2, v{vP+j}')
        a(f'v_add_u32 v{vP+j}, s52, v{vP+j}')
        a(f'v_cmpx_gt_u32 vcc, s51, v{vE+j}')
        a(f'ds_write_b32 v{vP+j}, v{vPE+j}')
        a(f'v_mov_b32 v{vPE+j}, 0')
        a('s_mov_b64 exec, -1')
    a(f'v_or3_b32 v13, v{vPE}, v{vPE+1}, v{vPE+2}')
    a(f'v_or3_b32 v13, v13, v{vPE+3}, v{vPE+4}')
    a(f'v_or3_b32 v13, v13, v{vPE+5}, v{vPE+6}')
    a(f'v_or_b32 v13, v13, v{vPE+7}')
    a(f'v_mov_b32 v12, {L_CNT+32}')
    a('v_cmpx_ne_u32 vcc, 0, v13')
    a('ds_write_b32 v12, v13')
    a('s_mov_b64 exec, -1')
    a('s_waitcnt vmcnt(0) lgkmcnt(0)')
    a('s_barrier')
    a('v_mov_b32 v13, s50')
    a('ds_read_b32 v13, v13')
    a('ds_read_b32 v12, v12')
    a(f'v_bfe_u32 v{vLA}, v0, 4, 2')
    a(f'v_lshlrev_b32 v{vLA}, 5, v{vLA}')
    a(f'v_add_u32 v{vLA}, s31, v{vLA}')
    eread(a, 0)
    a('s_waitcnt lgkmcnt(0)')
    a('v_readfirstlane_b32 s53, v13')
    a('v_readfirstlane_b32 s54, v12')
    s2stage(a, 0)
    eread(a, 128)
    a('s_min_u32 s53, s53, s51')
    a('s_add_u32 s53, s53, 31')
    a('s_lshr_b32 s53, s53, 5')
    a('s_waitcnt lgkmcnt(0)')
    s2stage(a, 1)
    eread(a, 256)
    a('s_waitcnt lgkmcnt(0)')
    s2stage(a, 2)
    a('s_cmp_lg_u32 s48, 0')
    a('s_cbranch_scc1 K2_qdone')
    a('s_mov_b32 s48, 1')
    a(f'v_cmp_ne_u32 s[56:57], 0, v{vSC}')
    a(f'v_cmp_ne_u32 s[58:59], 0, v{vSC+1}')
    gemm(a, vRK, vWA, [vQ + 4 * i for i in range(8)], vACC)
    a(f'v_bfe_u32 v12, v0, 4, 2')
    a(f'v_lshlrev_b32 v12, 10, v12')
    a(f'v_add_u32 v12, v12, v{vLO}')
    a(f's_add_u32 s36, s35, {L_Q}')
    a(f'v_add_u32 v12, s36, v12')
    a('s_nop 3')
    for r in range(4):
        for u in range(4):
            a(f'v_cvt_pk_bf16_f32 v{vQ+4*r+u}, v{vACC+8*u+r}, v{vACC+8*u+4+r}')
        a(f'ds_write_b128 v12, v[{vQ+4*r}:{vQ+4*r+3}] offset:{256*r}')
    for i in range(32):
        a(f'v_mov_b32 v{vACC+i}, 0')
    a('s_waitcnt lgkmcnt(0)')
    a.label('K2_qdone')
    a('s_cmp_eq_u32 s53, 0')
    a('s_cbranch_scc1 K2_done')
    qread(a, 0)
    eread(a, 384)
    a.label('K2_loop')
    for b in range(3):
        compute(a, b)
        a('s_sub_u32 s53, s53, 1')
        a('s_cmp_eq_u32 s53, 0')
        a('s_cbranch_scc1 K2_done')
        qread(a, (b + 1) % 3)
        a('s_waitcnt lgkmcnt(8)')
        s2stage(a, b)
        if b == 2:
            a(f'v_add_u32 v{vLA}, 384, v{vLA}')
            eread(a, 384)
        else:
            eread(a, 512 + 128 * b)
    a('s_branch K2_loop')
    a.label('K2_done')
    a('s_waitcnt vmcnt(0) lgkmcnt(0)')
    a('s_or_b64 s[60:61], s[56:57], s[58:59]')
    a('s_or_b32 s60, s60, s61')
    a('s_or_b32 s60, s60, s54')
    a('s_cbranch_scc1 K2_slow')
    a('s_nop 4')
    for s in range(4):
        for u in range(4):
            a(f'v_cvt_pk_bf16_f32 v{vQ+4*s+u}, v{vACC+8*u+s}, v{vACC+8*u+4+s}')
    gemm(a, vQ, vWVA, [vX + 4 * i for i in range(24)], vACC)
    a(f'v_bfe_u32 v12, v0, 4, 2')
    a(f'v_lshlrev_b32 v12, 21, v12')
    a(f'v_add_u32 v12, v12, v{vLO}')
    a('v_add_u32 v12, s34, v12')
    a('s_nop 4')
    for r in range(4):
        for u in range(4):
            a(f'v_cvt_pk_bf16_f32 v{vQ+4*r+u}, v{vACC+8*u+r}, v{vACC+8*u+4+r}')
        a(f'buffer_store_dwordx4 v[{vQ+4*r}:{vQ+4*r+3}], v12, s[16:19], 0 offen')
        if r < 3: a(f'v_add_u32 v12, {2048*256}, v12')
    a.label('K2_end')
    a('s_endpgm')
    a.label('K2_slow')
    a('s_barrier')
    listinit()
    a('s_cmp_lg_u32 s54, 0')
    a('s_cbranch_scc1 K2_slow_go')
    a('s_cmp_eq_u64 s[56:57], 0')
    a('s_cbranch_scc1 K2_slow_hi')
    a('s_ff1_i32_b64 s60, s[56:57]')
    a('s_bitset0_b64 s[56:57], s60')
    a(f'v_readlane_b32 s61, v{vSC}, s60')
    a('s_branch K2_slow_ld')
    a.label('K2_slow_hi')
    a('s_ff1_i32_b64 s60, s[58:59]')
    a('s_bitset0_b64 s[58:59], s60')
    a(f'v_readlane_b32 s61, v{vSC+1}, s60')
    a('s_add_u32 s60, s60, 64')
    a.label('K2_slow_ld')
    srd(a, 8, 28, 29, P * CH * 4, add=WS_SPILL)
    a('s_mul_i32 s60, s60, %d' % (CH * 4))
    a('v_lshlrev_b32 v11, 5, v0')
    a(f'buffer_load_dwordx4 v[{vPE}:{vPE+3}], v11, s[8:11], s60 offen')
    a(f'buffer_load_dwordx4 v[{vPE+4}:{vPE+7}], v11, s[8:11], s60 offen offset:16')
    a('v_lshlrev_b32 v11, 3, v0')
    a('s_waitcnt vmcnt(0)')
    for j in range(8):
        a(f'v_add_u32 v12, {j}, v11')
        a(f'v_lshrrev_b32 v13, 24, v{vPE+j}')
        a('v_cmp_gt_u32 vcc, s61, v12')
        a('v_cmp_eq_u32 s[62:63], s2, v13')
        a('s_and_b64 vcc, vcc, s[62:63]')
        a('s_nop 1')
        a(f'v_cndmask_b32 v{vPE+j}, 0, v{vPE+j}, vcc')
    a.label('K2_slow_go')
    a('s_waitcnt lgkmcnt(0)')
    a('s_barrier')
    a('s_branch K2_place')
    return a

HDR = open('cdna_kernels/%s.s.ref' % NAME).read().split('; Override')[0]

def desc(name, nv, ns):
    acc = (nv + 3) // 4 * 4
    return f'''.p2align 6
.amdhsa_kernel {name}
  .amdhsa_next_free_vgpr {nv}
  .amdhsa_next_free_sgpr {ns}
  .amdhsa_accum_offset {acc}
  .amdhsa_group_segment_fixed_size 0
  .amdhsa_kernarg_size 64
  .amdhsa_user_sgpr_count 2
  .amdhsa_user_sgpr_kernarg_segment_ptr 1
  .amdhsa_system_sgpr_workgroup_id_x 1
.end_amdhsa_kernel
'''

def build(opt):
    a1 = k1(opt); a2 = k2(opt)
    for e in check(a1.lines, 'k1') + check(a2.lines, 'k2'): print('HAZARD', e)
    t = HDR
    t += f'; @launch kernel=part_kernel grid=({P+4},1,1) block=(1024,1,1) lds=49152\n'
    t += f'; @launch kernel={NAME}_kernel grid=(256,1,1) block=(512,1,1) lds={LDS2}\n'
    t += '.amdgcn_target "amdgcn-amd-amdhsa--gfx950"\n.text\n'
    t += '.globl part_kernel\n.p2align 8\n.type part_kernel,@function\n' + a1.text()
    t += f'.globl {NAME}_kernel\n.p2align 8\n.type {NAME}_kernel,@function\n' + a2.text()
    t += '.section .rodata,"a"\n'
    t += desc('part_kernel', 32, 56) + desc(f'{NAME}_kernel', NV, 72)
    return t

if __name__ == '__main__':
    out = sys.argv[1] if len(sys.argv) > 1 else f'cdna_kernels/{NAME}.s'
    opt = dict(kv.split('=', 1) for kv in sys.argv[2:])
    open(out, 'w').write(build(opt))
```

```python
import sys
src, which, out = sys.argv[1], int(sys.argv[2]), sys.argv[3]
s = open(src).read()
name='standalone__kernel_systems_refs_featgraph__graph'
OFF = 200<<20
def stamp(slot):
    return f'''    s_cmp_lg_u32 s2, 0
    s_cbranch_scc1 STAMP_SKIP{slot}
    s_memrealtime s[80:81]
    s_load_dwordx2 s[82:83], s[0:1], 56
    s_waitcnt lgkmcnt(0)
    s_add_u32 s84, s82, {OFF}
    s_addc_u32 s85, s83, 0
    s_and_b32 s85, s85, 0xffff
    s_mov_b32 s86, 4096
    s_mov_b32 s87, 0x20000
    v_mov_b32 v2, s80
    v_mov_b32 v3, s81
    v_mov_b32 v1, {slot*16}
    buffer_store_dwordx2 v[2:3], v1, s[84:87], 0 offen
    s_waitcnt vmcnt(0)
STAMP_SKIP{slot}:
'''
s = s.replace('part_kernel:\n', 'part_kernel:\n' + stamp(0), 1)
s = s.replace(name+'_kernel:\n', name+'_kernel:\n' + stamp(1), 1)
s = s.replace('.amdhsa_next_free_sgpr 56', '.amdhsa_next_free_sgpr 96').replace('.amdhsa_next_free_sgpr 72', '.amdhsa_next_free_sgpr 96')
L = s.split('\n')
idx = [i for i,l in enumerate(L) if l.startswith('; @launch')]
L.insert(idx[-1]+1, '; @launch kernel=spin_kernel grid=(1,1,1) block=(64,1,1) lds=0')
s = '\n'.join(L)
body = f'''.globl spin_kernel
.p2align 8
.type spin_kernel,@function
spin_kernel:
    s_cmp_lg_u32 s2, 0
    s_cbranch_scc1 SPIN_END
    s_memrealtime s[8:9]
    s_load_dwordx2 s[4:5], s[0:1], 56
    s_waitcnt lgkmcnt(0)
    s_add_u32 s4, s4, {OFF}
    s_addc_u32 s5, s5, 0
    s_load_dwordx2 s[6:7], s[4:5], {(which%2)*16}
    s_waitcnt lgkmcnt(0)
''' + ('    s_mov_b32 s6, s8\n' if which == 2 else '') + f'''    s_add_u32 s6, s6, 6000
    s_mov_b32 s10, 0
SPIN_LOOP:
    s_memrealtime s[8:9]
    s_waitcnt lgkmcnt(0)
    s_add_u32 s10, s10, 1
    s_cmp_gt_u32 s10, 20000
    s_cbranch_scc1 SPIN_END
    s_sub_u32 s11, s6, s8
    s_cmp_gt_i32 s11, 0
    s_cbranch_scc1 SPIN_LOOP
SPIN_END:
    s_endpgm
.section .rodata,"a"
.p2align 6
.amdhsa_kernel spin_kernel
  .amdhsa_next_free_vgpr 8
  .amdhsa_next_free_sgpr 16
  .amdhsa_accum_offset 8
  .amdhsa_group_segment_fixed_size 0
  .amdhsa_kernarg_size 64
  .amdhsa_user_sgpr_count 2
  .amdhsa_user_sgpr_kernarg_segment_ptr 1
  .amdhsa_system_sgpr_workgroup_id_x 1
.end_amdhsa_kernel
'''
s = s.replace('.section .rodata,"a"\n', body, 1)
open(out,'w').write(s)
```

```python
import sys
sys.path.insert(0, 'gen')
from asmlib import Asm, check
N = 25000; E = 400000; XB = N * 256
CH = 3128; P = 128
NAME = 'standalone__kernel_systems_refs_featgraph__graph'
L_LIST = 0; L_PC = 16384; L_C = 17408; LB = 18432
L_SLOW = L_C + 96; L_OVF = L_C + 100; L_TAG = L_C + 104; L_RS = L_C + 112
L_WQ = LB; L_WV = LB + 32768; L_XO = LB + 65536; L_QS = LB + 98304
LDS = LB + 131072
CAP = 384
vGO = 4; vA1A = 8; vTRA = 12; vKEY = 20; vLA = 21; vZ = 22; vT16 = 23; vRB = 24
vN = 28; vG = 29; vLN = 30; vTMP = 31
vACC = 32; vQB = 64; vWV = 80; vA1 = 96; vT = 128; vS = 160; vE = 168; vB = 184; vAD = 188
vPE = 196; vRK = 204; vCA = 212; vTB = 220; vX = 228
NV = 244
sM = 60

def srd(a, d, lo, nrec, add=None):
    if add is None:
        a(f's_mov_b32 s{d}, s{lo}')
        a(f's_and_b32 s{d+1}, s{lo+1}, 0xffff')
    else:
        a(f's_add_u32 s{d}, s{lo}, {add}')
        a(f's_addc_u32 s{d+1}, s{lo+1}, 0')
        a(f's_and_b32 s{d+1}, s{d+1}, 0xffff')
    a(f's_mov_b32 s{d+2}, {nrec}')
    a(f's_mov_b32 s{d+3}, 0x20000')

def mf(d, A, B, C): return f'v_mfma_f32_16x16x32_bf16 v[{d}:{d+3}], v[{A}:{A+3}], v[{B}:{B+3}], {C}'

def edge_loads(a, soff):
    a(f'v_lshlrev_b32 v{vX}, 5, v0')
    a(f'buffer_load_dwordx4 v[{vA1+8}:{vA1+11}], v{vX}, s[20:23], {soff} offen')
    a(f'buffer_load_dwordx4 v[{vA1+12}:{vA1+15}], v{vX}, s[20:23], {soff} offen offset:16')
    a(f'buffer_load_dwordx4 v[{vA1}:{vA1+3}], v{vX}, s[12:15], {soff} offen')
    a(f'buffer_load_dwordx4 v[{vA1+4}:{vA1+7}], v{vX}, s[12:15], {soff} offen offset:16')

def entries(a, dst):
    a(f'v_mov_b32 v{vX+1}, 0x81')
    for j in range(8):
        a(f'v_cmp_le_u32 s[{sM+2*j}:{sM+2*j+1}], s41, v{vA1+j}')
    for j in range(8):
        s, d = vA1 + j, vA1 + 8 + j
        a(f'v_lshrrev_b32 v{vX+2}, 4, v{d}')
        a(f'v_and_b32 v{vX+2}, 0x70, v{vX+2}')
        a(f'v_lshl_or_b32 v{dst+j}, v{s}, 8, v{vX+2}')
        a(f'v_lshrrev_b32 v{vX+2}, 11, v{d}')
        a(f'v_cndmask_b32 v{vX+3}, 1, v{vX+1}, s[{sM+2*j}:{sM+2*j+1}]')
        a(f'v_add3_u32 v{dst+j}, v{dst+j}, v{vX+2}, v{vX+3}')

def issue(a, b, fill=None):
    for j in range(8):
        if j == 0: a(f's_add_u32 m0, s42, {8192*b}')
        else: a('s_add_u32 m0, m0, 1024')
        a(f'v_and_or_b32 v{vAD+j}, v{vE+8*b+j}, s40, v{vGO+(j&3)}')
        a(f'buffer_load_dwordx4 v{vAD+j}, s[4:7], 0 offen lds')
        if fill: fill()

def eread(a, b, off):
    a(f'ds_read_b128 v[{vE+8*b}:{vE+8*b+3}], v{vLA} offset:{off}')
    a(f'ds_read_b128 v[{vE+8*b+4}:{vE+8*b+7}], v{vLA} offset:{off+16}')

def gemm8(a, A, addrs, offs, D):
    order = [(T, s) for T in range(8) for s in range(4)]
    def rd(i):
        T, s = order[i]
        r = vA1 + 4 * (i % 16)
        a(f'ds_read_b128 v[{r}:{r+3}], v{addrs(T)+s} offset:{offs(T)}')
    for i in range(12): rd(i)
    for i, (T, s) in enumerate(order):
        a(f's_waitcnt lgkmcnt({min(31, i+11) - i})')
        r = vA1 + 4 * (i % 16)
        a(mf(D + 4 * T, A + 4 * s, r, '0' if s == 0 else f'v[{D+4*T}:{D+4*T+3}]'))
        if i + 12 < 32: rd(i + 12)

def body(a, b, opt):
    tr = lambda k: f'ds_read_b64_tr_b16 v[{vT+2*k}:{vT+2*k+1}], v{vTRA+(k>>1)} offset:{8192*b+4096*(k&1)}'
    a('s_cmp_eq_u32 s53, 1')
    a(f's_cbranch_scc1 W0_{b}')
    a('s_waitcnt vmcnt(8)')
    a(f's_branch W1_{b}')
    a.label(f'W0_{b}')
    a('s_waitcnt vmcnt(0)')
    a.label(f'W1_{b}')
    for bb in range(2):
        for s in range(4):
            r = vA1 + 16 * bb + 4 * s
            a(f'ds_read_b128 v[{r}:{r+3}], v{vA1A+s} offset:{8192*b+4096*bb}')
    for j in range(8):
        a(f'v_cmp_eq_u32_sdwa s[{sM+2*j}:{sM+2*j+1}], v{vE+8*b+j}, v{vKEY} src0_sel:BYTE_0 src1_sel:DWORD')
    eread(a, b, 256 + 128 * b)
    for k in range(5): a(tr(k))
    a('s_waitcnt lgkmcnt(11)')
    for s in range(4): a(mf(vS, vA1 + 4 * s, vQB + 4 * s, '0' if s == 0 else f'v[{vS}:{vS+3}]'))
    for k in range(5, 9): a(tr(k))
    a('s_waitcnt lgkmcnt(11)')
    for s in range(4): a(mf(vS + 4, vA1 + 16 + 4 * s, vQB + 4 * s, '0' if s == 0 else f'v[{vS+4}:{vS+7}]'))
    for k in range(9, 13): a(tr(k))
    a('s_waitcnt lgkmcnt(11)')
    for k in range(13, 16): a(tr(k))
    if b == 1: a(f'v_add_u32 v{vLA}, 256, v{vLA}')
    for j in range(4): a(f'v_exp_f32 v{vS+j}, v{vS+j}')
    sig = [f'v_exp_f32 v{vS+j}, v{vS+j}' for j in range(4, 8)]
    sig += [f'v_add_f32 v{vS+j}, 1.0, v{vS+j}' for j in range(8)]
    sig += [f'v_rcp_f32 v{vS+j}, v{vS+j}' for j in range(8)]
    sig += [f'v_cndmask_b32 v{vS+j}, 0, v{vS+j}, s[{sM+2*j}:{sM+2*j+1}]' for j in range(8)]
    sig += [f'v_cvt_pk_bf16_f32 v{vB+u}, v{vS+2*u}, v{vS+2*u+1}' for u in range(4)]
    a('s_cmp_lt_u32 s53, 3')
    a(f's_cbranch_scc1 NI_{b}')
    a('s_waitcnt lgkmcnt(0)')
    it = iter(sig)
    def fill():
        for _ in range(3):
            x = next(it, None)
            if x: a(x)
    issue(a, b, fill)
    for x in it: a(x)
    a(f's_branch DI_{b}')
    a.label(f'NI_{b}')
    a('s_nop 1')
    for x in sig: a(x)
    a('s_waitcnt lgkmcnt(0)')
    a.label(f'DI_{b}')
    a('s_sub_u32 s53, s53, 1')
    a('s_cmp_eq_u32 s53, 0')
    for t in range(8):
        a(mf(vACC + 4 * t, vT + 4 * t, vB, f'v[{vACC+4*t}:{vACC+4*t+3}]'))
    a('s_cbranch_scc1 L_done')

def kern(opt):
    a = Asm()
    DG = opt.get('diag'); H = int(opt.get('H', 12544)); PFS = int(opt.get('pfs', 128)); PFN = int(opt.get('pfn', H))
    TMO = int(opt.get('tmo', 4000))
    def stamp(i):
        if DG: a(f's_memrealtime s[{80+2*i}:{81+2*i}]')
    a.label(f'{NAME}_kernel')
    a('s_cmp_ge_u32 s2, 256')
    a('s_cbranch_scc1 L_end')
    a('s_load_dwordx16 s[24:39], s[0:1], 0')
    a('s_memrealtime s[44:45]')
    stamp(0)
    a('v_lshrrev_b32 v1, 6, v0')
    a(f'v_lshlrev_b32 v{vT16}, 4, v0')
    a('v_readfirstlane_b32 s3, v1')
    for i in range(4): a(f'v_mov_b32 v{vX+i}, 0')
    a(f'ds_write_b128 v{vT16}, v[{vX}:{vX+3}]')
    a(f'ds_write_b128 v{vT16}, v[{vX}:{vX+3}] offset:8192')
    a(f'v_cmp_gt_u32 vcc, 72, v0')
    a('s_and_saveexec_b64 s[54:55], vcc')
    a(f'ds_write_b128 v{vT16}, v[{vX}:{vX+3}] offset:16384')
    a('s_mov_b64 exec, s[54:55]')
    a('s_bfe_u32 s43, s2, 0x10003')
    a('s_lshr_b32 s56, s2, 4')
    a('s_and_b32 s57, s2, 7')
    a('s_lshl_b32 s58, s56, 3')
    a('s_or_b32 s57, s57, s58')
    a(f'v_add_u32 v1, {L_QS}, v{vT16}')
    a('s_cmp_lg_u32 s43, 0')
    a('s_cbranch_scc1 L_nz')
    for u in range(4): a(f'ds_write_b128 v1, v[{vX}:{vX+3}] offset:{8192*u}')
    a.label('L_nz')
    a(f'v_and_b32 v{vN}, 15, v0')
    a(f'v_bfe_u32 v{vG}, v0, 4, 2')
    a(f'v_and_b32 v{vLN}, 63, v0')
    a(f'v_mov_b32 v{vZ}, 0')
    a(f's_mov_b32 s41, {H}')
    a('s_mov_b32 s40, 0x7fff00')
    a('s_lshl_b32 s42, s3, 14')
    a(f's_add_u32 s42, s42, {LB}')
    a(f's_mul_i32 s58, s57, {CH*4}')
    a(f's_mov_b32 s59, {CH//8}')
    a(f's_cmp_eq_u32 s57, {P-1}')
    a(f's_cselect_b32 s59, {(E-(P-1)*CH)//8}, s59')
    a('s_waitcnt lgkmcnt(0)')
    srd(a, 12, 26, E * 4); srd(a, 20, 28, E * 4)
    srd(a, 16, 36, 256)
    a('s_cmp_lg_u32 s43, 0')
    a('s_cbranch_scc1 L_noedge')
    a('v_cmp_gt_u32 vcc, s59, v0')
    a('s_and_saveexec_b64 s[54:55], vcc')
    a('s_cbranch_execz L_noedge0')
    edge_loads(a, 's58')
    a.label('L_noedge0')
    a('s_mov_b64 exec, s[54:55]')
    a.label('L_noedge')
    a('s_or_b32 s46, s2, s3')
    a('s_cmp_lg_u32 s46, 0')
    a('s_cbranch_scc1 L_nopub')
    a('s_bitset1_b32 s45, 31')
    a(f'v_mov_b32 v2, s44')
    a(f'v_mov_b32 v3, s45')
    a(f'buffer_store_dwordx2 v[2:3], v{vZ}, s[16:19], 0 offen sc0 sc1')
    a.label('L_nopub')
    srd(a, 4, 24, XB)
    a(f'v_lshlrev_b32 v1, 1, v{vG}')
    a(f'v_xor_b32 v1, v1, v{vN}')
    a(f'v_lshlrev_b32 v1, 4, v1')
    a(f'v_lshl_add_u32 v2, v{vG}, 19, v1')
    a('s_lshl_b32 s47, s3, 8')
    a('s_add_u32 s47, s47, s2')
    a('s_lshl_b32 s47, s47, 8')
    a('v_add_u32 v2, s47, v2')
    a('s_lshl_b32 s46, s3, 12')
    a(f's_add_u32 m0, s46, {L_XO}')
    a('s_nop 0')
    for u in range(4):
        if u:
            a('s_add_u32 m0, m0, 1024')
            a(f'v_add_u32 v2, {4<<19}, v2')
            a(f'v_xor_b32 v2, 128, v2')
        a('buffer_load_dwordx4 v2, s[4:7], 0 offen lds')
    a(f'v_lshl_add_u32 v2, v{vG}, 8, v1')
    a('v_add_u32 v2, s46, v2')
    a('v_xor_b32 v3, 128, v2')
    for wi, (lo, base) in enumerate(((30, L_WQ), (32, L_WV))):
        srd(a, 8, lo, 32768)
        a(f's_add_u32 m0, s46, {base}')
        a('s_nop 0')
        for u in range(4):
            a(f'buffer_load_dwordx4 v{2+(u>>1)}, s[8:11], 0 offen offset:{1024*u} lds')
    a('s_cmp_eq_u32 s43, 0')
    a('s_cbranch_scc1 L_prod')
    npf = 4 * 128 // PFS
    if PFN > 0:
        srd(a, 8, 24, PFN * 256)
        a('s_lshl_b32 s46, s56, 3')
        a('s_add_u32 s46, s46, s3')
        a(f's_mul_i32 s46, s46, {64*PFS}')
        a(f'v_mul_u32_u24 v1, {PFS}, v{vLN}')
        a('v_add_u32 v1, s46, v1')
        for u in range(npf):
            a(f'buffer_load_dword v{vT+u}, v1, s[8:11], 0 offen')
            if u < npf - 1: a(f'v_add_u32 v1, {128*64*PFS}, v1')
    a('s_barrier')
    a('s_branch L_tag')
    a.label('L_prod')
    a('s_barrier')
    a('v_cmp_gt_u32 vcc, s59, v0')
    a('s_and_saveexec_b64 s[54:55], vcc')
    a('s_cbranch_execz L_binned')
    a('s_waitcnt vmcnt(14)')
    a('s_cmp_lg_u32 s3, 0')
    a('s_cbranch_scc1 L_notl')
    a(f'buffer_load_dwordx2 v[{vTB}:{vTB+1}], v{vZ}, s[16:19], 0 offen sc0 sc1')
    a.label('L_notl')
    a('s_mov_b32 s46, 0x3fc')
    a(f'v_mov_b32 v1, 1')
    for j in range(8):
        a(f'v_lshlrev_b32 v{vCA+j}, 2, v{vA1+8+j}')
        a(f'v_and_b32 v{vCA+j}, s46, v{vCA+j}')
        a(f'ds_add_rtn_u32 v{vRK+j}, v{vCA+j}, v1 offset:{L_PC}')
    a('s_waitcnt vmcnt(12)')
    entries(a, vPE)
    a(f's_mov_b32 s46, {L_QS}')
    a('s_mov_b64 s[76:77], exec')
    for j in range(8):
        a(f'v_lshl_add_u32 v{vCA+j}, v{vCA+j}, 5, s46')
    for j in range(8):
        a(f's_waitcnt lgkmcnt({7-j})')
        a(f'v_lshl_add_u32 v{vCA+j}, v{vRK+j}, 2, v{vCA+j}')
        a(f'v_cmpx_gt_u32 vcc, 32, v{vRK+j}')
        a(f'ds_write_b32 v{vCA+j}, v{vPE+j}')
        a('s_mov_b64 exec, s[76:77]')
    a(f'v_max3_u32 v2, v{vRK}, v{vRK+1}, v{vRK+2}')
    a(f'v_max3_u32 v2, v2, v{vRK+3}, v{vRK+4}')
    a(f'v_max3_u32 v2, v2, v{vRK+5}, v{vRK+6}')
    a(f'v_max_u32 v2, v2, v{vRK+7}')
    a(f'v_cmpx_lt_u32 vcc, 31, v2')
    a(f'ds_write_b32 v{vZ}, v1 offset:{L_OVF}')
    a.label('L_binned')
    a('s_mov_b64 exec, -1')
    a.label('L_tag')
    stamp(1)
    a('s_cmp_lg_u32 s3, 0')
    a('s_cbranch_scc1 L_tagd')
    a(f's_mov_b32 s46, {TMO}')
    a('s_cmp_eq_u32 s43, 0')
    a('s_cbranch_scc1 L_tagm')
    a.label('L_tagl')
    a(f'buffer_load_dwordx2 v[{vTB}:{vTB+1}], v{vZ}, s[16:19], 0 offen sc0 sc1')
    a.label('L_tagm')
    a('s_waitcnt vmcnt(0)')
    a(f'v_readfirstlane_b32 s45, v{vTB+1}')
    a('s_sub_u32 s46, s46, 1')
    a('s_cbranch_scc1 L_tagw')
    a('s_cmp_eq_u32 s45, 0')
    a('s_cbranch_scc1 L_tagl')
    a.label('L_tagw')
    a(f'ds_write_b64 v{vZ}, v[{vTB}:{vTB+1}] offset:{L_TAG}')
    a.label('L_tagd')
    a('s_waitcnt lgkmcnt(0)')
    a('s_barrier')
    a(f'ds_read_b64 v[2:3], v{vZ} offset:{L_TAG}')
    a(f'ds_read_b32 v1, v{vZ} offset:{L_OVF}')
    a(f'v_add_u32 v{vX+4}, {L_QS}, v{vT16}')
    a('s_cmp_lg_u32 s43, 0')
    a('s_cbranch_scc1 L_rdtag')
    for u in range(4): a(f'ds_read_b128 v[{vT+4*u}:{vT+4*u+3}], v{vX+4} offset:{8192*u}')
    a.label('L_rdtag')
    srd(a, 12, 38, 256 * 16384)
    a('s_lshl_b32 s46, s2, 14')
    srd(a, 8, 38, 16384, add='s46')
    a(f'v_lshrrev_b32 v{vX}, 3, v0')
    a(f'v_and_b32 v{vX+1}, 7, v0')
    a(f'v_lshlrev_b32 v{vX}, 14, v{vX}')
    a(f'v_lshl_add_u32 v{vX}, v{vX+1}, 4, v{vX}')
    a('s_waitcnt lgkmcnt(0)')
    a('v_readfirstlane_b32 s48, v2')
    a('v_readfirstlane_b32 s49, v3')
    a('v_readfirstlane_b32 s50, v1')
    a('s_lshl_b32 s44, s48, 23')
    a('s_lshr_b64 s[46:47], s[48:49], 9')
    a('s_lshl_b32 s45, s46, 23')
    a('s_lshr_b64 s[46:47], s[48:49], 27')
    a('s_lshl_b32 s47, s46, 23')
    a('s_lshr_b32 s46, s48, 18')
    a('s_lshl_b32 s46, s46, 23')
    a('s_cmp_lg_u32 s43, 0')
    a('s_cbranch_scc1 L_copied')
    a('s_cmp_eq_u32 s49, 0')
    a('s_cbranch_scc1 L_copied')
    a('s_cmp_lg_u32 s50, 0')
    a('s_cbranch_scc1 L_ovf')
    a.label('L_copy')
    a('s_lshl_b32 s50, s57, 7')
    for u in range(4):
        for k in range(4): a(f'v_xor_b32 v{vT+4*u+k}, s{44+k}, v{vT+4*u+k}')
        a(f'buffer_store_dwordx4 v[{vT+4*u}:{vT+4*u+3}], v{vX}, s[12:15], s50 offen sc0 sc1')
        if u < 3: a(f's_add_u32 s50, s50, {1<<20}')
    a.label('L_copied')
    stamp(2)
    a(f'v_add_u32 v{vX+5}, 0x2000, v{vT16}')
    a(f'buffer_load_dwordx4 v[{vPE}:{vPE+3}], v{vT16}, s[8:11], 0 offen sc0 sc1')
    a(f'buffer_load_dwordx4 v[{vPE+4}:{vPE+7}], v{vX+5}, s[8:11], 0 offen sc0 sc1')
    a(f'v_and_b32 v1, 7, v{vN}')
    a(f'v_lshlrev_b32 v1, 1, v1')
    a(f'v_xor_b32 v2, v1, v{vG}')
    a(f'v_lshlrev_b32 v2, 4, v2')
    a(f'v_lshl_add_u32 v3, v{vN}, 8, v2')
    a(f'v_add_u32 v{vRB}, {L_XO}, v3')
    a(f'v_and_b32 v3, 3, v{vN}')
    a(f'v_lshrrev_b32 v{vTMP}, 2, v{vN}')
    a(f'v_lshl_add_u32 v{vA1A}, v3, 2, v{vTMP}')
    a(f'v_lshl_add_u32 v{vA1A}, v{vA1A}, 8, v2')
    a(f'v_add_u32 v{vA1A}, s42, v{vA1A}')
    for s in range(1, 4):
        a(f'v_xor_b32 v{vRB+s}, {s<<6}, v{vRB}')
        a(f'v_xor_b32 v{vA1A+s}, {s<<6}, v{vA1A}')
    a(f'v_and_b32 v2, 1, v{vG}')
    a(f'v_lshl_or_b32 v2, v2, 2, v{vTMP}')
    a(f'v_lshlrev_b32 v2, 5, v2')
    a(f'v_lshl_or_b32 v2, v3, 3, v2')
    a(f'v_lshl_add_u32 v{vTRA}, v{vTMP}, 2, v{vG}')
    a(f'v_lshl_add_u32 v{vTRA}, v{vTRA}, 8, v2')
    a(f'v_add_u32 v{vTRA}, s42, v{vTRA}')
    for t in range(1, 8): a(f'v_xor_b32 v{vTRA+t}, {t<<5}, v{vTRA}')
    a(f'v_lshl_add_u32 v{vX+6}, v{vG}, 3, v{vTMP}')
    a(f'v_lshl_add_u32 v{vX+6}, v{vX+6}, 8, v2')
    a('s_lshl_b32 s50, s3, 5')
    a(f'v_xor_b32 v{vX+6}, s50, v{vX+6}')
    a(f'v_add_u32 v{vX+6}, {L_WQ}, v{vX+6}')
    a(f'v_and_b32 v2, 1, v{vG}')
    a(f'v_lshlrev_b32 v2, 3, v2')
    a(f'v_xor_b32 v2, v2, v{vN}')
    a(f'v_lshlrev_b32 v{vGO}, 4, v2')
    for j in range(1, 4): a(f'v_xor_b32 v{vGO+j}, {j<<5}, v{vGO}')
    a(f'v_lshlrev_b32 v2, 4, v1')
    a(f'v_lshl_or_b32 v2, v{vG}, 3, v2')
    a(f'v_lshl_add_u32 v{vTMP}, v{vN}, 8, v2')
    a('s_lshl_b32 s51, s3, 4')
    a('s_add_u32 s51, s51, 1')
    a(f'v_add_u32 v{vKEY}, s51, v{vN}')
    srd(a, 16, 34, XB)
    a('s_cmp_lg_u32 s43, 0')
    a('s_cbranch_scc1 L_w2')
    a('s_cmp_eq_u32 s49, 0')
    a('s_cbranch_scc1 L_w3')
    a('s_waitcnt vmcnt(6)')
    a('s_branch L_w4')
    a.label('L_w2')
    a('s_waitcnt vmcnt(%d)' % (2 + (npf if PFN > 0 else 0)))
    a('s_branch L_w4')
    a.label('L_w3')
    a('s_waitcnt vmcnt(0)')
    a.label('L_w4')
    a('s_barrier')
    for k in range(8):
        a(f'ds_read_b64_tr_b16 v[{vQB+2*k}:{vQB+2*k+1}], v{vX+6} offset:{8192*(k>>1)+1024*(k&1)}')
    a('s_waitcnt lgkmcnt(4)')
    for k in range(8):
        a(f'ds_read_b64_tr_b16 v[{vWV+2*k}:{vWV+2*k+1}], v{vX+6} offset:{32768+8192*(k>>1)+1024*(k&1)}')
    a('s_waitcnt lgkmcnt(0)')
    gemm8(a, vQB, lambda T: vRB, lambda T: 4096 * T, vACC)
    a(f'v_xor_b32 v1, s50, v{vTMP}')
    a(f'v_add_u32 v1, {L_QS}, v1')
    a('s_mov_b32 s51, 0xbe0293ee')
    a('s_nop 3')
    for T in range(8):
        for r in range(4): a(f'v_mul_f32 v{vACC+4*T+r}, s51, v{vACC+4*T+r}')
        a(f'v_cvt_pk_bf16_f32 v{vS+2*(T&3)}, v{vACC+4*T}, v{vACC+4*T+1}')
        a(f'v_cvt_pk_bf16_f32 v{vS+2*(T&3)+1}, v{vACC+4*T+2}, v{vACC+4*T+3}')
        a(f'ds_write_b64 v1, v[{vS+2*(T&3)}:{vS+2*(T&3)+1}] offset:{4096*T}')
    for i in range(32): a(f'v_mov_b32 v{vACC+i}, 0')
    a('s_lshl_b32 s51, s3, 12')
    a(f's_add_u32 s51, s51, {L_QS-L_XO}')
    for s in range(4): a(f'v_add_u32 v{vX+s}, s51, v{vRB+s}')
    a('s_waitcnt lgkmcnt(0)')
    a('s_barrier')
    for s in range(4): a(f'ds_read_b128 v[{vQB+4*s}:{vQB+4*s+3}], v{vX+s}')
    stamp(3)
    a(f's_mov_b32 s50, {TMO}')
    a('s_cmp_eq_u32 s49, 0')
    a('s_cbranch_scc1 L_fail')
    a('s_mov_b32 s51, 0x800000')
    a.label('L_poll')
    a('s_waitcnt vmcnt(0)')
    for j in range(8): a(f'v_xor_b32 v{vRK+j}, s{44+(j&3)}, v{vPE+j}')
    a(f'v_or3_b32 v1, v{vRK}, v{vRK+1}, v{vRK+2}')
    a(f'v_or3_b32 v2, v{vRK+4}, v{vRK+5}, v{vRK+6}')
    a(f'v_or3_b32 v1, v1, v{vRK+3}, v{vRK+7}')
    a(f'v_or_b32 v1, v1, v2')
    a('v_cmpx_le_u32 vcc, s51, v1')
    a('s_cbranch_execz L_got')
    a(f'buffer_load_dwordx4 v[{vPE}:{vPE+3}], v{vT16}, s[8:11], 0 offen sc0 sc1')
    a(f'buffer_load_dwordx4 v[{vPE+4}:{vPE+7}], v{vX+5}, s[8:11], 0 offen sc0 sc1')
    a('s_sub_u32 s50, s50, 1')
    a('s_cbranch_scc0 L_poll')
    a('s_mov_b64 exec, -1')
    a.label('L_fail')
    a('s_waitcnt vmcnt(0)')
    a('s_lshl_b32 s50, s3, 3')
    a('s_lshl_b32 s50, 0xff, s50')
    a('s_and_b32 s51, s3, 4')
    a('v_mov_b32 v1, s50')
    a('v_mov_b32 v2, s51')
    a(f'ds_or_b32 v2, v1 offset:{L_RS}')
    a(f'ds_or_b32 v2, v1 offset:{L_RS+8}')
    for j in range(8): a(f'v_mov_b32 v{vRK+j}, 0')
    a.label('L_got')
    a('s_mov_b64 exec, -1')
    stamp(4)
    a(f'v_cmp_eq_u32 vcc, 0x70, v{vRK}')
    a(f'v_cmp_eq_u32 s[50:51], v{vRK+4}, v{vRK+5}')
    a.lines.pop()
    a(f'v_mov_b32 v1, 0x70')
    a(f'v_cmp_eq_u32 s[50:51], v1, v{vRK+4}')
    for j in range(8): a(f'v_mov_b32 v{vPE+j}, v{vRK+j}')
    a('s_or_b64 s[54:55], vcc, s[50:51]')
    a('s_cbranch_scc1 L_mark')
    a.label('L_place')
    a('v_mov_b32 v1, 1')
    for j in range(8):
        a(f'v_lshrrev_b32 v{vCA+j}, 2, v{vPE+j}')
        a(f'v_and_b32 v{vCA+j}, 0x3c, v{vCA+j}')
        a(f'v_mov_b32 v{vRK+j}, -1')
        a(f'v_cmpx_ne_u32 vcc, 0, v{vPE+j}')
        a(f'ds_add_rtn_u32 v{vRK+j}, v{vCA+j}, v1 offset:{L_C+32}')
        a('s_mov_b64 exec, -1')
    for j in range(8):
        a(f'v_and_b32 v{vTB+j}, 0x1c, v{vCA+j}')
        a(f'v_lshlrev_b32 v{vTB+j}, 9, v{vTB+j}')
    a('s_lshl_b32 s50, s3, 2')
    a('v_mov_b32 v3, s50')
    a(f's_mov_b32 s51, {CAP}')
    a('s_waitcnt lgkmcnt(0)')
    a('s_barrier')
    for j in range(8): a(f'ds_read_b32 v{vCA+j}, v{vCA+j} offset:{L_C}')
    a(f'ds_read2_b32 v[{vX}:{vX+1}], v3 offset0:0 offset1:8') ; a.lines.pop()
    a(f'ds_read_b32 v{vX}, v3 offset:{L_C+32}')
    a(f'ds_read_b32 v{vX+1}, v3 offset:{L_C+64}')
    for j in range(8):
        a(f's_waitcnt lgkmcnt({9-j})')
        a(f'v_add_u32 v{vRK+j}, v{vRK+j}, v{vCA+j}')
        a(f'v_lshl_add_u32 v{vTB+j}, v{vRK+j}, 2, v{vTB+j}')
        a(f'v_and_b32 v{vCA+j}, 0xffffff7f, v{vPE+j}')
        a(f'v_cmpx_gt_u32 vcc, s51, v{vRK+j}')
        a(f'ds_write_b32 v{vTB+j}, v{vCA+j}')
        a(f'v_mov_b32 v{vPE+j}, 0')
        a('s_mov_b64 exec, -1')
    a(f'v_or3_b32 v1, v{vPE}, v{vPE+1}, v{vPE+2}')
    a(f'v_or3_b32 v1, v1, v{vPE+3}, v{vPE+4}')
    a(f'v_or3_b32 v1, v1, v{vPE+5}, v{vPE+6}')
    a(f'v_or_b32 v1, v1, v{vPE+7}')
    a('v_cmpx_ne_u32 vcc, 0, v1')
    a(f'ds_write_b32 v{vZ}, v1 offset:{L_SLOW}')
    a('s_mov_b64 exec, -1')
    a(f'v_add_u32 v{vX}, v{vX}, v{vX+1}')
    a('s_lshl_b32 s50, s3, 11')
    a(f'v_lshl_add_u32 v{vLA}, v{vG}, 5, s50')
    a(f'v_readfirstlane_b32 s53, v{vX}')
    a('s_waitcnt lgkmcnt(0)')
    a('s_barrier')
    eread(a, 0, 0)
    eread(a, 1, 128)
    a(f'ds_read_b32 v1, v{vZ} offset:{L_SLOW}')
    a(f'ds_read_b128 v[{vX}:{vX+3}], v{vZ} offset:{L_RS}')
    a('s_min_u32 s53, s53, s51')
    a('s_add_u32 s53, s53, 31')
    a('s_lshr_b32 s53, s53, 5')
    stamp(5)
    a('s_cmp_eq_u32 s53, 0')
    a('s_cbranch_scc1 L_noi')
    a('s_waitcnt lgkmcnt(4)')
    issue(a, 0)
    a('s_cmp_eq_u32 s53, 1')
    a('s_cbranch_scc1 L_noi')
    a('s_waitcnt lgkmcnt(2)')
    issue(a, 1)
    a.label('L_noi')
    a('s_waitcnt lgkmcnt(0)')
    a('v_readfirstlane_b32 s52, v1')
    for i in range(4): a(f'v_readfirstlane_b32 s{76+i}, v{vX+i}')
    a('s_cmp_eq_u32 s53, 0')
    a('s_cbranch_scc1 L_done')
    a.label('L_loop')
    body(a, 0, opt)
    body(a, 1, opt)
    a('s_branch L_loop')
    a.label('L_done')
    stamp(6)
    a('s_or_b64 s[54:55], s[76:77], s[78:79]')
    a('s_or_b32 s54, s54, s55')
    a('s_or_b32 s54, s54, s52')
    a('s_cbranch_scc1 L_slow')
    a(f'v_add_u32 v1, s42, v{vTMP}')
    for s in range(4):
        a(f'v_add_u32 v{vRB+s}, {(LB-L_XO)&0xffffffff}, v{vRB+s}')
        a(f'v_add_u32 v{vX+s}, 0x10000, v{vRB+s}')
    for t in range(8):
        a(f'v_cvt_pk_bf16_f32 v{vS+2*(t&3)}, v{vACC+4*t}, v{vACC+4*t+1}')
        a(f'v_cvt_pk_bf16_f32 v{vS+2*(t&3)+1}, v{vACC+4*t+2}, v{vACC+4*t+3}')
        a(f'v_xor_b32 v2, {t<<5}, v1')
        a(f'ds_write_b64 v2, v[{vS+2*(t&3)}:{vS+2*(t&3)+1}]')
    a(f'v_lshlrev_b32 v1, 19, v{vN}')
    a(f'v_lshl_add_u32 v1, v{vG}, 3, v1')
    a('s_lshl_b32 s50, s2, 8')
    a('s_lshl_b32 s51, s3, 5')
    a('s_add_u32 s50, s50, s51')
    a('v_add_u32 v1, s50, v1')
    a('s_waitcnt lgkmcnt(0)')
    a('s_barrier')
    gemm8(a, vWV, lambda T: vRB if T < 4 else vX, lambda T: 16384 * (T & 3), vACC)
    for T in range(8):
        if T == 7: a('s_nop 4')
        a(f'v_cvt_pk_bf16_f32 v{vT+2*T}, v{vACC+4*T}, v{vACC+4*T+1}')
        a(f'v_cvt_pk_bf16_f32 v{vT+2*T+1}, v{vACC+4*T+2}, v{vACC+4*T+3}')
        a(f'buffer_store_dwordx2 v[{vT+2*T}:{vT+2*T+1}], v1, s[16:19], 0 offen')
        if T < 7: a('v_add_u32 v1, 0x10000, v1')
    if DG:
        a('s_waitcnt vmcnt(0)')
        stamp(7)
        a('s_waitcnt lgkmcnt(0)')
        srd(a, 8, 38, 1 << 20, add=200 << 20)
        a('s_lshl_b32 s60, s2, 3')
        a('s_add_u32 s60, s60, s3')
        a('s_lshl_b32 s60, s60, 5')
        for i in range(8): a(f'v_mov_b32 v{16+i}, s{80+2*i}')
        a('v_mov_b32 v12, 0')
        a(f'v_cmpx_eq_u32 vcc, 0, v{vLN}')
        a('buffer_store_dwordx4 v[16:19], v12, s[8:11], s60 offen')
        a('buffer_store_dwordx4 v[20:23], v12, s[8:11], s60 offen offset:16')
    a.label('L_end')
    a('s_endpgm')
    a.label('L_ovf')
    a(f'v_lshrrev_b32 v1, 1, v0')
    a(f'v_and_b32 v1, 0xfc, v1')
    for u in range(4): a(f'ds_read_b32 v{vRK+u}, v1 offset:{L_PC+256*u}')
    a('s_waitcnt lgkmcnt(0)')
    for u in range(4):
        a(f'v_cmpx_lt_u32 vcc, 32, v{vRK+u}')
        a(f'v_mov_b32 v{vT+4*u}, 0x70')
        for k in range(1, 4): a(f'v_mov_b32 v{vT+4*u+k}, 0')
        a('s_mov_b64 exec, -1')
    a('s_branch L_copy')
    a.label('L_mark')
    a('v_lshrrev_b32 v1, 3, v0')
    a('v_lshlrev_b32_e64 v2, v1, 1')
    a('v_lshrrev_b32 v1, 3, v1')
    a('v_and_b32 v1, 4, v1')
    a('s_mov_b64 exec, vcc')
    a(f'ds_or_b32 v1, v2 offset:{L_RS}')
    a(f'v_mov_b32 v{vPE}, 0')
    a('s_mov_b64 exec, s[50:51]')
    a(f'ds_or_b32 v1, v2 offset:{L_RS+8}')
    a(f'v_mov_b32 v{vPE+4}, 0')
    a('s_mov_b64 exec, -1')
    a('s_branch L_place')
    a.label('L_slow')
    a('s_barrier')
    for i in range(4): a(f'v_mov_b32 v{vX+i}, 0')
    a(f'ds_write_b128 v{vT16}, v[{vX}:{vX+3}]')
    a(f'ds_write_b128 v{vT16}, v[{vX}:{vX+3}] offset:8192')
    a('s_cmp_lg_u32 s52, 0')
    a('s_cbranch_scc1 L_slow_go')
    a('s_cmp_eq_u64 s[76:77], 0')
    a('s_cbranch_scc1 L_slow_hi')
    a('s_ff1_i32_b64 s57, s[76:77]')
    a('s_bitset0_b64 s[76:77], s57')
    a('s_branch L_slow_ld')
    a.label('L_slow_hi')
    a('s_ff1_i32_b64 s57, s[78:79]')
    a('s_bitset0_b64 s[78:79], s57')
    a('s_add_u32 s57, s57, 64')
    a.label('L_slow_ld')
    srd(a, 12, 26, E * 4)
    a(f's_mul_i32 s58, s57, {CH*4}')
    a(f's_mov_b32 s59, {CH//8}')
    a(f's_cmp_eq_u32 s57, {P-1}')
    a(f's_cselect_b32 s59, {(E-(P-1)*CH)//8}, s59')
    edge_loads(a, 's58')
    a('s_waitcnt vmcnt(0)')
    entries(a, vPE)
    a('v_cmp_gt_u32 s[54:55], s59, v0')
    for j in range(8):
        a(f'v_and_b32 v1, 0xff, v{vA1+8+j}')
        a('v_cmp_eq_u32 vcc, s2, v1')
        a('s_and_b64 vcc, vcc, s[54:55]')
        a('s_nop 1')
        a(f'v_cndmask_b32 v{vPE+j}, 0, v{vPE+j}, vcc')
    a.label('L_slow_go')
    for i in range(4): a(f'v_mov_b32 v{vS+i}, s{76+i}')
    a(f'v_cmp_gt_u32 vcc, 7, v0')
    a('s_and_saveexec_b64 s[54:55], vcc')
    for i in range(4): a(f'v_mov_b32 v{vX+i}, 0')
    a(f'ds_write_b128 v{vT16}, v[{vX}:{vX+3}] offset:{L_C}')
    a(f'ds_write_b128 v{vZ}, v[{vS}:{vS+3}] offset:{L_RS}')
    a('s_mov_b64 exec, -1')
    a('s_waitcnt lgkmcnt(0)')
    a('s_barrier')
    a('s_branch L_place')
    return a

HDR = open('cdna_kernels/%s.s.ref' % NAME).read().split('; Override')[0]
def build(opt):
    a = kern(opt)
    for e in check(a.lines, 'k'): print('HAZARD', e)
    t = HDR + f'; @launch grid=(256,1,1) block=(512,1,1) lds={LDS}\n'
    t += '.amdgcn_target "amdgcn-amd-amdhsa--gfx950"\n.text\n'
    t += f'.globl {NAME}_kernel\n.p2align 8\n.type {NAME}_kernel,@function\n' + a.text()
    t += f'''.section .rodata,"a"
.p2align 6
.amdhsa_kernel {NAME}_kernel
  .amdhsa_next_free_vgpr {NV}
  .amdhsa_next_free_sgpr 100
  .amdhsa_accum_offset {(NV+3)//4*4}
  .amdhsa_group_segment_fixed_size 0
  .amdhsa_kernarg_size 64
  .amdhsa_user_sgpr_count 2
  .amdhsa_user_sgpr_kernarg_segment_ptr 1
  .amdhsa_system_sgpr_workgroup_id_x 1
.end_amdhsa_kernel
'''
    return t
if __name__ == '__main__':
    out = sys.argv[1] if len(sys.argv) > 1 else f'cdna_kernels/{NAME}.s'
    opt = dict(kv.split('=', 1) for kv in sys.argv[2:])
    open(out, 'w').write(build(opt))
```

```python
import sys
sys.path.insert(0, 'gen')
from asmlib import Asm, check
N = 25000; E = 400000; XB = N * 256
CH = 3128; P = 128
NAME = 'standalone__kernel_systems_refs_featgraph__graph'
L_LIST = 0; L_PC = 16384; L_C = 17408; LB = 18432
L_SLOW = L_C + 96; L_OVF = L_C + 100; L_CNT = L_C + 128; L_TAGS = L_C + 256; L_TAG = L_C + 104; L_RS = L_C + 112
L_WQ = LB; L_WV = LB + 32768; L_XO = LB + 65536; L_QS = LB + 98304
LDS = LB + 131072
CAP = 384
vGO = 4; vA1A = 8; vTRA = 12; vKEY = 20; vLA = 21; vZ = 22; vT16 = 23; vRB = 24
vN = 28; vG = 29; vLN = 30; vTMP = 31
vACC = 32; vQB = 64; vWV = 196; vA1 = 96; vT = 128; vS = 160; vE = 168; vB = 184; vAD = 188
vPE = 228; vRK = 112; vCA = 120; vTB = 144; vX = 236; vPF = 251
NV = 252
sM = 60

def srd(a, d, lo, nrec, add=None):
    if add is None:
        a(f's_mov_b32 s{d}, s{lo}')
        a(f's_and_b32 s{d+1}, s{lo+1}, 0xffff')
    else:
        a(f's_add_u32 s{d}, s{lo}, {add}')
        a(f's_addc_u32 s{d+1}, s{lo+1}, 0')
        a(f's_and_b32 s{d+1}, s{d+1}, 0xffff')
    a(f's_mov_b32 s{d+2}, {nrec}')
    a(f's_mov_b32 s{d+3}, 0x20000')

def mf(d, A, B, C): return f'v_mfma_f32_16x16x32_bf16 v[{d}:{d+3}], v[{A}:{A+3}], v[{B}:{B+3}], {C}'

def edge_loads(a, soff):
    a(f'v_lshlrev_b32 v{vX}, 5, v0')
    a(f'buffer_load_dwordx4 v[{vA1+8}:{vA1+11}], v{vX}, s[20:23], {soff} offen')
    a(f'buffer_load_dwordx4 v[{vA1+12}:{vA1+15}], v{vX}, s[20:23], {soff} offen offset:16')
    a(f'buffer_load_dwordx4 v[{vA1}:{vA1+3}], v{vX}, s[12:15], {soff} offen')
    a(f'buffer_load_dwordx4 v[{vA1+4}:{vA1+7}], v{vX}, s[12:15], {soff} offen offset:16')

def entries(a, dst):
    a(f'v_mov_b32 v{vX+1}, 0x81')
    for j in range(8):
        a(f'v_cmp_le_u32 s[{sM+2*j}:{sM+2*j+1}], s41, v{vA1+j}')
    for j in range(8):
        s, d = vA1 + j, vA1 + 8 + j
        a(f'v_lshrrev_b32 v{vX+2}, 4, v{d}')
        a(f'v_and_b32 v{vX+2}, 0x70, v{vX+2}')
        a(f'v_lshl_or_b32 v{dst+j}, v{s}, 8, v{vX+2}')
        a(f'v_lshrrev_b32 v{vX+2}, 11, v{d}')
        a(f'v_cndmask_b32 v{vX+3}, 1, v{vX+1}, s[{sM+2*j}:{sM+2*j+1}]')
        a(f'v_add3_u32 v{dst+j}, v{dst+j}, v{vX+2}, v{vX+3}')

def issue(a, b, fill=None):
    for j in range(8):
        if j == 0: a(f's_add_u32 m0, s42, {8192*b}')
        else: a('s_add_u32 m0, m0, 1024')
        a(f'v_and_or_b32 v{vAD+j}, v{vE+8*b+j}, s40, v{vGO+(j&3)}')
        a(f'buffer_load_dwordx4 v{vAD+j}, s[4:7], 0 offen lds')
        if fill: fill()

def eread(a, b, off):
    a(f'ds_read_b128 v[{vE+8*b}:{vE+8*b+3}], v{vLA} offset:{off}')
    a(f'ds_read_b128 v[{vE+8*b+4}:{vE+8*b+7}], v{vLA} offset:{off+16}')

def gemm4(a, A, addr, offs, D):
    order = [(T, s) for T in range(4) for s in range(4)]
    def rd(i):
        T, s = order[i]
        r = vA1 + 4 * i
        a(f'ds_read_b128 v[{r}:{r+3}], v{addr+s} offset:{offs(T)}')
    for i in range(12): rd(i)
    for i, (T, s) in enumerate(order):
        a(f's_waitcnt lgkmcnt({min(15, i+11) - i})')
        r = vA1 + 4 * i
        for h in range(2):
            d = D + 4 * (2 * T + h)
            a(mf(d, A + 16 * h + 4 * s, r, '0' if s == 0 else f'v[{d}:{d+3}]'))
        if i + 12 < 16: rd(i + 12)

def body(a, b, opt):
    tr = lambda k: f'ds_read_b64_tr_b16 v[{vT+2*k}:{vT+2*k+1}], v{vTRA+(k>>1)} offset:{8192*b+4096*(k&1)}'
    a('s_cmp_eq_u32 s53, 1')
    a(f's_cbranch_scc1 W0_{b}')
    a('s_waitcnt vmcnt(8)')
    a(f's_branch W1_{b}')
    a.label(f'W0_{b}')
    a('s_waitcnt vmcnt(0)')
    a.label(f'W1_{b}')
    for bb in range(2):
        for s in range(4):
            r = vA1 + 16 * bb + 4 * s
            a(f'ds_read_b128 v[{r}:{r+3}], v{vA1A+s} offset:{8192*b+4096*bb}')
    for j in range(8):
        a(f'v_cmp_eq_u32_sdwa s[{sM+2*j}:{sM+2*j+1}], v{vE+8*b+j}, v{vKEY} src0_sel:BYTE_0 src1_sel:DWORD')
    eread(a, b, 256 + 128 * b)
    for k in range(5): a(tr(k))
    a('s_waitcnt lgkmcnt(11)')
    for s in range(4): a(mf(vS, vA1 + 4 * s, vQB + 4 * s, '0' if s == 0 else f'v[{vS}:{vS+3}]'))
    for k in range(5, 9): a(tr(k))
    a('s_waitcnt lgkmcnt(11)')
    for s in range(4): a(mf(vS + 4, vA1 + 16 + 4 * s, vQB + 4 * s, '0' if s == 0 else f'v[{vS+4}:{vS+7}]'))
    for k in range(9, 13): a(tr(k))
    a('s_waitcnt lgkmcnt(11)')
    for k in range(13, 16): a(tr(k))
    if b == 1: a(f'v_add_u32 v{vLA}, 256, v{vLA}')
    for j in range(4): a(f'v_exp_f32 v{vS+j}, v{vS+j}')
    sig = [f'v_exp_f32 v{vS+j}, v{vS+j}' for j in range(4, 8)]
    sig += [f'v_add_f32 v{vS+j}, 1.0, v{vS+j}' for j in range(8)]
    sig += [f'v_rcp_f32 v{vS+j}, v{vS+j}' for j in range(8)]
    sig += [f'v_cndmask_b32 v{vS+j}, 0, v{vS+j}, s[{sM+2*j}:{sM+2*j+1}]' for j in range(8)]
    sig += [f'v_cvt_pk_bf16_f32 v{vB+u}, v{vS+2*u}, v{vS+2*u+1}' for u in range(4)]
    a('s_cmp_lt_u32 s53, 3')
    a(f's_cbranch_scc1 NI_{b}')
    a('s_waitcnt lgkmcnt(0)')
    it = iter(sig)
    def fill():
        for _ in range(3):
            x = next(it, None)
            if x: a(x)
    issue(a, b, fill)
    for x in it: a(x)
    a(f's_branch DI_{b}')
    a.label(f'NI_{b}')
    a('s_nop 1')
    for x in sig: a(x)
    a('s_waitcnt lgkmcnt(0)')
    a.label(f'DI_{b}')
    a('s_sub_u32 s53, s53, 1')
    a('s_cmp_eq_u32 s53, 0')
    for t in range(8):
        a(mf(vACC + 4 * t, vT + 4 * t, vB, f'v[{vACC+4*t}:{vACC+4*t+3}]'))
    a('s_cbranch_scc1 L_done')

def kern(opt):
    a = Asm()
    DG = opt.get('diag'); H = int(opt.get('H', 12544)); PFS = int(opt.get('pfs', 128)); PFN = int(opt.get('pfn', H))
    TMO = int(opt.get('tmo', 4000)); NS = int(opt.get('ns', 0))
    if NS: H = 1 << 20
    def stamp(i):
        if DG: a(f's_memrealtime s[{80+2*i}:{81+2*i}]')
    a.label(f'{NAME}_kernel')
    a('s_cmp_ge_u32 s2, 256')
    a('s_cbranch_scc1 L_end')
    a('s_load_dwordx16 s[24:39], s[0:1], 0')
    stamp(0)
    a('v_lshrrev_b32 v1, 6, v0')
    a(f'v_lshlrev_b32 v{vT16}, 4, v0')
    a('v_readfirstlane_b32 s3, v1')
    for i in range(4): a(f'v_mov_b32 v{vX+i}, 0')
    a(f'v_cmp_gt_u32 vcc, 64, v0')
    a('s_and_saveexec_b64 s[54:55], vcc')
    a(f'ds_write_b128 v{vT16}, v[{vX}:{vX+3}] offset:16384')
    a(f'v_cmpx_gt_u32 vcc, 9, v0')
    a(f'ds_write_b128 v{vT16}, v[{vX}:{vX+3}] offset:17408')
    a('s_mov_b64 exec, s[54:55]')
    a('s_lshr_b32 s56, s2, 3')
    if int(opt.get('rm', 0)):
        a('s_bfe_u32 s43, s2, 0x10002')
        a('s_and_b32 s57, s2, 3')
        a('s_lshl_b32 s58, s56, 2')
    else:
        a('s_bfe_u32 s43, s2, 0x10003')
        a('s_and_b32 s57, s2, 7')
        a('s_lshr_b32 s58, s2, 4')
        a('s_lshl_b32 s58, s58, 3')
    a('s_or_b32 s57, s57, s58')
    a(f'v_add_u32 v1, {L_QS}, v{vT16}')
    a('s_cmp_lg_u32 s43, 0')
    a('s_cbranch_scc1 L_nz')
    for u in range(4): a(f'ds_write_b128 v1, v[{vX}:{vX+3}] offset:{8192*u}')
    a.label('L_nz')
    a(f'v_and_b32 v{vN}, 15, v0')
    a(f'v_bfe_u32 v{vG}, v0, 4, 2')
    a(f'v_and_b32 v{vLN}, 63, v0')
    a(f'v_mov_b32 v{vZ}, 0')
    a(f's_mov_b32 s41, {H}')
    a('s_mov_b32 s40, 0x7fff00')
    a('s_lshl_b32 s42, s3, 14')
    a(f's_add_u32 s42, s42, {LB}')
    a(f's_mul_i32 s58, s57, {CH*4}')
    a(f's_mov_b32 s59, {CH//8}')
    a(f's_cmp_eq_u32 s57, {P-1}')
    a(f's_cselect_b32 s59, {(E-(P-1)*CH)//8}, s59')
    a('s_waitcnt lgkmcnt(0)')
    srd(a, 12, 26, E * 4); srd(a, 20, 28, E * 4)
    srd(a, 16, 36, 256)
    a('s_cmp_lg_u32 s43, 0')
    a('s_cbranch_scc1 L_noedge')
    a('v_cmp_gt_u32 vcc, s59, v0')
    a('s_and_saveexec_b64 s[54:55], vcc')
    a('s_cbranch_execz L_noedge0')
    edge_loads(a, 's58')
    srd(a, 8, 38, 16384)
    a('s_lshl_b32 s46, s57, 7')
    a(f'buffer_load_dwordx2 v[{vTB}:{vTB+1}], v{vZ}, s[8:11], s46 offen sc0 sc1')
    a.label('L_noedge0')
    a('s_mov_b64 exec, s[54:55]')
    a.label('L_noedge')
    srd(a, 4, 24, XB)
    a('s_cmp_lg_u32 s43, 0')
    a('s_cbranch_scc1 L_nob1')
    a('s_barrier')
    a.label('L_nob1')
    a('s_cmp_lt_u32 s3, 6')
    a('s_cbranch_scc1 L_nodma')
    a(f'v_lshlrev_b32 v1, 1, v{vG}')
    a(f'v_xor_b32 v1, v1, v{vN}')
    a(f'v_lshlrev_b32 v1, 4, v1')
    a('s_add_u32 s46, s3, s43')
    a('s_cmp_eq_u32 s46, 6')
    a('s_cbranch_scc1 L_nodma')
    a('s_cmp_eq_u32 s46, 8')
    a('s_cbranch_scc1 L_wdma')
    a(f'v_lshl_add_u32 v{vS}, v{vG}, 19, v1')
    a('s_lshl_b32 s47, s2, 8')
    a(f'v_add_u32 v{vS}, s47, v{vS}')
    for u in range(1, 4):
        a(f'v_add_u32 v{vS+u}, {(u*4<<19)-1024*u}, v{vS}')
        if u & 1: a(f'v_xor_b32 v{vS+u}, 128, v{vS+u}')
    a(f's_mov_b32 m0, {L_XO}')
    a('s_mov_b32 s46, 8')
    a.label('L_xl')
    for u in range(4):
        a(f'buffer_load_dwordx4 v{vS+u}, s[4:7], 0 offen offset:{1024*u} lds')
    for u in range(4):
        a(f'v_add_u32 v{vS+u}, 0x10000, v{vS+u}')
    a('s_add_u32 m0, m0, 4096')
    a('s_sub_u32 s46, s46, 1')
    a('s_cmp_lg_u32 s46, 0')
    a('s_cbranch_scc1 L_xl')
    a('s_cmp_eq_u32 s3, 6')
    a('s_cbranch_scc1 L_nodma')
    a.label('L_spin7')
    a(f'ds_read_b32 v2, v{vZ} offset:{L_CNT}')
    a('s_waitcnt lgkmcnt(0)')
    a('v_readfirstlane_b32 s50, v2')
    a(f's_cmp_lt_u32 s50, {int(opt.get("w7", 11))}')
    a('s_cbranch_scc1 L_spin7')
    a.label('L_wdma')
    a(f'v_lshl_add_u32 v2, v{vG}, 8, v1')
    a('v_xor_b32 v3, 128, v2')
    for wi, (lo, base) in enumerate(((30, L_WQ),)):
        srd(a, 8, lo, 32768)
        a('s_lshl_b32 s46, s56, 12')
        a('s_mov_b32 s47, 8')
        a.label(f'L_wl{wi}')
        a('s_and_b32 s46, s46, 0x7000')
        a(f's_add_u32 m0, s46, {base}')
        a('s_sub_u32 s47, s47, 1')
        for u in range(4):
            a(f'buffer_load_dwordx4 v{2+((u>>1) if wi == 0 else (u&1))}, s[8:11], s46 offen offset:{1024*u} lds')
        a('s_add_u32 s46, s46, 4096')
        a('s_cmp_lg_u32 s47, 0')
        a(f's_cbranch_scc1 L_wl{wi}')
    stamp(1)
    a('s_branch L_tagd')
    a.label('L_nodma')
    a('s_cmp_eq_u32 s43, 0')
    a('s_cbranch_scc1 L_prod')
    a('s_branch L_tag')
    a.label('L_prod')
    a('v_cmp_gt_u32 vcc, s59, v0')
    a('s_and_saveexec_b64 s[54:55], vcc')
    a('s_cbranch_execz L_binned')
    a('s_waitcnt vmcnt(3)')
    a('s_mov_b32 s46, 0x3fc')
    a(f'v_mov_b32 v1, 1')
    for j in range(8):
        a(f'v_lshlrev_b32 v{vCA+j}, 2, v{vA1+8+j}')
        a(f'v_and_b32 v{vCA+j}, s46, v{vCA+j}')
        a(f'ds_add_rtn_u32 v{vRK+j}, v{vCA+j}, v1 offset:{L_PC}')
    a('s_waitcnt vmcnt(1)')
    entries(a, vPE)
    a('s_mov_b64 s[76:77], exec')
    a('s_waitcnt vmcnt(0)')
    a(f'v_readfirstlane_b32 s48, v{vTB}')
    a(f'v_readfirstlane_b32 s49, v{vTB+1}')
    a('s_lshr_b32 s48, s48, 23')
    a('s_lshr_b32 s49, s49, 26')
    a('s_lshl_b32 s49, s49, 9')
    a('s_or_b32 s48, s48, s49')
    a('s_add_u32 s48, s48, 1')
    a('s_bitset1_b32 s48, 15')
    a('s_lshl_b32 s44, s48, 23')
    a('s_lshr_b32 s45, s48, 6')
    a('s_lshl_b32 s45, s45, 23')
    a('s_xor_b32 s52, s44, 0xff800000')
    a('s_xor_b32 s53, s45, 0xff800000')
    a('s_cmp_lg_u32 s3, 0')
    a('s_cbranch_scc1 L_nopub')
    a('s_lshl_b32 s49, s57, 1')
    a('v_mov_b32 v2, s48')
    a('s_mov_b64 exec, 1')
    a(f'buffer_store_short v2, v{vZ}, s[16:19], s49 offen sc0 sc1')
    a('s_mov_b64 exec, s[76:77]')
    a.label('L_nopub')
    a(f's_mov_b32 s46, {L_QS}')
    for j in range(8):
        a(f'v_lshl_add_u32 v{vCA+j}, v{vCA+j}, 5, s46')
    for j in range(8):
        if j == 0: a(f's_waitcnt lgkmcnt(0)')
        a(f'v_lshl_add_u32 v{vCA+j}, v{vRK+j}, 2, v{vCA+j}')
        a(f'v_cmpx_gt_u32 vcc, 32, v{vRK+j}')
        a(f'ds_write_b32 v{vCA+j}, v{vPE+j}')
        a('s_mov_b64 exec, s[76:77]')
    a(f'v_max3_u32 v2, v{vRK}, v{vRK+1}, v{vRK+2}')
    a(f'v_max3_u32 v2, v2, v{vRK+3}, v{vRK+4}')
    a(f'v_max3_u32 v2, v2, v{vRK+5}, v{vRK+6}')
    a(f'v_max_u32 v2, v2, v{vRK+7}')
    a(f'v_cmpx_lt_u32 vcc, 31, v2')
    a(f'ds_write_b32 v{vZ}, v1 offset:{L_OVF}')
    a.label('L_binned')
    a('s_mov_b64 exec, -1')
    a.label('L_tag')
    stamp(1)
    a.label('L_tagd')
    def slotld():
        a(f'buffer_load_dwordx4 v[{vPE}:{vPE+3}], v{vT16}, s[8:11], 0 offen sc0 sc1')
        a(f'buffer_load_dwordx4 v[{vPE+4}:{vPE+7}], v{vX+5}, s[8:11], 0 offen sc0 sc1')
    a('s_lshl_b32 s46, s2, 14')
    srd(a, 8, 38, 16384, add='s46')
    a(f'v_add_u32 v{vX+5}, 0x2000, v{vT16}')
    a('s_cmp_lg_u32 s43, 0')
    a('s_cbranch_scc1 L_copied')
    a('s_cmp_eq_u32 s3, 7')
    a('s_cbranch_scc1 L_copied')
    a('v_mov_b32 v1, 1')
    a('s_mov_b64 exec, 1')
    a('s_waitcnt lgkmcnt(0)')
    a(f'ds_add_u32 v{vZ}, v1 offset:{L_CNT}')
    a('s_mov_b64 exec, -1')
    a('s_cmp_ge_u32 s3, 4')
    a('s_cbranch_scc1 L_copied')
    a(f'v_add_u32 v{vX+4}, {L_QS}, v{vT16}')
    srd(a, 12, 38, 256 * 16384)
    a(f'v_lshrrev_b32 v{vX}, 3, v0')
    a(f'v_and_b32 v{vX+1}, 7, v0')
    a(f'v_lshlrev_b32 v{vX}, 14, v{vX}')
    a(f'v_lshl_add_u32 v{vX}, v{vX+1}, 4, v{vX}')
    a.label('L_spin')
    a(f'ds_read_b32 v1, v{vZ} offset:{L_CNT}')
    a('s_waitcnt lgkmcnt(0)')
    a('v_readfirstlane_b32 s50, v1')
    a('s_cmp_lt_u32 s50, 7')
    a('s_cbranch_scc1 L_spin')
    a(f'ds_read_b32 v1, v{vZ} offset:{L_OVF}')
    for u in range(8): a(f'ds_read_b128 v[{vT+4*u}:{vT+4*u+3}], v{vX+4} offset:{4096*u}')
    a('s_waitcnt lgkmcnt(8)')
    a('v_readfirstlane_b32 s50, v1')
    a('s_cmp_lg_u32 s50, 0')
    a('s_cbranch_scc1 L_ovf')
    a.label('L_copy')
    a('s_lshl_b32 s50, s57, 7')
    for u in range(8):
        a(f's_waitcnt lgkmcnt({7-u})')
        for k in range(4): a(f'v_xor_b32 v{vT+4*u+k}, s{(44,45,52,53)[k]}, v{vT+4*u+k}')
        a(f'buffer_store_dwordx4 v[{vT+4*u}:{vT+4*u+3}], v{vX}, s[12:15], s50 offen sc0 sc1')
        if u < 7: a(f's_add_u32 s50, s50, {1<<19}')
    a('v_mov_b32 v1, 1')
    a('s_mov_b64 exec, 1')
    a(f'ds_add_u32 v{vZ}, v1 offset:{L_CNT}')
    a('s_mov_b64 exec, -1')
    a.label('L_copied')
    stamp(2)
    for i in range(4): a(f'v_mov_b32 v{vX+i}, 0')
    a(f'ds_write_b128 v{vT16}, v[{vX}:{vX+3}]')
    a(f'ds_write_b128 v{vT16}, v[{vX}:{vX+3}] offset:8192')
    a(f'v_and_b32 v1, 7, v{vN}')
    a(f'v_lshlrev_b32 v1, 1, v1')
    a(f'v_xor_b32 v2, v1, v{vG}')
    a(f'v_lshlrev_b32 v2, 4, v2')
    a(f'v_lshl_add_u32 v3, v{vN}, 8, v2')
    a(f'v_add_u32 v{vRB}, {L_XO}, v3')
    a(f'v_and_b32 v3, 3, v{vN}')
    a(f'v_lshrrev_b32 v{vTMP}, 2, v{vN}')
    a(f'v_lshl_add_u32 v{vA1A}, v3, 2, v{vTMP}')
    a(f'v_lshl_add_u32 v{vA1A}, v{vA1A}, 8, v2')
    a(f'v_add_u32 v{vA1A}, s42, v{vA1A}')
    for s in range(1, 4):
        a(f'v_xor_b32 v{vRB+s}, {s<<6}, v{vRB}')
        a(f'v_xor_b32 v{vA1A+s}, {s<<6}, v{vA1A}')
    a(f'v_and_b32 v2, 1, v{vG}')
    a(f'v_lshl_or_b32 v2, v2, 2, v{vTMP}')
    a(f'v_lshlrev_b32 v2, 5, v2')
    a(f'v_lshl_or_b32 v2, v3, 3, v2')
    a(f'v_lshl_add_u32 v{vTRA}, v{vTMP}, 2, v{vG}')
    a(f'v_lshl_add_u32 v{vTRA}, v{vTRA}, 8, v2')
    a(f'v_add_u32 v{vTRA}, s42, v{vTRA}')
    for t in range(1, 8): a(f'v_xor_b32 v{vTRA+t}, {t<<5}, v{vTRA}')
    a(f'v_and_b32 v2, 0xe0, v2')
    a(f'v_lshlrev_b32 v3, 4, v3')
    a(f'v_xor_b32 v2, v2, v3')
    a('s_and_b32 s50, s3, 3')
    a('s_lshl_b32 s50, s50, 6')
    a(f'v_xor_b32 v2, s50, v2')
    a(f'v_lshl_add_u32 v{vX+6}, v{vG}, 3, v{vTMP}')
    a(f'v_lshl_add_u32 v{vX+6}, v{vX+6}, 8, v2')
    a(f'v_add_u32 v{vX+6}, {L_WQ}, v{vX+6}')
    a(f'v_lshl_add_u32 v{vX+7}, v{vG}, 2, v{vTMP}')
    a(f'v_lshl_add_u32 v{vX+7}, v{vX+7}, 8, v2')
    a(f'v_add_u32 v{vX+7}, {L_WV}, v{vX+7}')
    a(f'v_and_b32 v2, 1, v{vG}')
    a(f'v_lshlrev_b32 v2, 3, v2')
    a(f'v_xor_b32 v2, v2, v{vN}')
    a(f'v_lshlrev_b32 v{vGO}, 4, v2')
    for j in range(1, 4): a(f'v_xor_b32 v{vGO+j}, {j<<5}, v{vGO}')
    a('s_lshl_b32 s51, s3, 4')
    a('s_add_u32 s51, s51, 1')
    a(f'v_add_u32 v{vKEY}, s51, v{vN}')
    a('s_lshr_b32 s51, s3, 2')
    a('s_lshl_b32 s51, s51, 14')
    for s in range(4): a(f'v_add_u32 v{vX+8+s}, s51, v{vRB+s}')
    a(f'v_xor_b32 v1, s50, v{vX+8}')
    a(f'v_add_u32 v1, {L_QS-L_XO}, v1')
    a('s_cmp_lt_u32 s3, 6')
    a('s_cbranch_scc1 L_w4')
    a('s_waitcnt vmcnt(0)')
    a.label('L_w4')
    a('s_waitcnt lgkmcnt(0)')
    a('s_barrier')
    a('s_cmp_lg_u32 s3, 0')
    a('s_cbranch_scc1 L_nt1')
    a(f'v_lshlrev_b32 v2, 2, v0')
    a(f'buffer_load_dword v3, v2, s[16:19], 0 offen sc0 sc1')
    a.label('L_nt1')
    srd(a, 12, 32, 32768)
    a('s_lshl_b32 s46, s3, 12')
    a(f's_add_u32 m0, s46, {L_WV}')
    a(f'v_lshlrev_b32 v{vS}, 1, v{vG}')
    a(f'v_xor_b32 v{vS}, v{vS}, v{vN}')
    a(f'v_lshlrev_b32 v{vS}, 4, v{vS}')
    a(f'v_lshl_add_u32 v{vS}, v{vG}, 8, v{vS}')
    a(f'v_xor_b32 v{vS+1}, 128, v{vS}')
    for u in range(4):
        a(f'buffer_load_dwordx4 v{vS+(u&1)}, s[12:15], s46 offen offset:{1024*u} lds')
    if PFN > 0:
        srd(a, 12, 24, PFN * 256)
        a('s_lshl_b32 s47, s56, 3')
        a('s_add_u32 s46, s3, s47')
        a(f's_mul_i32 s46, s46, {64*PFS}')
        a(f'v_mul_u32_u24 v{vS+2}, {PFS}, v{vLN}')
        a(f'v_add_u32 v{vS+2}, s46, v{vS+2}')
        a(f'v_add_u32 v{vS+3}, {256*64*PFS}, v{vS+2}')
        for u in range(2):
            a(f'buffer_load_dword v{vPF}, v{vS+2+u}, s[12:15], 0 offen')
    else:
        slotld()
    for h in range(2):
        for k in range(8):
            r = vQB + 16 * h + 2 * k
            a(f'ds_read_b64_tr_b16 v[{r}:{r+1}], v{vX+6} offset:{8192*(k>>1)+1024*(k&1)+8*h}')
        a('s_waitcnt lgkmcnt(3)')
    gemm4(a, vQB, vX + 8, lambda T: 4096 * T, vACC)
    a('s_nop 4')
    a('s_mov_b32 s51, 0xbe0293ee')
    for T in range(4):
        for r in range(8): a(f'v_mul_f32 v{vACC+8*T+r}, s51, v{vACC+8*T+r}')
        for r in range(4): a(f'v_cvt_pk_bf16_f32 v{vA1+4*T+r}, v{vACC+8*T+2*r}, v{vACC+8*T+2*r+1}')
        a(f'ds_write_b128 v1, v[{vA1+4*T}:{vA1+4*T+3}] offset:{4096*T}')
    for i in range(32): a(f'v_mov_b32 v{vACC+i}, 0')
    a('s_lshl_b32 s51, s3, 12')
    a(f's_add_u32 s51, s51, {L_QS-L_XO}')
    for s in range(4): a(f'v_add_u32 v{vX+s}, s51, v{vRB+s}')
    a('s_waitcnt vmcnt(2)')
    a('s_cmp_lg_u32 s3, 0')
    a('s_cbranch_scc1 L_nt2')
    a(f's_mov_b32 s50, {TMO}')
    a('s_mov_b32 s51, 0x80008000')
    a.label('L_tp')
    a(f'v_and_b32 v1, s51, v3')
    a('v_cmp_ne_u32 vcc, s51, v1')
    a('s_cbranch_vccz L_tp2')
    a(f'buffer_load_dword v3, v2, s[16:19], 0 offen sc0 sc1')
    a('s_waitcnt vmcnt(0)')
    a('s_sub_u32 s50, s50, 1')
    a('s_cbranch_scc0 L_tp')
    a.label('L_tp2')
    a(f'ds_write_b32 v2, v3 offset:{L_TAGS}')
    a.label('L_nt2')
    srd(a, 16, 34, XB)
    a(f'v_lshrrev_b32 v1, 2, v0')
    a(f'v_and_b32 v1, 0x7e, v1')
    a('s_waitcnt lgkmcnt(0)')
    a('s_barrier')
    a(f'ds_read_u16 v2, v1 offset:{L_TAGS}')
    a(f'ds_read_u16 v3, v1 offset:{L_TAGS+128}')
    for s in range(4): a(f'ds_read_b128 v[{vQB+4*s}:{vQB+4*s+3}], v{vX+s}')
    if PFN > 0:
        slotld()
    stamp(3)
    for h in range(2):
        for k in range(8):
            r = vWV + 16 * h + 2 * k
            a(f'ds_read_b64_tr_b16 v[{r}:{r+1}], v{vX+7} offset:{8192*(k>>1)+4096*(k&1)+8*h}')
        if h == 0: a('s_waitcnt lgkmcnt(7)')
    a(f's_mov_b32 s50, {TMO}')
    a('s_mov_b32 s51, 0xff800000')
    for h in range(2):
        a(f'v_lshlrev_b32 v{vTB+4*h}, 23, v{2+h}')
        a(f'v_lshrrev_b32 v{vTB+4*h+1}, 6, v{2+h}')
        a(f'v_lshlrev_b32 v{vTB+4*h+1}, 23, v{vTB+4*h+1}')
        a(f'v_xor_b32 v{vTB+4*h+2}, s51, v{vTB+4*h}')
        a(f'v_xor_b32 v{vTB+4*h+3}, s51, v{vTB+4*h+1}')
    a('v_and_b32 v2, v2, v3')
    a('v_cmp_gt_u32 vcc, 0x8000, v2')
    a('s_cbranch_vccnz L_fail')
    a('s_mov_b32 s51, 0x800000')
    a.label('L_poll')
    a('s_waitcnt vmcnt(0)')
    for j in range(8): a(f'v_xor_b32 v{vRK+j}, v{vTB+j}, v{vPE+j}')
    a(f'v_or3_b32 v1, v{vRK}, v{vRK+1}, v{vRK+2}')
    a(f'v_or3_b32 v2, v{vRK+4}, v{vRK+5}, v{vRK+6}')
    a(f'v_or3_b32 v1, v1, v{vRK+3}, v{vRK+7}')
    a(f'v_or_b32 v1, v1, v2')
    a('v_cmpx_le_u32 vcc, s51, v1')
    a('s_cbranch_execz L_got')
    a(f'buffer_load_dwordx4 v[{vPE}:{vPE+3}], v{vT16}, s[8:11], 0 offen sc0 sc1')
    a(f'buffer_load_dwordx4 v[{vPE+4}:{vPE+7}], v{vX+5}, s[8:11], 0 offen sc0 sc1')
    a('s_sub_u32 s50, s50, 1')
    a('s_cbranch_scc0 L_poll')
    a('s_mov_b64 exec, -1')
    a.label('L_fail')
    a('s_waitcnt vmcnt(0)')
    a('s_lshl_b32 s50, s3, 3')
    a('s_lshl_b32 s50, 0xff, s50')
    a('s_and_b32 s51, s3, 4')
    a('v_mov_b32 v1, s50')
    a('v_mov_b32 v2, s51')
    a(f'ds_or_b32 v2, v1 offset:{L_RS}')
    a(f'ds_or_b32 v2, v1 offset:{L_RS+8}')
    for j in range(8): a(f'v_mov_b32 v{vRK+j}, 0')
    a.label('L_got')
    a('s_mov_b64 exec, -1')
    stamp(4)
    a(f'v_cmp_eq_u32 vcc, 0x70, v{vRK}')
    a(f'v_cmp_eq_u32 s[50:51], v{vRK+4}, v{vRK+5}')
    a.lines.pop()
    a(f'v_mov_b32 v1, 0x70')
    a(f'v_cmp_eq_u32 s[50:51], v1, v{vRK+4}')
    for j in range(8): a(f'v_mov_b32 v{vPE+j}, v{vRK+j}')
    a('s_or_b64 s[54:55], vcc, s[50:51]')
    a('s_cbranch_scc1 L_mark')
    if NS:
        a.label('L_place')
        a('v_mov_b32 v1, 1')
        for j in range(8):
            a(f'v_lshrrev_b32 v{vCA+j}, 2, v{vPE+j}')
            a(f'v_and_b32 v{vCA+j}, 0x1c, v{vCA+j}')
            a(f'v_mov_b32 v{vRK+j}, -1')
            a(f'v_cmpx_ne_u32 vcc, 0, v{vPE+j}')
            a(f'ds_add_rtn_u32 v{vRK+j}, v{vCA+j}, v1 offset:{L_C+32}')
            a('s_mov_b64 exec, -1')
        for j in range(8): a(f'v_lshlrev_b32 v{vTB+j}, 9, v{vCA+j}')
        a('s_lshl_b32 s50, s3, 2')
        a('v_mov_b32 v3, s50')
        a(f's_mov_b32 s51, {CAP}')
        for j in range(8):
            if j == 0: a(f's_waitcnt lgkmcnt(0)')
            a(f'v_lshl_add_u32 v{vTB+j}, v{vRK+j}, 2, v{vTB+j}')
            a(f'v_cmpx_gt_u32 vcc, s51, v{vRK+j}')
            a(f'ds_write_b32 v{vTB+j}, v{vPE+j}')
            a(f'v_mov_b32 v{vPE+j}, 0')
            a('s_mov_b64 exec, -1')
    else:
        a.label('L_place')
        a('v_mov_b32 v1, 1')
        for j in range(8):
            a(f'v_lshrrev_b32 v{vCA+j}, 2, v{vPE+j}')
            a(f'v_and_b32 v{vCA+j}, 0x3c, v{vCA+j}')
            a(f'v_mov_b32 v{vRK+j}, -1')
            a(f'v_cmpx_ne_u32 vcc, 0, v{vPE+j}')
            a(f'ds_add_rtn_u32 v{vRK+j}, v{vCA+j}, v1 offset:{L_C+32}')
            a('s_mov_b64 exec, -1')
        for j in range(8):
            a(f'v_and_b32 v{vTB+j}, 0x1c, v{vCA+j}')
            a(f'v_lshlrev_b32 v{vTB+j}, 9, v{vTB+j}')
        a('s_lshl_b32 s50, s3, 2')
        a('v_mov_b32 v3, s50')
        a(f's_mov_b32 s51, {CAP}')
        a('s_waitcnt lgkmcnt(0)')
        a('s_barrier')
        for j in range(8): a(f'ds_read_b32 v{vCA+j}, v{vCA+j} offset:{L_C}')
        a(f'ds_read2_b32 v[{vX}:{vX+1}], v3 offset0:0 offset1:8') ; a.lines.pop()
        a(f'ds_read_b32 v{vX}, v3 offset:{L_C+32}')
        a(f'ds_read_b32 v{vX+1}, v3 offset:{L_C+64}')
        for j in range(8):
            if j == 0: a(f's_waitcnt lgkmcnt(0)')
            a(f'v_add_u32 v{vRK+j}, v{vRK+j}, v{vCA+j}')
            a(f'v_lshl_add_u32 v{vTB+j}, v{vRK+j}, 2, v{vTB+j}')
            a(f'v_and_b32 v{vCA+j}, 0xffffff7f, v{vPE+j}')
            a(f'v_cmpx_gt_u32 vcc, s51, v{vRK+j}')
            a(f'ds_write_b32 v{vTB+j}, v{vCA+j}')
            a(f'v_mov_b32 v{vPE+j}, 0')
            a('s_mov_b64 exec, -1')
    a(f'v_or3_b32 v1, v{vPE}, v{vPE+1}, v{vPE+2}')
    a(f'v_or3_b32 v1, v1, v{vPE+3}, v{vPE+4}')
    a(f'v_or3_b32 v1, v1, v{vPE+5}, v{vPE+6}')
    a(f'v_or_b32 v1, v1, v{vPE+7}')
    a('v_cmpx_ne_u32 vcc, 0, v1')
    a(f'ds_write_b32 v{vZ}, v1 offset:{L_SLOW}')
    a('s_mov_b64 exec, -1')
    if not NS: a(f'v_add_u32 v{vX}, v{vX}, v{vX+1}')
    a('s_lshl_b32 s50, s3, 11')
    a(f'v_lshl_add_u32 v{vLA}, v{vG}, 5, s50')
    if not NS: a(f'v_readfirstlane_b32 s53, v{vX}')
    a('s_waitcnt lgkmcnt(0)')
    a('s_barrier')
    if NS: a(f'ds_read_b32 v2, v3 offset:{L_C+32}')
    eread(a, 0, 0)
    eread(a, 1, 128)
    a(f'ds_read_b32 v1, v{vZ} offset:{L_SLOW}')
    a(f'ds_read_b128 v[{vX}:{vX+3}], v{vZ} offset:{L_RS}')
    if NS:
        a('s_waitcnt lgkmcnt(6)')
        a('v_readfirstlane_b32 s53, v2')
    a('s_min_u32 s53, s53, s51')
    a('s_add_u32 s53, s53, 31')
    a('s_lshr_b32 s53, s53, 5')
    stamp(5)
    a('s_cmp_eq_u32 s53, 0')
    a('s_cbranch_scc1 L_noi')
    a('s_waitcnt lgkmcnt(4)')
    issue(a, 0)
    a('s_cmp_eq_u32 s53, 1')
    a('s_cbranch_scc1 L_noi')
    a('s_waitcnt lgkmcnt(2)')
    issue(a, 1)
    a.label('L_noi')
    a('s_waitcnt lgkmcnt(0)')
    a('v_readfirstlane_b32 s52, v1')
    for i in range(4): a(f'v_readfirstlane_b32 s{76+i}, v{vX+i}')
    a('s_cmp_eq_u32 s53, 0')
    a('s_cbranch_scc1 L_done')
    a.label('L_loop')
    body(a, 0, opt)
    body(a, 1, opt)
    a('s_branch L_loop')
    a.label('L_done')
    stamp(6)
    a('s_or_b64 s[54:55], s[76:77], s[78:79]')
    a('s_or_b32 s54, s54, s55')
    a('s_or_b32 s54, s54, s52')
    a('s_cbranch_scc1 L_slow')
    a(f's_sub_u32 s50, s42, {L_XO}')
    a('s_lshr_b32 s51, s3, 2')
    a('s_lshl_b32 s51, s51, 16')
    a(f's_add_u32 s51, s51, {(LB-L_XO)&0xffffffff}')
    for s in range(4):
        for r in range(4): a(f'v_cvt_pk_bf16_f32 v{vA1+4*s+r}, v{vACC+8*s+2*r}, v{vACC+8*s+2*r+1}')
        a(f'v_add_u32 v2, s50, v{vRB+s}')
        a(f'ds_write_b128 v2, v[{vA1+4*s}:{vA1+4*s+3}]')
        a(f'v_add_u32 v{vX+s}, s51, v{vRB+s}')
    a(f'v_lshlrev_b32 v1, 19, v{vN}')
    a(f'v_lshl_add_u32 v1, v{vG}, 4, v1')
    a('s_lshl_b32 s50, s2, 8')
    a('s_and_b32 s51, s3, 3')
    a('s_lshl_b32 s51, s51, 6')
    a('s_add_u32 s50, s50, s51')
    a('s_lshr_b32 s51, s3, 2')
    a('s_lshl_b32 s51, s51, 18')
    a('s_add_u32 s50, s50, s51')
    a('v_add_u32 v1, s50, v1')
    a('s_waitcnt lgkmcnt(0)')
    a('s_barrier')
    gemm4(a, vWV, vX, lambda T: 16384 * T, vACC)
    for T in range(4):
        if T == 3: a('s_nop 4')
        for r in range(4): a(f'v_cvt_pk_bf16_f32 v{vA1+4*T+r}, v{vACC+8*T+2*r}, v{vACC+8*T+2*r+1}')
        a(f'buffer_store_dwordx4 v[{vA1+4*T}:{vA1+4*T+3}], v1, s[16:19], 0 offen')
        if T < 3: a('v_add_u32 v1, 0x10000, v1')
    if DG:
        a('s_waitcnt vmcnt(0)')
        stamp(7)
        a('s_waitcnt lgkmcnt(0)')
        srd(a, 8, 38, 1 << 20, add=200 << 20)
        a('s_lshl_b32 s60, s2, 3')
        a('s_add_u32 s60, s60, s3')
        a('s_lshl_b32 s60, s60, 5')
        for i in range(8): a(f'v_mov_b32 v{16+i}, s{80+2*i}')
        a('v_mov_b32 v12, 0')
        a(f'v_cmpx_eq_u32 vcc, 0, v{vLN}')
        a('buffer_store_dwordx4 v[16:19], v12, s[8:11], s60 offen')
        a('buffer_store_dwordx4 v[20:23], v12, s[8:11], s60 offen offset:16')
    a.label('L_end')
    a('s_endpgm')
    a.label('L_ovf')
    a(f'v_lshrrev_b32 v1, 1, v0')
    a(f'v_and_b32 v1, 0xfc, v1')
    for u in range(8): a(f'ds_read_b32 v{vRK+u}, v1 offset:{L_PC+128*u}')
    a('s_waitcnt lgkmcnt(0)')
    for u in range(8):
        a(f'v_cmpx_lt_u32 vcc, 32, v{vRK+u}')
        a(f'v_mov_b32 v{vT+4*u}, 0x70')
        for k in range(1, 4): a(f'v_mov_b32 v{vT+4*u+k}, 0')
        a('s_mov_b64 exec, -1')
    a('s_branch L_copy')
    a.label('L_mark')
    a('v_lshrrev_b32 v1, 3, v0')
    a('v_lshlrev_b32_e64 v2, v1, 1')
    a('v_lshrrev_b32 v1, 3, v1')
    a('v_and_b32 v1, 4, v1')
    a('s_mov_b64 exec, vcc')
    a(f'ds_or_b32 v1, v2 offset:{L_RS}')
    a(f'v_mov_b32 v{vPE}, 0')
    a('s_mov_b64 exec, s[50:51]')
    a(f'ds_or_b32 v1, v2 offset:{L_RS+8}')
    a(f'v_mov_b32 v{vPE+4}, 0')
    a('s_mov_b64 exec, -1')
    a('s_branch L_place')
    a.label('L_slow')
    a('s_barrier')
    for i in range(4): a(f'v_mov_b32 v{vX+i}, 0')
    a(f'ds_write_b128 v{vT16}, v[{vX}:{vX+3}]')
    a(f'ds_write_b128 v{vT16}, v[{vX}:{vX+3}] offset:8192')
    a('s_cmp_lg_u32 s52, 0')
    a('s_cbranch_scc1 L_slow_go')
    a('s_cmp_eq_u64 s[76:77], 0')
    a('s_cbranch_scc1 L_slow_hi')
    a('s_ff1_i32_b64 s57, s[76:77]')
    a('s_bitset0_b64 s[76:77], s57')
    a('s_branch L_slow_ld')
    a.label('L_slow_hi')
    a('s_ff1_i32_b64 s57, s[78:79]')
    a('s_bitset0_b64 s[78:79], s57')
    a('s_add_u32 s57, s57, 64')
    a.label('L_slow_ld')
    srd(a, 12, 26, E * 4)
    a(f's_mul_i32 s58, s57, {CH*4}')
    a(f's_mov_b32 s59, {CH//8}')
    a(f's_cmp_eq_u32 s57, {P-1}')
    a(f's_cselect_b32 s59, {(E-(P-1)*CH)//8}, s59')
    edge_loads(a, 's58')
    a('s_waitcnt vmcnt(0)')
    entries(a, vPE)
    a('v_cmp_gt_u32 s[54:55], s59, v0')
    for j in range(8):
        a(f'v_and_b32 v1, 0xff, v{vA1+8+j}')
        a('v_cmp_eq_u32 vcc, s2, v1')
        a('s_and_b64 vcc, vcc, s[54:55]')
        a('s_nop 1')
        a(f'v_cndmask_b32 v{vPE+j}, 0, v{vPE+j}, vcc')
    a.label('L_slow_go')
    for i in range(4): a(f'v_mov_b32 v{vS+i}, s{76+i}')
    a(f'v_cmp_gt_u32 vcc, 7, v0')
    a('s_and_saveexec_b64 s[54:55], vcc')
    for i in range(4): a(f'v_mov_b32 v{vX+i}, 0')
    a(f'ds_write_b128 v{vT16}, v[{vX}:{vX+3}] offset:{L_C}')
    a(f'ds_write_b128 v{vZ}, v[{vS}:{vS+3}] offset:{L_RS}')
    a('s_mov_b64 exec, -1')
    a('s_waitcnt lgkmcnt(0)')
    a('s_barrier')
    a('s_branch L_place')
    return a

HDR = open('cdna_kernels/%s.s.ref' % NAME).read().split('; Override')[0]
def build(opt):
    a = kern(opt)
    for e in check(a.lines, 'k'): print('HAZARD', e)
    t = HDR + f'; @launch grid=(256,1,1) block=(512,1,1) lds={LDS}\n'
    t += '.amdgcn_target "amdgcn-amd-amdhsa--gfx950"\n.text\n'
    t += f'.globl {NAME}_kernel\n.p2align 8\n.type {NAME}_kernel,@function\n' + a.text()
    t += f'''.section .rodata,"a"
.p2align 6
.amdhsa_kernel {NAME}_kernel
  .amdhsa_next_free_vgpr {NV}
  .amdhsa_next_free_sgpr 100
  .amdhsa_accum_offset {(NV+3)//4*4}
  .amdhsa_group_segment_fixed_size 0
  .amdhsa_kernarg_size 64
  .amdhsa_user_sgpr_count 2
  .amdhsa_user_sgpr_kernarg_segment_ptr 1
  .amdhsa_system_sgpr_workgroup_id_x 1
.end_amdhsa_kernel
'''
    return t
if __name__ == '__main__':
    out = sys.argv[1] if len(sys.argv) > 1 else f'cdna_kernels/{NAME}.s'
    opt = dict(kv.split('=', 1) for kv in sys.argv[2:])
    open(out, 'w').write(build(opt))
```

```python
import sys
sys.path.insert(0, 'gen')
from asmlib import Asm, check
N = 25000; E = 400000; XB = N * 256
CH = 3128; P = 128
NAME = 'standalone__kernel_systems_refs_featgraph__graph'
L_LIST = 0; L_PC = 16384; L_C = 17408; LB = 18432
L_SLOW = L_C + 96; L_OVF = L_C + 100; L_CNT = L_C + 128; L_TAGS = L_C + 256; L_TAG = L_C + 104; L_RS = L_C + 112
L_WQ = LB; L_WV = LB + 32768; L_XO = LB + 65536; L_QS = LB + 98304
LDS = LB + 131072
CAP = 384
vGO = 4; vA1A = 8; vTRA = 12; vKEY = 20; vLA = 21; vZ = 22; vT16 = 23; vRB = 24
vN = 28; vG = 29; vLN = 30; vTMP = 31
vACC = 32; vQB = 64; vWV = 196; vA1 = 96; vT = 128; vS = 160; vE = 168; vB = 184; vAD = 188
vPE = 228; vRK = 112; vCA = 120; vTB = 144; vX = 236; vPF = 251
NV = 252
sM = 60

def srd(a, d, lo, nrec, add=None):
    if add is None:
        a(f's_mov_b32 s{d}, s{lo}')
        a(f's_and_b32 s{d+1}, s{lo+1}, 0xffff')
    else:
        a(f's_add_u32 s{d}, s{lo}, {add}')
        a(f's_addc_u32 s{d+1}, s{lo+1}, 0')
        a(f's_and_b32 s{d+1}, s{d+1}, 0xffff')
    a(f's_mov_b32 s{d+2}, {nrec}')
    a(f's_mov_b32 s{d+3}, 0x20000')

def mf(d, A, B, C): return f'v_mfma_f32_16x16x32_bf16 v[{d}:{d+3}], v[{A}:{A+3}], v[{B}:{B+3}], {C}'

def edge_loads(a, soff):
    a(f'v_lshlrev_b32 v{vX}, 5, v0')
    a(f'buffer_load_dwordx4 v[{vA1+8}:{vA1+11}], v{vX}, s[20:23], {soff} offen')
    a(f'buffer_load_dwordx4 v[{vA1+12}:{vA1+15}], v{vX}, s[20:23], {soff} offen offset:16')
    a(f'buffer_load_dwordx4 v[{vA1}:{vA1+3}], v{vX}, s[12:15], {soff} offen')
    a(f'buffer_load_dwordx4 v[{vA1+4}:{vA1+7}], v{vX}, s[12:15], {soff} offen offset:16')

def entries(a, dst):
    a(f'v_mov_b32 v{vX+1}, 0x81')
    for j in range(8):
        a(f'v_cmp_le_u32 s[{sM+2*j}:{sM+2*j+1}], s41, v{vA1+j}')
    for j in range(8):
        s, d = vA1 + j, vA1 + 8 + j
        a(f'v_lshrrev_b32 v{vX+2}, 4, v{d}')
        a(f'v_and_b32 v{vX+2}, 0x70, v{vX+2}')
        a(f'v_lshl_or_b32 v{dst+j}, v{s}, 8, v{vX+2}')
        a(f'v_lshrrev_b32 v{vX+2}, 11, v{d}')
        a(f'v_cndmask_b32 v{vX+3}, 1, v{vX+1}, s[{sM+2*j}:{sM+2*j+1}]')
        a(f'v_add3_u32 v{dst+j}, v{dst+j}, v{vX+2}, v{vX+3}')

def issue(a, b, fill=None):
    for j in range(8):
        if j == 0: a(f's_add_u32 m0, s42, {8192*b}')
        else: a('s_add_u32 m0, m0, 1024')
        a(f'v_and_or_b32 v{vAD+j}, v{vE+8*b+j}, s40, v{vGO+(j&3)}')
        a(f'buffer_load_dwordx4 v{vAD+j}, s[4:7], 0 offen lds')
        if fill: fill()

def eread(a, b, off):
    a(f'ds_read_b128 v[{vE+8*b}:{vE+8*b+3}], v{vLA} offset:{off}')
    a(f'ds_read_b128 v[{vE+8*b+4}:{vE+8*b+7}], v{vLA} offset:{off+16}')

def gemm4(a, A, addr, offs, D):
    order = [(T, s) for T in range(4) for s in range(4)]
    def rd(i):
        T, s = order[i]
        r = vA1 + 4 * i
        a(f'ds_read_b128 v[{r}:{r+3}], v{addr+s} offset:{offs(T)}')
    for i in range(12): rd(i)
    for i, (T, s) in enumerate(order):
        a(f's_waitcnt lgkmcnt({min(15, i+11) - i})')
        r = vA1 + 4 * i
        for h in range(2):
            d = D + 4 * (2 * T + h)
            a(mf(d, A + 16 * h + 4 * s, r, '0' if s == 0 else f'v[{d}:{d+3}]'))
        if i + 12 < 16: rd(i + 12)

def body(a, b, opt):
    tr = lambda k: f'ds_read_b64_tr_b16 v[{vT+2*k}:{vT+2*k+1}], v{vTRA+(k>>1)} offset:{8192*b+4096*(k&1)}'
    a('s_cmp_eq_u32 s53, 1')
    a(f's_cbranch_scc1 W0_{b}')
    a('s_waitcnt vmcnt(8)')
    a(f's_branch W1_{b}')
    a.label(f'W0_{b}')
    a('s_waitcnt vmcnt(0)')
    a.label(f'W1_{b}')
    for bb in range(2):
        for s in range(4):
            r = vA1 + 16 * bb + 4 * s
            a(f'ds_read_b128 v[{r}:{r+3}], v{vA1A+s} offset:{8192*b+4096*bb}')
    for j in range(8):
        a(f'v_cmp_eq_u32_sdwa s[{sM+2*j}:{sM+2*j+1}], v{vE+8*b+j}, v{vKEY} src0_sel:BYTE_0 src1_sel:DWORD')
    eread(a, b, 256 + 128 * b)
    for k in range(5): a(tr(k))
    a('s_waitcnt lgkmcnt(11)')
    for s in range(4): a(mf(vS, vA1 + 4 * s, vQB + 4 * s, '0' if s == 0 else f'v[{vS}:{vS+3}]'))
    for k in range(5, 9): a(tr(k))
    a('s_waitcnt lgkmcnt(11)')
    for s in range(4): a(mf(vS + 4, vA1 + 16 + 4 * s, vQB + 4 * s, '0' if s == 0 else f'v[{vS+4}:{vS+7}]'))
    for k in range(9, 13): a(tr(k))
    a('s_waitcnt lgkmcnt(11)')
    for k in range(13, 16): a(tr(k))
    if b == 1: a(f'v_add_u32 v{vLA}, 256, v{vLA}')
    for j in range(4): a(f'v_exp_f32 v{vS+j}, v{vS+j}')
    sig = [f'v_exp_f32 v{vS+j}, v{vS+j}' for j in range(4, 8)]
    sig += [f'v_add_f32 v{vS+j}, 1.0, v{vS+j}' for j in range(8)]
    sig += [f'v_rcp_f32 v{vS+j}, v{vS+j}' for j in range(8)]
    sig += [f'v_cndmask_b32 v{vS+j}, 0, v{vS+j}, s[{sM+2*j}:{sM+2*j+1}]' for j in range(8)]
    sig += [f'v_cvt_pk_bf16_f32 v{vB+u}, v{vS+2*u}, v{vS+2*u+1}' for u in range(4)]
    a('s_cmp_lt_u32 s53, 3')
    a(f's_cbranch_scc1 NI_{b}')
    a('s_waitcnt lgkmcnt(0)')
    it = iter(sig)
    def fill():
        for _ in range(3):
            x = next(it, None)
            if x: a(x)
    issue(a, b, fill)
    for x in it: a(x)
    a(f's_branch DI_{b}')
    a.label(f'NI_{b}')
    a('s_nop 1')
    for x in sig: a(x)
    a('s_waitcnt lgkmcnt(0)')
    a.label(f'DI_{b}')
    a('s_sub_u32 s53, s53, 1')
    a('s_cmp_eq_u32 s53, 0')
    for t in range(8):
        a(mf(vACC + 4 * t, vT + 4 * t, vB, f'v[{vACC+4*t}:{vACC+4*t+3}]'))
    a('s_cbranch_scc1 L_done')

def kern(opt):
    a = Asm()
    DG = opt.get('diag'); H = int(opt.get('H', 12544)); PFS = int(opt.get('pfs', 128)); PFN = int(opt.get('pfn', H))
    TMO = int(opt.get('tmo', 4000)); NS = int(opt.get('ns', 0)); PF2 = int(opt.get('pf2', 0))
    if NS: H = 1 << 20
    def stamp(i):
        if DG: a(f's_memrealtime s[{80+2*i}:{81+2*i}]')
    a.label(f'{NAME}_kernel')
    a('s_cmp_ge_u32 s2, 256')
    a('s_cbranch_scc1 L_end')
    a('s_load_dwordx16 s[24:39], s[0:1], 0')
    stamp(0)
    a('v_lshrrev_b32 v1, 6, v0')
    a(f'v_lshlrev_b32 v{vT16}, 4, v0')
    a('v_readfirstlane_b32 s3, v1')
    for i in range(4): a(f'v_mov_b32 v{vX+i}, 0')
    a(f'v_cmp_gt_u32 vcc, 64, v0')
    a('s_and_saveexec_b64 s[54:55], vcc')
    a(f'ds_write_b128 v{vT16}, v[{vX}:{vX+3}] offset:16384')
    a(f'v_cmpx_gt_u32 vcc, 9, v0')
    a(f'ds_write_b128 v{vT16}, v[{vX}:{vX+3}] offset:17408')
    a('s_mov_b64 exec, s[54:55]')
    a('s_lshr_b32 s56, s2, 3')
    if int(opt.get('rm', 0)):
        a('s_bfe_u32 s43, s2, 0x10002')
        a('s_and_b32 s57, s2, 3')
        a('s_lshl_b32 s58, s56, 2')
    else:
        a('s_bfe_u32 s43, s2, 0x10003')
        a('s_and_b32 s57, s2, 7')
        a('s_lshr_b32 s58, s2, 4')
        a('s_lshl_b32 s58, s58, 3')
    a('s_or_b32 s57, s57, s58')
    a(f'v_add_u32 v1, {L_QS}, v{vT16}')
    a('s_cmp_lg_u32 s43, 0')
    a('s_cbranch_scc1 L_nz')
    for u in range(4): a(f'ds_write_b128 v1, v[{vX}:{vX+3}] offset:{8192*u}')
    a.label('L_nz')
    a(f'v_and_b32 v{vN}, 15, v0')
    a(f'v_bfe_u32 v{vG}, v0, 4, 2')
    a(f'v_and_b32 v{vLN}, 63, v0')
    a(f'v_mov_b32 v{vZ}, 0')
    a(f's_mov_b32 s41, {H}')
    a('s_mov_b32 s40, 0x7fff00')
    a('s_lshl_b32 s42, s3, 14')
    a(f's_add_u32 s42, s42, {LB}')
    a(f's_mul_i32 s58, s57, {CH*4}')
    a(f's_mov_b32 s59, {CH//8}')
    a(f's_cmp_eq_u32 s57, {P-1}')
    a(f's_cselect_b32 s59, {(E-(P-1)*CH)//8}, s59')
    a('s_waitcnt lgkmcnt(0)')
    srd(a, 12, 26, E * 4); srd(a, 20, 28, E * 4)
    srd(a, 16, 36, 256)
    a('s_cmp_lg_u32 s43, 0')
    a('s_cbranch_scc1 L_noedge')
    a('v_cmp_gt_u32 vcc, s59, v0')
    a('s_and_saveexec_b64 s[54:55], vcc')
    a('s_cbranch_execz L_noedge0')
    edge_loads(a, 's58')
    srd(a, 8, 38, 16384)
    a('s_lshl_b32 s46, s57, 7')
    a(f'buffer_load_dwordx2 v[{vTB}:{vTB+1}], v{vZ}, s[8:11], s46 offen sc0 sc1')
    a.label('L_noedge0')
    a('s_mov_b64 exec, s[54:55]')
    a.label('L_noedge')
    srd(a, 4, 24, XB)
    a('s_cmp_lg_u32 s43, 0')
    a('s_cbranch_scc1 L_nob1')
    a('s_barrier')
    a.label('L_nob1')
    a('s_cmp_lt_u32 s3, 6')
    a('s_cbranch_scc1 L_nodma')
    a(f'v_lshlrev_b32 v1, 1, v{vG}')
    a(f'v_xor_b32 v1, v1, v{vN}')
    a(f'v_lshlrev_b32 v1, 4, v1')
    a('s_add_u32 s46, s3, s43')
    a('s_cmp_eq_u32 s46, 6')
    a('s_cbranch_scc1 L_nodma')
    a('s_cmp_eq_u32 s46, 8')
    a('s_cbranch_scc1 L_wdma')
    a(f'v_lshl_add_u32 v{vS}, v{vG}, 19, v1')
    a('s_lshl_b32 s47, s2, 8')
    a(f'v_add_u32 v{vS}, s47, v{vS}')
    for u in range(1, 4):
        a(f'v_add_u32 v{vS+u}, {(u*4<<19)-1024*u}, v{vS}')
        if u & 1: a(f'v_xor_b32 v{vS+u}, 128, v{vS+u}')
    a(f's_mov_b32 m0, {L_XO}')
    a('s_mov_b32 s46, 8')
    a.label('L_xl')
    for u in range(4):
        a(f'buffer_load_dwordx4 v{vS+u}, s[4:7], 0 offen offset:{1024*u} lds')
    for u in range(4):
        a(f'v_add_u32 v{vS+u}, 0x10000, v{vS+u}')
    a('s_add_u32 m0, m0, 4096')
    a('s_sub_u32 s46, s46, 1')
    a('s_cmp_lg_u32 s46, 0')
    a('s_cbranch_scc1 L_xl')
    a('s_cmp_eq_u32 s3, 6')
    a('s_cbranch_scc1 L_nodma')
    a.label('L_spin7')
    a(f'ds_read_b32 v2, v{vZ} offset:{L_CNT}')
    a('s_waitcnt lgkmcnt(0)')
    a('v_readfirstlane_b32 s50, v2')
    a(f's_cmp_lt_u32 s50, {int(opt.get("w7", 11))}')
    a('s_cbranch_scc1 L_spin7')
    a.label('L_wdma')
    a(f'v_lshl_add_u32 v2, v{vG}, 8, v1')
    a('v_xor_b32 v3, 128, v2')
    for wi, (lo, base) in enumerate(((30, L_WQ),)):
        srd(a, 8, lo, 32768)
        a('s_lshl_b32 s46, s56, 12')
        a('s_mov_b32 s47, 8')
        a.label(f'L_wl{wi}')
        a('s_and_b32 s46, s46, 0x7000')
        a(f's_add_u32 m0, s46, {base}')
        a('s_sub_u32 s47, s47, 1')
        for u in range(4):
            a(f'buffer_load_dwordx4 v{2+((u>>1) if wi == 0 else (u&1))}, s[8:11], s46 offen offset:{1024*u} lds')
        a('s_add_u32 s46, s46, 4096')
        a('s_cmp_lg_u32 s47, 0')
        a(f's_cbranch_scc1 L_wl{wi}')
    stamp(1)
    a('s_branch L_tagd')
    a.label('L_nodma')
    a('s_cmp_eq_u32 s43, 0')
    a('s_cbranch_scc1 L_prod')
    a('s_branch L_tag')
    a.label('L_prod')
    a('v_cmp_gt_u32 vcc, s59, v0')
    a('s_and_saveexec_b64 s[54:55], vcc')
    a('s_cbranch_execz L_binned')
    a('s_waitcnt vmcnt(3)')
    a('s_mov_b32 s46, 0x3fc')
    a(f'v_mov_b32 v1, 1')
    for j in range(8):
        a(f'v_lshlrev_b32 v{vCA+j}, 2, v{vA1+8+j}')
        a(f'v_and_b32 v{vCA+j}, s46, v{vCA+j}')
        a(f'ds_add_rtn_u32 v{vRK+j}, v{vCA+j}, v1 offset:{L_PC}')
    a('s_waitcnt vmcnt(1)')
    entries(a, vPE)
    a('s_mov_b64 s[76:77], exec')
    a('s_waitcnt vmcnt(0)')
    a(f'v_readfirstlane_b32 s48, v{vTB}')
    a(f'v_readfirstlane_b32 s49, v{vTB+1}')
    a('s_lshr_b32 s48, s48, 23')
    a('s_lshr_b32 s49, s49, 26')
    a('s_lshl_b32 s49, s49, 9')
    a('s_or_b32 s48, s48, s49')
    a('s_add_u32 s48, s48, 1')
    a('s_bitset1_b32 s48, 15')
    a('s_lshl_b32 s44, s48, 23')
    a('s_lshr_b32 s45, s48, 6')
    a('s_lshl_b32 s45, s45, 23')
    a('s_xor_b32 s52, s44, 0xff800000')
    a('s_xor_b32 s53, s45, 0xff800000')
    a('s_cmp_lg_u32 s3, 0')
    a('s_cbranch_scc1 L_nopub')
    a('s_lshl_b32 s49, s57, 1')
    a('v_mov_b32 v2, s48')
    a('s_mov_b64 exec, 1')
    a(f'buffer_store_short v2, v{vZ}, s[16:19], s49 offen sc0 sc1')
    a('s_mov_b64 exec, s[76:77]')
    a.label('L_nopub')
    a(f's_mov_b32 s46, {L_QS}')
    for j in range(8):
        a(f'v_lshl_add_u32 v{vCA+j}, v{vCA+j}, 5, s46')
    for j in range(8):
        if j == 0: a(f's_waitcnt lgkmcnt(0)')
        a(f'v_lshl_add_u32 v{vCA+j}, v{vRK+j}, 2, v{vCA+j}')
        a(f'v_cmpx_gt_u32 vcc, 32, v{vRK+j}')
        a(f'ds_write_b32 v{vCA+j}, v{vPE+j}')
        a('s_mov_b64 exec, s[76:77]')
    a(f'v_max3_u32 v2, v{vRK}, v{vRK+1}, v{vRK+2}')
    a(f'v_max3_u32 v2, v2, v{vRK+3}, v{vRK+4}')
    a(f'v_max3_u32 v2, v2, v{vRK+5}, v{vRK+6}')
    a(f'v_max_u32 v2, v2, v{vRK+7}')
    a(f'v_cmpx_lt_u32 vcc, 31, v2')
    a(f'ds_write_b32 v{vZ}, v1 offset:{L_OVF}')
    a.label('L_binned')
    a('s_mov_b64 exec, -1')
    a.label('L_tag')
    stamp(1)
    a.label('L_tagd')
    def slotld():
        a(f'buffer_load_dwordx4 v[{vPE}:{vPE+3}], v{vT16}, s[8:11], 0 offen sc0 sc1')
        a(f'buffer_load_dwordx4 v[{vPE+4}:{vPE+7}], v{vX+5}, s[8:11], 0 offen sc0 sc1')
    a('s_lshl_b32 s46, s2, 14')
    srd(a, 8, 38, 16384, add='s46')
    a(f'v_add_u32 v{vX+5}, 0x2000, v{vT16}')
    a('s_cmp_lg_u32 s43, 0')
    a('s_cbranch_scc1 L_copied')
    a('s_cmp_eq_u32 s3, 7')
    a('s_cbranch_scc1 L_copied')
    a('v_mov_b32 v1, 1')
    a('s_mov_b64 exec, 1')
    a('s_waitcnt lgkmcnt(0)')
    a(f'ds_add_u32 v{vZ}, v1 offset:{L_CNT}')
    a('s_mov_b64 exec, -1')
    a('s_cmp_ge_u32 s3, 4')
    a('s_cbranch_scc1 L_copied')
    a(f'v_add_u32 v{vX+4}, {L_QS}, v{vT16}')
    srd(a, 12, 38, 256 * 16384)
    a(f'v_lshrrev_b32 v{vX}, 3, v0')
    a(f'v_and_b32 v{vX+1}, 7, v0')
    a(f'v_lshlrev_b32 v{vX}, 14, v{vX}')
    a(f'v_lshl_add_u32 v{vX}, v{vX+1}, 4, v{vX}')
    a.label('L_spin')
    a(f'ds_read_b32 v1, v{vZ} offset:{L_CNT}')
    a('s_waitcnt lgkmcnt(0)')
    a('v_readfirstlane_b32 s50, v1')
    a('s_cmp_lt_u32 s50, 7')
    a('s_cbranch_scc1 L_spin')
    a(f'ds_read_b32 v1, v{vZ} offset:{L_OVF}')
    for u in range(8): a(f'ds_read_b128 v[{vT+4*u}:{vT+4*u+3}], v{vX+4} offset:{4096*u}')
    a('s_waitcnt lgkmcnt(8)')
    a('v_readfirstlane_b32 s50, v1')
    a('s_cmp_lg_u32 s50, 0')
    a('s_cbranch_scc1 L_ovf')
    a.label('L_copy')
    a('s_lshl_b32 s50, s57, 7')
    for u in range(8):
        a(f's_waitcnt lgkmcnt({7-u})')
        for k in range(4): a(f'v_xor_b32 v{vT+4*u+k}, s{(44,45,52,53)[k]}, v{vT+4*u+k}')
        a(f'buffer_store_dwordx4 v[{vT+4*u}:{vT+4*u+3}], v{vX}, s[12:15], s50 offen sc0 sc1')
        if u < 7: a(f's_add_u32 s50, s50, {1<<19}')
    a('v_mov_b32 v1, 1')
    a('s_mov_b64 exec, 1')
    a(f'ds_add_u32 v{vZ}, v1 offset:{L_CNT}')
    a('s_mov_b64 exec, -1')
    a.label('L_copied')
    stamp(2)
    for i in range(4): a(f'v_mov_b32 v{vX+i}, 0')
    a(f'ds_write_b128 v{vT16}, v[{vX}:{vX+3}]')
    a(f'ds_write_b128 v{vT16}, v[{vX}:{vX+3}] offset:8192')
    a(f'v_and_b32 v1, 7, v{vN}')
    a(f'v_lshlrev_b32 v1, 1, v1')
    a(f'v_xor_b32 v2, v1, v{vG}')
    a(f'v_lshlrev_b32 v2, 4, v2')
    a(f'v_lshl_add_u32 v3, v{vN}, 8, v2')
    a(f'v_add_u32 v{vRB}, {L_XO}, v3')
    a(f'v_and_b32 v3, 3, v{vN}')
    a(f'v_lshrrev_b32 v{vTMP}, 2, v{vN}')
    a(f'v_lshl_add_u32 v{vA1A}, v3, 2, v{vTMP}')
    a(f'v_lshl_add_u32 v{vA1A}, v{vA1A}, 8, v2')
    a(f'v_add_u32 v{vA1A}, s42, v{vA1A}')
    for s in range(1, 4):
        a(f'v_xor_b32 v{vRB+s}, {s<<6}, v{vRB}')
        a(f'v_xor_b32 v{vA1A+s}, {s<<6}, v{vA1A}')
    a(f'v_and_b32 v2, 1, v{vG}')
    a(f'v_lshl_or_b32 v2, v2, 2, v{vTMP}')
    a(f'v_lshlrev_b32 v2, 5, v2')
    a(f'v_lshl_or_b32 v2, v3, 3, v2')
    a(f'v_lshl_add_u32 v{vTRA}, v{vTMP}, 2, v{vG}')
    a(f'v_lshl_add_u32 v{vTRA}, v{vTRA}, 8, v2')
    a(f'v_add_u32 v{vTRA}, s42, v{vTRA}')
    for t in range(1, 8): a(f'v_xor_b32 v{vTRA+t}, {t<<5}, v{vTRA}')
    a(f'v_and_b32 v2, 0xe0, v2')
    a(f'v_lshlrev_b32 v3, 4, v3')
    a(f'v_xor_b32 v2, v2, v3')
    a('s_and_b32 s50, s3, 3')
    a('s_lshl_b32 s50, s50, 6')
    a(f'v_xor_b32 v2, s50, v2')
    a(f'v_lshl_add_u32 v{vX+6}, v{vG}, 3, v{vTMP}')
    a(f'v_lshl_add_u32 v{vX+6}, v{vX+6}, 8, v2')
    a(f'v_add_u32 v{vX+6}, {L_WQ}, v{vX+6}')
    a(f'v_lshl_add_u32 v{vX+7}, v{vG}, 2, v{vTMP}')
    a(f'v_lshl_add_u32 v{vX+7}, v{vX+7}, 8, v2')
    a(f'v_add_u32 v{vX+7}, {L_WV}, v{vX+7}')
    a(f'v_and_b32 v2, 1, v{vG}')
    a(f'v_lshlrev_b32 v2, 3, v2')
    a(f'v_xor_b32 v2, v2, v{vN}')
    a(f'v_lshlrev_b32 v{vGO}, 4, v2')
    for j in range(1, 4): a(f'v_xor_b32 v{vGO+j}, {j<<5}, v{vGO}')
    a('s_lshl_b32 s51, s3, 4')
    a('s_add_u32 s51, s51, 1')
    a(f'v_add_u32 v{vKEY}, s51, v{vN}')
    a('s_lshr_b32 s51, s3, 2')
    a('s_lshl_b32 s51, s51, 14')
    for s in range(4): a(f'v_add_u32 v{vX+8+s}, s51, v{vRB+s}')
    a(f'v_xor_b32 v1, s50, v{vX+8}')
    a(f'v_add_u32 v1, {L_QS-L_XO}, v1')
    a('s_cmp_lt_u32 s3, 6')
    a('s_cbranch_scc1 L_w4')
    a('s_waitcnt vmcnt(0)')
    a.label('L_w4')
    a('s_waitcnt lgkmcnt(0)')
    a('s_barrier')
    a('s_cmp_lg_u32 s3, 0')
    a('s_cbranch_scc1 L_nt1')
    a(f'v_lshlrev_b32 v2, 2, v0')
    a(f'buffer_load_dword v3, v2, s[16:19], 0 offen sc0 sc1')
    a.label('L_nt1')
    srd(a, 12, 32, 32768)
    a('s_lshl_b32 s46, s3, 12')
    a(f's_add_u32 m0, s46, {L_WV}')
    a(f'v_lshlrev_b32 v{vS}, 1, v{vG}')
    a(f'v_xor_b32 v{vS}, v{vS}, v{vN}')
    a(f'v_lshlrev_b32 v{vS}, 4, v{vS}')
    a(f'v_lshl_add_u32 v{vS}, v{vG}, 8, v{vS}')
    a(f'v_xor_b32 v{vS+1}, 128, v{vS}')
    for u in range(4):
        a(f'buffer_load_dwordx4 v{vS+(u&1)}, s[12:15], s46 offen offset:{1024*u} lds')
    def prefetch(r0, rows, fixed=None):
        c = rows * 2 // 256
        ni = (c + 63) // 64
        a('s_lshl_b32 s47, s56, 3')
        a('s_add_u32 s46, s3, s47')
        a(f's_mul_i32 s46, s46, {c*128}')
        a(f's_add_u32 s46, s46, {r0*256}')
        a(f'v_lshlrev_b32 v{vS+2}, 7, v{vLN}')
        for u in range(fixed or ni):
            n = max(1, min(64, c - 64 * u))
            if n < 64: a(f's_mov_b64 exec, {hex((1 << n) - 1)}')
            a(f'buffer_load_dword v{vPF}, v{vS+2}, s[4:7], s46 offen')
            if n < 64: a('s_mov_b64 exec, -1')
            if c > 64 * (u + 1): a(f's_add_u32 s46, s46, 8192')
    if PFN > 0:
        prefetch(0, PFN, 2)
    else:
        slotld()
    for h in range(2):
        for k in range(8):
            r = vQB + 16 * h + 2 * k
            a(f'ds_read_b64_tr_b16 v[{r}:{r+1}], v{vX+6} offset:{8192*(k>>1)+1024*(k&1)+8*h}')
        a('s_waitcnt lgkmcnt(3)')
    gemm4(a, vQB, vX + 8, lambda T: 4096 * T, vACC)
    a('s_nop 4')
    a('s_mov_b32 s51, 0xbe0293ee')
    for T in range(4):
        for r in range(8): a(f'v_mul_f32 v{vACC+8*T+r}, s51, v{vACC+8*T+r}')
        for r in range(4): a(f'v_cvt_pk_bf16_f32 v{vA1+4*T+r}, v{vACC+8*T+2*r}, v{vACC+8*T+2*r+1}')
        a(f'ds_write_b128 v1, v[{vA1+4*T}:{vA1+4*T+3}] offset:{4096*T}')
    for i in range(32): a(f'v_mov_b32 v{vACC+i}, 0')
    a('s_lshl_b32 s51, s3, 12')
    a(f's_add_u32 s51, s51, {L_QS-L_XO}')
    for s in range(4): a(f'v_add_u32 v{vX+s}, s51, v{vRB+s}')
    a('s_waitcnt vmcnt(2)')
    a('s_cmp_lg_u32 s3, 0')
    a('s_cbranch_scc1 L_nt2')
    a(f's_mov_b32 s50, {TMO}')
    a('s_mov_b32 s51, 0x80008000')
    a.label('L_tp')
    a(f'v_and_b32 v1, s51, v3')
    a('v_cmp_ne_u32 vcc, s51, v1')
    a('s_cbranch_vccz L_tp2')
    a(f'buffer_load_dword v3, v2, s[16:19], 0 offen sc0 sc1')
    a('s_waitcnt vmcnt(0)')
    a('s_sub_u32 s50, s50, 1')
    a('s_cbranch_scc0 L_tp')
    a.label('L_tp2')
    a(f'ds_write_b32 v2, v3 offset:{L_TAGS}')
    a.label('L_nt2')
    srd(a, 16, 34, XB)
    a(f'v_lshrrev_b32 v1, 2, v0')
    a(f'v_and_b32 v1, 0x7e, v1')
    a('s_waitcnt lgkmcnt(0)')
    a('s_barrier')
    a(f'ds_read_u16 v2, v1 offset:{L_TAGS}')
    a(f'ds_read_u16 v3, v1 offset:{L_TAGS+128}')
    for s in range(4): a(f'ds_read_b128 v[{vQB+4*s}:{vQB+4*s+3}], v{vX+s}')
    if PFN > 0:
        slotld()
    stamp(3)
    for h in range(2):
        for k in range(8):
            r = vWV + 16 * h + 2 * k
            a(f'ds_read_b64_tr_b16 v[{r}:{r+1}], v{vX+7} offset:{8192*(k>>1)+4096*(k&1)+8*h}')
        if h == 0: a('s_waitcnt lgkmcnt(7)')
    a(f's_mov_b32 s50, {TMO}')
    a('s_mov_b32 s51, 0xff800000')
    for h in range(2):
        a(f'v_lshlrev_b32 v{vTB+4*h}, 23, v{2+h}')
        a(f'v_lshrrev_b32 v{vTB+4*h+1}, 6, v{2+h}')
        a(f'v_lshlrev_b32 v{vTB+4*h+1}, 23, v{vTB+4*h+1}')
        a(f'v_xor_b32 v{vTB+4*h+2}, s51, v{vTB+4*h}')
        a(f'v_xor_b32 v{vTB+4*h+3}, s51, v{vTB+4*h+1}')
    a('v_and_b32 v2, v2, v3')
    a('v_cmp_gt_u32 vcc, 0x8000, v2')
    a('s_cbranch_vccnz L_fail')
    a('s_mov_b32 s51, 0x800000')
    a.label('L_poll')
    a('s_waitcnt vmcnt(0)')
    for j in range(8): a(f'v_xor_b32 v{vRK+j}, v{vTB+j}, v{vPE+j}')
    a(f'v_or3_b32 v1, v{vRK}, v{vRK+1}, v{vRK+2}')
    a(f'v_or3_b32 v2, v{vRK+4}, v{vRK+5}, v{vRK+6}')
    a(f'v_or3_b32 v1, v1, v{vRK+3}, v{vRK+7}')
    a(f'v_or_b32 v1, v1, v2')
    a('v_cmpx_le_u32 vcc, s51, v1')
    a('s_cbranch_execz L_got')
    a(f'buffer_load_dwordx4 v[{vPE}:{vPE+3}], v{vT16}, s[8:11], 0 offen sc0 sc1')
    a(f'buffer_load_dwordx4 v[{vPE+4}:{vPE+7}], v{vX+5}, s[8:11], 0 offen sc0 sc1')
    a('s_sub_u32 s50, s50, 1')
    a('s_cbranch_scc0 L_poll')
    a('s_mov_b64 exec, -1')
    a.label('L_fail')
    a('s_waitcnt vmcnt(0)')
    a('s_lshl_b32 s50, s3, 3')
    a('s_lshl_b32 s50, 0xff, s50')
    a('s_and_b32 s51, s3, 4')
    a('v_mov_b32 v1, s50')
    a('v_mov_b32 v2, s51')
    a(f'ds_or_b32 v2, v1 offset:{L_RS}')
    a(f'ds_or_b32 v2, v1 offset:{L_RS+8}')
    for j in range(8): a(f'v_mov_b32 v{vRK+j}, 0')
    a.label('L_got')
    a('s_mov_b64 exec, -1')
    stamp(4)
    if PF2 > 0: prefetch(PFN, PF2)
    a(f'v_cmp_eq_u32 vcc, 0x70, v{vRK}')
    a(f'v_cmp_eq_u32 s[50:51], v{vRK+4}, v{vRK+5}')
    a.lines.pop()
    a(f'v_mov_b32 v1, 0x70')
    a(f'v_cmp_eq_u32 s[50:51], v1, v{vRK+4}')
    for j in range(8): a(f'v_mov_b32 v{vPE+j}, v{vRK+j}')
    a('s_or_b64 s[54:55], vcc, s[50:51]')
    a('s_cbranch_scc1 L_mark')
    if NS:
        a.label('L_place')
        a('v_mov_b32 v1, 1')
        for j in range(8):
            a(f'v_lshrrev_b32 v{vCA+j}, 2, v{vPE+j}')
            a(f'v_and_b32 v{vCA+j}, 0x1c, v{vCA+j}')
            a(f'v_mov_b32 v{vRK+j}, -1')
            a(f'v_cmpx_ne_u32 vcc, 0, v{vPE+j}')
            a(f'ds_add_rtn_u32 v{vRK+j}, v{vCA+j}, v1 offset:{L_C+32}')
            a('s_mov_b64 exec, -1')
        for j in range(8): a(f'v_lshlrev_b32 v{vTB+j}, 9, v{vCA+j}')
        a('s_lshl_b32 s50, s3, 2')
        a('v_mov_b32 v3, s50')
        a(f's_mov_b32 s51, {CAP}')
        for j in range(8):
            if j == 0: a(f's_waitcnt lgkmcnt(0)')
            a(f'v_lshl_add_u32 v{vTB+j}, v{vRK+j}, 2, v{vTB+j}')
            a(f'v_cmpx_gt_u32 vcc, s51, v{vRK+j}')
            a(f'ds_write_b32 v{vTB+j}, v{vPE+j}')
            a(f'v_mov_b32 v{vPE+j}, 0')
            a('s_mov_b64 exec, -1')
    else:
        a.label('L_place')
        a('v_mov_b32 v1, 1')
        for j in range(8):
            a(f'v_lshrrev_b32 v{vCA+j}, 2, v{vPE+j}')
            a(f'v_and_b32 v{vCA+j}, 0x3c, v{vCA+j}')
            a(f'v_mov_b32 v{vRK+j}, -1')
            a(f'v_cmpx_ne_u32 vcc, 0, v{vPE+j}')
            a(f'ds_add_rtn_u32 v{vRK+j}, v{vCA+j}, v1 offset:{L_C+32}')
            a('s_mov_b64 exec, -1')
        for j in range(8):
            a(f'v_and_b32 v{vTB+j}, 0x1c, v{vCA+j}')
            a(f'v_lshlrev_b32 v{vTB+j}, 9, v{vTB+j}')
        a('s_lshl_b32 s50, s3, 2')
        a('v_mov_b32 v3, s50')
        a(f's_mov_b32 s51, {CAP}')
        a('s_waitcnt lgkmcnt(0)')
        a('s_barrier')
        for j in range(8): a(f'ds_read_b32 v{vCA+j}, v{vCA+j} offset:{L_C}')
        a(f'ds_read2_b32 v[{vX}:{vX+1}], v3 offset0:0 offset1:8') ; a.lines.pop()
        a(f'ds_read_b32 v{vX}, v3 offset:{L_C+32}')
        a(f'ds_read_b32 v{vX+1}, v3 offset:{L_C+64}')
        for j in range(8):
            if j == 0: a(f's_waitcnt lgkmcnt(0)')
            a(f'v_add_u32 v{vRK+j}, v{vRK+j}, v{vCA+j}')
            a(f'v_lshl_add_u32 v{vTB+j}, v{vRK+j}, 2, v{vTB+j}')
            a(f'v_and_b32 v{vCA+j}, 0xffffff7f, v{vPE+j}')
            a(f'v_cmpx_gt_u32 vcc, s51, v{vRK+j}')
            a(f'ds_write_b32 v{vTB+j}, v{vCA+j}')
            a(f'v_mov_b32 v{vPE+j}, 0')
            a('s_mov_b64 exec, -1')
    a(f'v_or3_b32 v1, v{vPE}, v{vPE+1}, v{vPE+2}')
    a(f'v_or3_b32 v1, v1, v{vPE+3}, v{vPE+4}')
    a(f'v_or3_b32 v1, v1, v{vPE+5}, v{vPE+6}')
    a(f'v_or_b32 v1, v1, v{vPE+7}')
    a('v_cmpx_ne_u32 vcc, 0, v1')
    a(f'ds_write_b32 v{vZ}, v1 offset:{L_SLOW}')
    a('s_mov_b64 exec, -1')
    if not NS: a(f'v_add_u32 v{vX}, v{vX}, v{vX+1}')
    a('s_lshl_b32 s50, s3, 11')
    a(f'v_lshl_add_u32 v{vLA}, v{vG}, 5, s50')
    if not NS: a(f'v_readfirstlane_b32 s53, v{vX}')
    a('s_waitcnt lgkmcnt(0)')
    a('s_barrier')
    if NS: a(f'ds_read_b32 v2, v3 offset:{L_C+32}')
    eread(a, 0, 0)
    eread(a, 1, 128)
    a(f'ds_read_b32 v1, v{vZ} offset:{L_SLOW}')
    a(f'ds_read_b128 v[{vX}:{vX+3}], v{vZ} offset:{L_RS}')
    if NS:
        a('s_waitcnt lgkmcnt(6)')
        a('v_readfirstlane_b32 s53, v2')
    a('s_min_u32 s53, s53, s51')
    a('s_add_u32 s53, s53, 31')
    a('s_lshr_b32 s53, s53, 5')
    stamp(5)
    a('s_cmp_eq_u32 s53, 0')
    a('s_cbranch_scc1 L_noi')
    a('s_waitcnt lgkmcnt(4)')
    issue(a, 0)
    a('s_cmp_eq_u32 s53, 1')
    a('s_cbranch_scc1 L_noi')
    a('s_waitcnt lgkmcnt(2)')
    issue(a, 1)
    a.label('L_noi')
    a('s_waitcnt lgkmcnt(0)')
    a('v_readfirstlane_b32 s52, v1')
    for i in range(4): a(f'v_readfirstlane_b32 s{76+i}, v{vX+i}')
    a('s_cmp_eq_u32 s53, 0')
    a('s_cbranch_scc1 L_done')
    a.label('L_loop')
    body(a, 0, opt)
    body(a, 1, opt)
    a('s_branch L_loop')
    a.label('L_done')
    stamp(6)
    a('s_or_b64 s[54:55], s[76:77], s[78:79]')
    a('s_or_b32 s54, s54, s55')
    a('s_or_b32 s54, s54, s52')
    a('s_cbranch_scc1 L_slow')
    a(f's_sub_u32 s50, s42, {L_XO}')
    a('s_lshr_b32 s51, s3, 2')
    a('s_lshl_b32 s51, s51, 16')
    a(f's_add_u32 s51, s51, {(LB-L_XO)&0xffffffff}')
    for s in range(4):
        for r in range(4): a(f'v_cvt_pk_bf16_f32 v{vA1+4*s+r}, v{vACC+8*s+2*r}, v{vACC+8*s+2*r+1}')
        a(f'v_add_u32 v2, s50, v{vRB+s}')
        a(f'ds_write_b128 v2, v[{vA1+4*s}:{vA1+4*s+3}]')
        a(f'v_add_u32 v{vX+s}, s51, v{vRB+s}')
    a(f'v_lshlrev_b32 v1, 19, v{vN}')
    a(f'v_lshl_add_u32 v1, v{vG}, 4, v1')
    a('s_lshl_b32 s50, s2, 8')
    a('s_and_b32 s51, s3, 3')
    a('s_lshl_b32 s51, s51, 6')
    a('s_add_u32 s50, s50, s51')
    a('s_lshr_b32 s51, s3, 2')
    a('s_lshl_b32 s51, s51, 18')
    a('s_add_u32 s50, s50, s51')
    a('v_add_u32 v1, s50, v1')
    a('s_waitcnt lgkmcnt(0)')
    a('s_barrier')
    gemm4(a, vWV, vX, lambda T: 16384 * T, vACC)
    for T in range(4):
        if T == 3: a('s_nop 4')
        for r in range(4): a(f'v_cvt_pk_bf16_f32 v{vA1+4*T+r}, v{vACC+8*T+2*r}, v{vACC+8*T+2*r+1}')
        a(f'buffer_store_dwordx4 v[{vA1+4*T}:{vA1+4*T+3}], v1, s[16:19], 0 offen')
        if T < 3: a('v_add_u32 v1, 0x10000, v1')
    if DG:
        a('s_waitcnt vmcnt(0)')
        stamp(7)
        a('s_waitcnt lgkmcnt(0)')
        srd(a, 8, 38, 1 << 20, add=200 << 20)
        a('s_lshl_b32 s60, s2, 3')
        a('s_add_u32 s60, s60, s3')
        a('s_lshl_b32 s60, s60, 5')
        for i in range(8): a(f'v_mov_b32 v{16+i}, s{80+2*i}')
        a('v_mov_b32 v12, 0')
        a(f'v_cmpx_eq_u32 vcc, 0, v{vLN}')
        a('buffer_store_dwordx4 v[16:19], v12, s[8:11], s60 offen')
        a('buffer_store_dwordx4 v[20:23], v12, s[8:11], s60 offen offset:16')
    a.label('L_end')
    a('s_endpgm')
    a.label('L_ovf')
    a(f'v_lshrrev_b32 v1, 1, v0')
    a(f'v_and_b32 v1, 0xfc, v1')
    for u in range(8): a(f'ds_read_b32 v{vRK+u}, v1 offset:{L_PC+128*u}')
    a('s_waitcnt lgkmcnt(0)')
    for u in range(8):
        a(f'v_cmpx_lt_u32 vcc, 32, v{vRK+u}')
        a(f'v_mov_b32 v{vT+4*u}, 0x70')
        for k in range(1, 4): a(f'v_mov_b32 v{vT+4*u+k}, 0')
        a('s_mov_b64 exec, -1')
    a('s_branch L_copy')
    a.label('L_mark')
    a('v_lshrrev_b32 v1, 3, v0')
    a('v_lshlrev_b32_e64 v2, v1, 1')
    a('v_lshrrev_b32 v1, 3, v1')
    a('v_and_b32 v1, 4, v1')
    a('s_mov_b64 exec, vcc')
    a(f'ds_or_b32 v1, v2 offset:{L_RS}')
    a(f'v_mov_b32 v{vPE}, 0')
    a('s_mov_b64 exec, s[50:51]')
    a(f'ds_or_b32 v1, v2 offset:{L_RS+8}')
    a(f'v_mov_b32 v{vPE+4}, 0')
    a('s_mov_b64 exec, -1')
    a('s_branch L_place')
    a.label('L_slow')
    a('s_barrier')
    for i in range(4): a(f'v_mov_b32 v{vX+i}, 0')
    a(f'ds_write_b128 v{vT16}, v[{vX}:{vX+3}]')
    a(f'ds_write_b128 v{vT16}, v[{vX}:{vX+3}] offset:8192')
    a('s_cmp_lg_u32 s52, 0')
    a('s_cbranch_scc1 L_slow_go')
    a('s_cmp_eq_u64 s[76:77], 0')
    a('s_cbranch_scc1 L_slow_hi')
    a('s_ff1_i32_b64 s57, s[76:77]')
    a('s_bitset0_b64 s[76:77], s57')
    a('s_branch L_slow_ld')
    a.label('L_slow_hi')
    a('s_ff1_i32_b64 s57, s[78:79]')
    a('s_bitset0_b64 s[78:79], s57')
    a('s_add_u32 s57, s57, 64')
    a.label('L_slow_ld')
    srd(a, 12, 26, E * 4)
    a(f's_mul_i32 s58, s57, {CH*4}')
    a(f's_mov_b32 s59, {CH//8}')
    a(f's_cmp_eq_u32 s57, {P-1}')
    a(f's_cselect_b32 s59, {(E-(P-1)*CH)//8}, s59')
    edge_loads(a, 's58')
    a('s_waitcnt vmcnt(0)')
    entries(a, vPE)
    a('v_cmp_gt_u32 s[54:55], s59, v0')
    for j in range(8):
        a(f'v_and_b32 v1, 0xff, v{vA1+8+j}')
        a('v_cmp_eq_u32 vcc, s2, v1')
        a('s_and_b64 vcc, vcc, s[54:55]')
        a('s_nop 1')
        a(f'v_cndmask_b32 v{vPE+j}, 0, v{vPE+j}, vcc')
    a.label('L_slow_go')
    for i in range(4): a(f'v_mov_b32 v{vS+i}, s{76+i}')
    a(f'v_cmp_gt_u32 vcc, 7, v0')
    a('s_and_saveexec_b64 s[54:55], vcc')
    for i in range(4): a(f'v_mov_b32 v{vX+i}, 0')
    a(f'ds_write_b128 v{vT16}, v[{vX}:{vX+3}] offset:{L_C}')
    a(f'ds_write_b128 v{vZ}, v[{vS}:{vS+3}] offset:{L_RS}')
    a('s_mov_b64 exec, -1')
    a('s_waitcnt lgkmcnt(0)')
    a('s_barrier')
    a('s_branch L_place')
    return a

HDR = open('cdna_kernels/%s.s.ref' % NAME).read().split('; Override')[0]
def build(opt):
    a = kern(opt)
    for e in check(a.lines, 'k'): print('HAZARD', e)
    t = HDR + f'; @launch grid=(256,1,1) block=(512,1,1) lds={LDS}\n'
    t += '.amdgcn_target "amdgcn-amd-amdhsa--gfx950"\n.text\n'
    t += f'.globl {NAME}_kernel\n.p2align 8\n.type {NAME}_kernel,@function\n' + a.text()
    t += f'''.section .rodata,"a"
.p2align 6
.amdhsa_kernel {NAME}_kernel
  .amdhsa_next_free_vgpr {NV}
  .amdhsa_next_free_sgpr 100
  .amdhsa_accum_offset {(NV+3)//4*4}
  .amdhsa_group_segment_fixed_size 0
  .amdhsa_kernarg_size 64
  .amdhsa_user_sgpr_count 2
  .amdhsa_user_sgpr_kernarg_segment_ptr 1
  .amdhsa_system_sgpr_workgroup_id_x 1
.end_amdhsa_kernel
'''
    return t
if __name__ == '__main__':
    out = sys.argv[1] if len(sys.argv) > 1 else f'cdna_kernels/{NAME}.s'
    opt = dict(kv.split('=', 1) for kv in sys.argv[2:])
    open(out, 'w').write(build(opt))
```

```python
import sys
sys.path.insert(0, 'gen')
from asmlib import Asm, check
N = 25000; E = 400000; XB = N * 256
CH = 3128; P = 128
NAME = 'standalone__kernel_systems_refs_featgraph__graph'
L_LIST = 0; L_PC = 16384; L_C = 17408; LB = 18432
L_SLOW = L_C + 96; L_OVF = L_C + 100; L_CNT = L_C + 128; L_TAGS = L_C + 256; L_TAG = L_C + 104; L_RS = L_C + 112
L_WQ = LB; L_WV = LB + 32768; L_XO = LB + 65536; L_QS = LB + 98304
LDS = LB + 131072
CAP = 384
vGO = 4; vA1A = 8; vTRA = 12; vKEY = 20; vLA = 21; vZ = 22; vT16 = 23; vRB = 24
vN = 28; vG = 29; vLN = 30; vTMP = 31
vACC = 32; vQB = 64; vWV = 196; vA1 = 96; vT = 128; vS = 160; vE = 168; vB = 184; vAD = 188
vPE = 228; vRK = 112; vCA = 120; vTB = 144; vX = 236; vPF = 251
NV = 252
sM = 60

def srd(a, d, lo, nrec, add=None):
    if add is None:
        a(f's_mov_b32 s{d}, s{lo}')
        a(f's_and_b32 s{d+1}, s{lo+1}, 0xffff')
    else:
        a(f's_add_u32 s{d}, s{lo}, {add}')
        a(f's_addc_u32 s{d+1}, s{lo+1}, 0')
        a(f's_and_b32 s{d+1}, s{d+1}, 0xffff')
    a(f's_mov_b32 s{d+2}, {nrec}')
    a(f's_mov_b32 s{d+3}, 0x20000')

def mf(d, A, B, C): return f'v_mfma_f32_16x16x32_bf16 v[{d}:{d+3}], v[{A}:{A+3}], v[{B}:{B+3}], {C}'

def edge_loads(a, soff):
    a(f'v_lshlrev_b32 v{vX}, 5, v0')
    a(f'buffer_load_dwordx4 v[{vA1+8}:{vA1+11}], v{vX}, s[20:23], {soff} offen')
    a(f'buffer_load_dwordx4 v[{vA1+12}:{vA1+15}], v{vX}, s[20:23], {soff} offen offset:16')
    a(f'buffer_load_dwordx4 v[{vA1}:{vA1+3}], v{vX}, s[12:15], {soff} offen')
    a(f'buffer_load_dwordx4 v[{vA1+4}:{vA1+7}], v{vX}, s[12:15], {soff} offen offset:16')

def entries(a, dst):
    a(f'v_mov_b32 v{vX+1}, 0x81')
    for j in range(8):
        a(f'v_cmp_le_u32 s[{sM+2*j}:{sM+2*j+1}], s41, v{vA1+j}')
    for j in range(8):
        s, d = vA1 + j, vA1 + 8 + j
        a(f'v_lshrrev_b32 v{vX+2}, 4, v{d}')
        a(f'v_and_b32 v{vX+2}, 0x70, v{vX+2}')
        a(f'v_lshl_or_b32 v{dst+j}, v{s}, 8, v{vX+2}')
        a(f'v_lshrrev_b32 v{vX+2}, 11, v{d}')
        a(f'v_cndmask_b32 v{vX+3}, 1, v{vX+1}, s[{sM+2*j}:{sM+2*j+1}]')
        a(f'v_add3_u32 v{dst+j}, v{dst+j}, v{vX+2}, v{vX+3}')

def issue(a, b, fill=None):
    for j in range(8):
        if j == 0: a(f's_add_u32 m0, s42, {8192*b}')
        else: a('s_add_u32 m0, m0, 1024')
        a(f'v_and_or_b32 v{vAD+j}, v{vE+8*b+j}, s40, v{vGO+(j&3)}')
        a(f'buffer_load_dwordx4 v{vAD+j}, s[4:7], 0 offen lds')
        if fill: fill()

def eread(a, b, off):
    a(f'ds_read_b128 v[{vE+8*b}:{vE+8*b+3}], v{vLA} offset:{off}')
    a(f'ds_read_b128 v[{vE+8*b+4}:{vE+8*b+7}], v{vLA} offset:{off+16}')

def gemm4(a, A, addr, offs, D):
    order = [(T, s) for T in range(4) for s in range(4)]
    def rd(i):
        T, s = order[i]
        r = vA1 + 4 * i
        a(f'ds_read_b128 v[{r}:{r+3}], v{addr+s} offset:{offs(T)}')
    for i in range(12): rd(i)
    for i, (T, s) in enumerate(order):
        a(f's_waitcnt lgkmcnt({min(15, i+11) - i})')
        r = vA1 + 4 * i
        for h in range(2):
            d = D + 4 * (2 * T + h)
            a(mf(d, A + 16 * h + 4 * s, r, '0' if s == 0 else f'v[{d}:{d+3}]'))
        if i + 12 < 16: rd(i + 12)

def body(a, b, opt):
    tr = lambda k: f'ds_read_b64_tr_b16 v[{vT+2*k}:{vT+2*k+1}], v{vTRA+(k>>1)} offset:{8192*b+4096*(k&1)}'
    a('s_cmp_eq_u32 s53, 1')
    a(f's_cbranch_scc1 W0_{b}')
    a('s_waitcnt vmcnt(8)')
    a(f's_branch W1_{b}')
    a.label(f'W0_{b}')
    a('s_waitcnt vmcnt(0)')
    a.label(f'W1_{b}')
    for bb in range(2):
        for s in range(4):
            r = vA1 + 16 * bb + 4 * s
            a(f'ds_read_b128 v[{r}:{r+3}], v{vA1A+s} offset:{8192*b+4096*bb}')
    for j in range(8):
        a(f'v_cmp_eq_u32_sdwa s[{sM+2*j}:{sM+2*j+1}], v{vE+8*b+j}, v{vKEY} src0_sel:BYTE_0 src1_sel:DWORD')
    eread(a, b, 256 + 128 * b)
    for k in range(5): a(tr(k))
    a('s_waitcnt lgkmcnt(11)')
    for s in range(4): a(mf(vS, vA1 + 4 * s, vQB + 4 * s, '0' if s == 0 else f'v[{vS}:{vS+3}]'))
    for k in range(5, 9): a(tr(k))
    a('s_waitcnt lgkmcnt(11)')
    for s in range(4): a(mf(vS + 4, vA1 + 16 + 4 * s, vQB + 4 * s, '0' if s == 0 else f'v[{vS+4}:{vS+7}]'))
    for k in range(9, 13): a(tr(k))
    a('s_waitcnt lgkmcnt(11)')
    for k in range(13, 16): a(tr(k))
    if b == 1: a(f'v_add_u32 v{vLA}, 256, v{vLA}')
    for j in range(4): a(f'v_exp_f32 v{vS+j}, v{vS+j}')
    sig = [f'v_exp_f32 v{vS+j}, v{vS+j}' for j in range(4, 8)]
    sig += [f'v_add_f32 v{vS+j}, 1.0, v{vS+j}' for j in range(8)]
    sig += [f'v_rcp_f32 v{vS+j}, v{vS+j}' for j in range(8)]
    sig += [f'v_cndmask_b32 v{vS+j}, 0, v{vS+j}, s[{sM+2*j}:{sM+2*j+1}]' for j in range(8)]
    sig += [f'v_cvt_pk_bf16_f32 v{vB+u}, v{vS+2*u}, v{vS+2*u+1}' for u in range(4)]
    a('s_cmp_lt_u32 s53, 3')
    a(f's_cbranch_scc1 NI_{b}')
    a('s_waitcnt lgkmcnt(0)')
    it = iter(sig)
    def fill():
        for _ in range(3):
            x = next(it, None)
            if x: a(x)
    issue(a, b, fill)
    for x in it: a(x)
    a(f's_branch DI_{b}')
    a.label(f'NI_{b}')
    a('s_nop 1')
    for x in sig: a(x)
    a('s_waitcnt lgkmcnt(0)')
    a.label(f'DI_{b}')
    a('s_sub_u32 s53, s53, 1')
    a('s_cmp_eq_u32 s53, 0')
    for t in range(8):
        a(mf(vACC + 4 * t, vT + 4 * t, vB, f'v[{vACC+4*t}:{vACC+4*t+3}]'))
    a('s_cbranch_scc1 L_done')

def kern(opt):
    a = Asm()
    DG = opt.get('diag'); H = int(opt.get('H', 12544)); PFS = int(opt.get('pfs', 128)); PFN = int(opt.get('pfn', H))
    TMO = int(opt.get('tmo', 4000)); NS = int(opt.get('ns', 0)); PF2 = int(opt.get('pf2', 0))
    if NS: H = 1 << 20
    def stamp(i, m=None):
        if DG == '2' and i in (1, 2) and m is None: return
        if DG != '2' and m is not None: return
        if DG: a(f's_memrealtime s[{80+2*i}:{81+2*i}]')
    a.label(f'{NAME}_kernel')
    a('s_cmp_ge_u32 s2, 256')
    a('s_cbranch_scc1 L_end')
    a('s_load_dwordx16 s[24:39], s[0:1], 0')
    stamp(0)
    a('v_lshrrev_b32 v1, 6, v0')
    a(f'v_lshlrev_b32 v{vT16}, 4, v0')
    a('v_readfirstlane_b32 s3, v1')
    for i in range(4): a(f'v_mov_b32 v{vX+i}, 0')
    a(f'v_cmp_gt_u32 vcc, 64, v0')
    a('s_and_saveexec_b64 s[54:55], vcc')
    a(f'ds_write_b128 v{vT16}, v[{vX}:{vX+3}] offset:16384')
    a(f'v_cmpx_gt_u32 vcc, 9, v0')
    a(f'ds_write_b128 v{vT16}, v[{vX}:{vX+3}] offset:17408')
    a('s_mov_b64 exec, s[54:55]')
    a('s_lshr_b32 s56, s2, 3')
    if int(opt.get('rm', 0)):
        a('s_bfe_u32 s43, s2, 0x10002')
        a('s_and_b32 s57, s2, 3')
        a('s_lshl_b32 s58, s56, 2')
    else:
        a('s_bfe_u32 s43, s2, 0x10003')
        a('s_and_b32 s57, s2, 7')
        a('s_lshr_b32 s58, s2, 4')
        a('s_lshl_b32 s58, s58, 3')
    a('s_or_b32 s57, s57, s58')
    a(f'v_add_u32 v1, {L_QS}, v{vT16}')
    a('s_cmp_lg_u32 s43, 0')
    a('s_cbranch_scc1 L_nz')
    for u in range(4): a(f'ds_write_b128 v1, v[{vX}:{vX+3}] offset:{8192*u}')
    a.label('L_nz')
    a(f'v_and_b32 v{vN}, 15, v0')
    a(f'v_bfe_u32 v{vG}, v0, 4, 2')
    a(f'v_and_b32 v{vLN}, 63, v0')
    a(f'v_mov_b32 v{vZ}, 0')
    a(f's_mov_b32 s41, {H}')
    a('s_mov_b32 s40, 0x7fff00')
    a('s_lshl_b32 s42, s3, 14')
    a(f's_add_u32 s42, s42, {LB}')
    a(f's_mul_i32 s58, s57, {CH*4}')
    a(f's_mov_b32 s59, {CH//8}')
    a(f's_cmp_eq_u32 s57, {P-1}')
    a(f's_cselect_b32 s59, {(E-(P-1)*CH)//8}, s59')
    a('s_waitcnt lgkmcnt(0)')
    srd(a, 12, 26, E * 4); srd(a, 20, 28, E * 4)
    srd(a, 16, 36, 256)
    a('s_cmp_lg_u32 s43, 0')
    a('s_cbranch_scc1 L_noedge')
    a('v_cmp_gt_u32 vcc, s59, v0')
    a('s_and_saveexec_b64 s[54:55], vcc')
    a('s_cbranch_execz L_noedge0')
    edge_loads(a, 's58')
    srd(a, 8, 38, 16384)
    a('s_lshl_b32 s46, s57, 7')
    a(f'buffer_load_dwordx2 v[{vTB}:{vTB+1}], v{vZ}, s[8:11], s46 offen sc0 sc1')
    a.label('L_noedge0')
    a('s_mov_b64 exec, s[54:55]')
    a.label('L_noedge')
    srd(a, 4, 24, XB)
    a('s_cmp_lg_u32 s43, 0')
    a('s_cbranch_scc1 L_nob1')
    a('s_barrier')
    a.label('L_nob1')
    SP = int(opt.get('sp', 0)); ES = int(opt.get('es', 0))
    if SP:
        a('s_cmp_eq_u32 s43, 0')
        a('s_cbranch_scc1 L_nsp')
        a(f'v_lshlrev_b32 v1, 1, v{vG}')
        a(f'v_xor_b32 v1, v1, v{vN}')
        a(f'v_lshlrev_b32 v1, 4, v1')
        a(f'v_lshl_add_u32 v{vS}, v{vG}, 19, v1')
        a('s_lshl_b32 s47, s2, 8')
        a('s_lshl_b32 s46, s3, 16')
        a('s_add_u32 s47, s47, s46')
        a(f'v_add_u32 v{vS}, s47, v{vS}')
        for u in range(1, 4):
            a(f'v_add_u32 v{vS+u}, {(u*4<<19)-1024*u}, v{vS}')
            if u & 1: a(f'v_xor_b32 v{vS+u}, 128, v{vS+u}')
        a('s_lshl_b32 s46, s3, 12')
        a(f's_add_u32 m0, s46, {L_XO}')
        a(f'v_lshl_add_u32 v2, v{vG}, 8, v1')
        a('v_xor_b32 v3, 128, v2')
        for u in range(4):
            a(f'buffer_load_dwordx4 v{vS+u}, s[4:7], 0 offen offset:{1024*u} lds')
        srd(a, 8, 30, 32768)
        a('s_add_u32 s46, s56, s3')
        a('s_lshl_b32 s46, s46, 12')
        a('s_and_b32 s46, s46, 0x7000')
        a(f's_add_u32 m0, s46, {L_WQ}')
        a('s_nop 0')
        for u in range(4):
            a(f'buffer_load_dwordx4 v{2+(u>>1)}, s[8:11], s46 offen offset:{1024*u} lds')
        a('s_branch L_tag')
        a.label('L_nsp')
    a('s_cmp_lt_u32 s3, 6')
    a('s_cbranch_scc1 L_nodma')
    a(f'v_lshlrev_b32 v1, 1, v{vG}')
    a(f'v_xor_b32 v1, v1, v{vN}')
    a(f'v_lshlrev_b32 v1, 4, v1')
    a('s_add_u32 s46, s3, s43')
    a('s_cmp_eq_u32 s46, 6')
    a('s_cbranch_scc1 L_nodma')
    a('s_cmp_eq_u32 s46, 8')
    a('s_cbranch_scc1 L_wdma')
    a(f'v_lshl_add_u32 v{vS}, v{vG}, 19, v1')
    a('s_lshl_b32 s47, s2, 8')
    a(f'v_add_u32 v{vS}, s47, v{vS}')
    for u in range(1, 4):
        a(f'v_add_u32 v{vS+u}, {(u*4<<19)-1024*u}, v{vS}')
        if u & 1: a(f'v_xor_b32 v{vS+u}, 128, v{vS+u}')
    a(f's_mov_b32 m0, {L_XO}')
    a('s_mov_b32 s46, 8')
    a.label('L_xl')
    for u in range(4):
        a(f'buffer_load_dwordx4 v{vS+u}, s[4:7], 0 offen offset:{1024*u} lds')
    for u in range(4):
        a(f'v_add_u32 v{vS+u}, 0x10000, v{vS+u}')
    a('s_add_u32 m0, m0, 4096')
    a('s_sub_u32 s46, s46, 1')
    a('s_cmp_lg_u32 s46, 0')
    a('s_cbranch_scc1 L_xl')
    a('s_cmp_eq_u32 s3, 6')
    a('s_cbranch_scc1 L_nodma')
    a.label('L_spin7')
    a(f'ds_read_b32 v2, v{vZ} offset:{L_CNT}')
    a('s_waitcnt lgkmcnt(0)')
    a('v_readfirstlane_b32 s50, v2')
    a(f's_cmp_lt_u32 s50, {int(opt.get("w7", 11))}')
    a('s_cbranch_scc1 L_spin7')
    a.label('L_wdma')
    a(f'v_lshl_add_u32 v2, v{vG}, 8, v1')
    a('v_xor_b32 v3, 128, v2')
    for wi, (lo, base) in enumerate(((30, L_WQ),)):
        srd(a, 8, lo, 32768)
        a('s_lshl_b32 s46, s56, 12')
        a('s_mov_b32 s47, 8')
        a.label(f'L_wl{wi}')
        a('s_and_b32 s46, s46, 0x7000')
        a(f's_add_u32 m0, s46, {base}')
        a('s_sub_u32 s47, s47, 1')
        for u in range(4):
            a(f'buffer_load_dwordx4 v{2+((u>>1) if wi == 0 else (u&1))}, s[8:11], s46 offen offset:{1024*u} lds')
        a('s_add_u32 s46, s46, 4096')
        a('s_cmp_lg_u32 s47, 0')
        a(f's_cbranch_scc1 L_wl{wi}')
    stamp(1)
    a('s_branch L_tagd')
    a.label('L_nodma')
    a('s_cmp_eq_u32 s43, 0')
    a('s_cbranch_scc1 L_prod')
    PF0 = int(opt.get('pf0', 0))
    if PF0 > 0:
        c = PF0 * 2 // 64
        a('s_cmp_ge_u32 s3, 4')
        a('s_cbranch_scc1 L_tag')
        a('s_lshr_b32 s47, s56, 1')
        a('s_lshl_b32 s47, s47, 2')
        a('s_add_u32 s46, s3, s47')
        a(f's_mul_i32 s46, s46, {c*128}')
        a(f'v_lshlrev_b32 v{vS+2}, 7, v{vLN}')
        for u in range((c + 63) // 64):
            a(f'buffer_load_dword v{vPF}, v{vS+2}, s[4:7], s46 offen')
            a(f's_add_u32 s46, s46, 8192')
    a('s_branch L_tag')
    a.label('L_prod')
    a('v_cmp_gt_u32 vcc, s59, v0')
    a('s_and_saveexec_b64 s[54:55], vcc')
    a('s_cbranch_execz L_binned')
    a('s_waitcnt vmcnt(3)')
    a('s_mov_b32 s46, 0x3fc')
    a(f'v_mov_b32 v1, 1')
    for j in range(8):
        a(f'v_lshlrev_b32 v{vCA+j}, 2, v{vA1+8+j}')
        a(f'v_and_b32 v{vCA+j}, s46, v{vCA+j}')
        a(f'ds_add_rtn_u32 v{vRK+j}, v{vCA+j}, v1 offset:{L_PC}')
    a('s_waitcnt vmcnt(1)')
    entries(a, vPE)
    a('s_mov_b64 s[76:77], exec')
    a('s_waitcnt vmcnt(0)')
    a(f'v_readfirstlane_b32 s48, v{vTB}')
    a(f'v_readfirstlane_b32 s49, v{vTB+1}')
    a('s_lshr_b32 s48, s48, 23')
    a('s_lshr_b32 s49, s49, 26')
    a('s_lshl_b32 s49, s49, 9')
    a('s_or_b32 s48, s48, s49')
    a('s_add_u32 s48, s48, 1')
    a('s_bitset1_b32 s48, 15')
    a('s_lshl_b32 s44, s48, 23')
    a('s_lshr_b32 s45, s48, 6')
    a('s_lshl_b32 s45, s45, 23')
    a('s_xor_b32 s52, s44, 0xff800000')
    a('s_xor_b32 s53, s45, 0xff800000')
    a('s_cmp_lg_u32 s3, 0')
    a('s_cbranch_scc1 L_nopub')
    a('s_lshl_b32 s49, s57, 1')
    a('v_mov_b32 v2, s48')
    a('s_mov_b64 exec, 1')
    a(f'buffer_store_short v2, v{vZ}, s[16:19], s49 offen sc0 sc1')
    a('s_mov_b64 exec, s[76:77]')
    a.label('L_nopub')
    a(f's_mov_b32 s46, {L_QS}')
    for j in range(8):
        a(f'v_lshl_add_u32 v{vCA+j}, v{vCA+j}, 5, s46')
    for j in range(8):
        if j == 0: a(f's_waitcnt lgkmcnt(0)')
        a(f'v_lshl_add_u32 v{vCA+j}, v{vRK+j}, 2, v{vCA+j}')
        a(f'v_cmpx_gt_u32 vcc, 32, v{vRK+j}')
        a(f'ds_write_b32 v{vCA+j}, v{vPE+j}')
        a('s_mov_b64 exec, s[76:77]')
    a(f'v_max3_u32 v2, v{vRK}, v{vRK+1}, v{vRK+2}')
    a(f'v_max3_u32 v2, v2, v{vRK+3}, v{vRK+4}')
    a(f'v_max3_u32 v2, v2, v{vRK+5}, v{vRK+6}')
    a(f'v_max_u32 v2, v2, v{vRK+7}')
    a(f'v_cmpx_lt_u32 vcc, 31, v2')
    a(f'ds_write_b32 v{vZ}, v1 offset:{L_OVF}')
    a.label('L_binned')
    a('s_mov_b64 exec, -1')
    a.label('L_tag')
    stamp(1)
    a.label('L_tagd')
    def slotld():
        a(f'buffer_load_dwordx4 v[{vPE}:{vPE+3}], v{vT16}, s[8:11], 0 offen sc0 sc1')
        a(f'buffer_load_dwordx4 v[{vPE+4}:{vPE+7}], v{vX+5}, s[8:11], 0 offen sc0 sc1')
    a('s_lshl_b32 s46, s2, 14')
    srd(a, 8, 38, 16384, add='s46')
    a(f'v_add_u32 v{vX+5}, 0x2000, v{vT16}')
    a('s_cmp_lg_u32 s43, 0')
    a('s_cbranch_scc1 L_copied')
    a('s_cmp_eq_u32 s3, 7')
    a('s_cbranch_scc1 L_copied')
    a('v_mov_b32 v1, 1')
    a('s_mov_b64 exec, 1')
    a('s_waitcnt lgkmcnt(0)')
    a(f'ds_add_u32 v{vZ}, v1 offset:{L_CNT}')
    a('s_mov_b64 exec, -1')
    a('s_cmp_ge_u32 s3, 4')
    a('s_cbranch_scc1 L_copied')
    a(f'v_add_u32 v{vX+4}, {L_QS}, v{vT16}')
    srd(a, 12, 38, 256 * 16384)
    a(f'v_lshrrev_b32 v{vX}, 3, v0')
    a(f'v_and_b32 v{vX+1}, 7, v0')
    a(f'v_lshlrev_b32 v{vX}, 14, v{vX}')
    a(f'v_lshl_add_u32 v{vX}, v{vX+1}, 4, v{vX}')
    a.label('L_spin')
    a(f'ds_read_b32 v1, v{vZ} offset:{L_CNT}')
    a('s_waitcnt lgkmcnt(0)')
    a('v_readfirstlane_b32 s50, v1')
    a('s_cmp_lt_u32 s50, 7')
    a('s_cbranch_scc1 L_spin')
    a(f'ds_read_b32 v1, v{vZ} offset:{L_OVF}')
    for u in range(8): a(f'ds_read_b128 v[{vT+4*u}:{vT+4*u+3}], v{vX+4} offset:{4096*u}')
    a('s_waitcnt lgkmcnt(8)')
    a('v_readfirstlane_b32 s50, v1')
    a('s_cmp_lg_u32 s50, 0')
    a('s_cbranch_scc1 L_ovf')
    a.label('L_copy')
    a('s_lshl_b32 s50, s57, 7')
    for u in range(8):
        a(f's_waitcnt lgkmcnt({7-u})')
        for k in range(4): a(f'v_xor_b32 v{vT+4*u+k}, s{(44,45,52,53)[k]}, v{vT+4*u+k}')
        a(f'buffer_store_dwordx4 v[{vT+4*u}:{vT+4*u+3}], v{vX}, s[12:15], s50 offen sc0 sc1')
        if u < 7: a(f's_add_u32 s50, s50, {1<<19}')
    a('v_mov_b32 v1, 1')
    a('s_mov_b64 exec, 1')
    a(f'ds_add_u32 v{vZ}, v1 offset:{L_CNT}')
    a('s_mov_b64 exec, -1')
    a.label('L_copied')
    stamp(2)
    for i in range(4): a(f'v_mov_b32 v{vX+i}, 0')
    a(f'ds_write_b128 v{vT16}, v[{vX}:{vX+3}]')
    a(f'ds_write_b128 v{vT16}, v[{vX}:{vX+3}] offset:8192')
    a(f'v_and_b32 v1, 7, v{vN}')
    a(f'v_lshlrev_b32 v1, 1, v1')
    a(f'v_xor_b32 v2, v1, v{vG}')
    a(f'v_lshlrev_b32 v2, 4, v2')
    a(f'v_lshl_add_u32 v3, v{vN}, 8, v2')
    a(f'v_add_u32 v{vRB}, {L_XO}, v3')
    a(f'v_and_b32 v3, 3, v{vN}')
    a(f'v_lshrrev_b32 v{vTMP}, 2, v{vN}')
    a(f'v_lshl_add_u32 v{vA1A}, v3, 2, v{vTMP}')
    a(f'v_lshl_add_u32 v{vA1A}, v{vA1A}, 8, v2')
    a(f'v_add_u32 v{vA1A}, s42, v{vA1A}')
    for s in range(1, 4):
        a(f'v_xor_b32 v{vRB+s}, {s<<6}, v{vRB}')
        a(f'v_xor_b32 v{vA1A+s}, {s<<6}, v{vA1A}')
    a(f'v_and_b32 v2, 1, v{vG}')
    a(f'v_lshl_or_b32 v2, v2, 2, v{vTMP}')
    a(f'v_lshlrev_b32 v2, 5, v2')
    a(f'v_lshl_or_b32 v2, v3, 3, v2')
    a(f'v_lshl_add_u32 v{vTRA}, v{vTMP}, 2, v{vG}')
    a(f'v_lshl_add_u32 v{vTRA}, v{vTRA}, 8, v2')
    a(f'v_add_u32 v{vTRA}, s42, v{vTRA}')
    for t in range(1, 8): a(f'v_xor_b32 v{vTRA+t}, {t<<5}, v{vTRA}')
    a(f'v_and_b32 v2, 0xe0, v2')
    a(f'v_lshlrev_b32 v3, 4, v3')
    a(f'v_xor_b32 v2, v2, v3')
    a('s_and_b32 s50, s3, 3')
    a('s_lshl_b32 s50, s50, 6')
    a(f'v_xor_b32 v2, s50, v2')
    a(f'v_lshl_add_u32 v{vX+6}, v{vG}, 3, v{vTMP}')
    a(f'v_lshl_add_u32 v{vX+6}, v{vX+6}, 8, v2')
    a(f'v_add_u32 v{vX+6}, {L_WQ}, v{vX+6}')
    a(f'v_lshl_add_u32 v{vX+7}, v{vG}, 2, v{vTMP}')
    a(f'v_lshl_add_u32 v{vX+7}, v{vX+7}, 8, v2')
    a(f'v_add_u32 v{vX+7}, {L_WV}, v{vX+7}')
    a(f'v_and_b32 v2, 1, v{vG}')
    a(f'v_lshlrev_b32 v2, 3, v2')
    a(f'v_xor_b32 v2, v2, v{vN}')
    a(f'v_lshlrev_b32 v{vGO}, 4, v2')
    for j in range(1, 4): a(f'v_xor_b32 v{vGO+j}, {j<<5}, v{vGO}')
    a('s_lshl_b32 s51, s3, 4')
    a('s_add_u32 s51, s51, 1')
    a(f'v_add_u32 v{vKEY}, s51, v{vN}')
    a('s_lshr_b32 s51, s3, 2')
    a('s_lshl_b32 s51, s51, 14')
    for s in range(4): a(f'v_add_u32 v{vX+8+s}, s51, v{vRB+s}')
    a(f'v_xor_b32 v1, s50, v{vX+8}')
    a(f'v_add_u32 v1, {L_QS-L_XO}, v1')
    if SP:
        a('s_lshl_b32 s46, s43, 3')
        a('s_add_u32 s46, s46, s3')
        a('s_cmp_lt_u32 s46, 6')
    else:
        a('s_cmp_lt_u32 s3, 6')
    a('s_cbranch_scc1 L_w4')
    a('s_waitcnt vmcnt(0)')
    a.label('L_w4')
    a('s_waitcnt lgkmcnt(0)')
    a('s_barrier')
    stamp(1, 2)
    a('s_cmp_lg_u32 s3, 0')
    a('s_cbranch_scc1 L_nt1')
    a(f'v_lshlrev_b32 v2, 2, v0')
    a(f'buffer_load_dword v3, v2, s[16:19], 0 offen sc0 sc1')
    a.label('L_nt1')
    srd(a, 12, 32, 32768)
    a('s_lshl_b32 s46, s3, 12')
    a(f's_add_u32 m0, s46, {L_WV}')
    a(f'v_lshlrev_b32 v{vS}, 1, v{vG}')
    a(f'v_xor_b32 v{vS}, v{vS}, v{vN}')
    a(f'v_lshlrev_b32 v{vS}, 4, v{vS}')
    a(f'v_lshl_add_u32 v{vS}, v{vG}, 8, v{vS}')
    a(f'v_xor_b32 v{vS+1}, 128, v{vS}')
    for u in range(4):
        a(f'buffer_load_dwordx4 v{vS+(u&1)}, s[12:15], s46 offen offset:{1024*u} lds')
    def prefetch(r0, rows, fixed=None):
        c = rows * 2 // 256
        ni = (c + 63) // 64
        a('s_lshl_b32 s47, s56, 3')
        a('s_add_u32 s46, s3, s47')
        a(f's_mul_i32 s46, s46, {c*128}')
        a(f's_add_u32 s46, s46, {r0*256}')
        a(f'v_lshlrev_b32 v{vS+2}, 7, v{vLN}')
        for u in range(fixed or ni):
            n = max(1, min(64, c - 64 * u))
            if n < 64: a(f's_mov_b64 exec, {hex((1 << n) - 1)}')
            a(f'buffer_load_dword v{vPF}, v{vS+2}, s[4:7], s46 offen')
            if n < 64: a('s_mov_b64 exec, -1')
            if c > 64 * (u + 1): a(f's_add_u32 s46, s46, 8192')
    PF1 = int(opt.get('pf1', 0)); NPF = 2
    if PF1 > 0:
        c = PF1 * 2 // 128
        NPF = (c + 63) // 64
        a('s_lshr_b32 s47, s56, 1')
        a('s_lshl_b32 s47, s47, 3')
        a('s_add_u32 s46, s3, s47')
        a(f's_mul_i32 s46, s46, {c*128}')
        a(f's_add_u32 s46, s46, {PF0*256}')
        a(f'v_lshlrev_b32 v{vS+2}, 7, v{vLN}')
        a('s_cmp_lg_u32 s43, 0')
        a('s_cselect_b64 exec, -1, 1')
        for u in range(NPF):
            a(f'buffer_load_dword v{vPF}, v{vS+2}, s[4:7], s46 offen')
            a(f's_add_u32 s46, s46, 8192')
        a('s_mov_b64 exec, -1')
    elif int(opt.get('opf', 0)):
        srd(a, 12, 24, PFN * 256)
        a('s_lshl_b32 s47, s56, 3')
        a('s_add_u32 s46, s3, s47')
        a(f's_mul_i32 s46, s46, 8192')
        a(f'v_mul_u32_u24 v{vS+2}, 128, v{vLN}')
        a(f'v_add_u32 v{vS+2}, s46, v{vS+2}')
        a(f'v_add_u32 v{vS+3}, 2097152, v{vS+2}')
        a(f'buffer_load_dword v{vPF}, v{vS+2}, s[12:15], 0 offen')
        a(f'buffer_load_dword v{vPF}, v{vS+3}, s[12:15], 0 offen')
    elif PFN > 0:
        prefetch(PF0, PFN, 2)
    else:
        slotld()
    for h in range(2):
        for k in range(8):
            r = vQB + 16 * h + 2 * k
            a(f'ds_read_b64_tr_b16 v[{r}:{r+1}], v{vX+6} offset:{8192*(k>>1)+1024*(k&1)+8*h}')
        a('s_waitcnt lgkmcnt(3)')
    gemm4(a, vQB, vX + 8, lambda T: 4096 * T, vACC)
    if ES:
        slotld(); NPF += 2
    a('s_nop 4')
    a('s_mov_b32 s51, 0xbe0293ee')
    for T in range(4):
        for r in range(8): a(f'v_mul_f32 v{vACC+8*T+r}, s51, v{vACC+8*T+r}')
        for r in range(4): a(f'v_cvt_pk_bf16_f32 v{vA1+4*T+r}, v{vACC+8*T+2*r}, v{vACC+8*T+2*r+1}')
        a(f'ds_write_b128 v1, v[{vA1+4*T}:{vA1+4*T+3}] offset:{4096*T}')
    for i in range(32): a(f'v_mov_b32 v{vACC+i}, 0')
    a('s_lshl_b32 s51, s3, 12')
    a(f's_add_u32 s51, s51, {L_QS-L_XO}')
    for s in range(4): a(f'v_add_u32 v{vX+s}, s51, v{vRB+s}')
    a(f's_waitcnt vmcnt({NPF})')
    a('s_cmp_lg_u32 s3, 0')
    a('s_cbranch_scc1 L_nt2')
    a(f's_mov_b32 s50, {TMO}')
    a('s_mov_b32 s51, 0x80008000')
    a.label('L_tp')
    a(f'v_and_b32 v1, s51, v3')
    a('v_cmp_ne_u32 vcc, s51, v1')
    a('s_cbranch_vccz L_tp2')
    a(f'buffer_load_dword v3, v2, s[16:19], 0 offen sc0 sc1')
    a('s_waitcnt vmcnt(0)')
    a('s_sub_u32 s50, s50, 1')
    a('s_cbranch_scc0 L_tp')
    a.label('L_tp2')
    a(f'ds_write_b32 v2, v3 offset:{L_TAGS}')
    a.label('L_nt2')
    stamp(2, 2)
    srd(a, 16, 34, XB)
    a(f'v_lshrrev_b32 v1, 2, v0')
    a(f'v_and_b32 v1, 0x7e, v1')
    a('s_waitcnt lgkmcnt(0)')
    a('s_barrier')
    a(f'ds_read_u16 v2, v1 offset:{L_TAGS}')
    a(f'ds_read_u16 v3, v1 offset:{L_TAGS+128}')
    for s in range(4): a(f'ds_read_b128 v[{vQB+4*s}:{vQB+4*s+3}], v{vX+s}')
    if PFN > 0 and not ES:
        slotld()
    stamp(3)
    for h in range(2):
        for k in range(8):
            r = vWV + 16 * h + 2 * k
            a(f'ds_read_b64_tr_b16 v[{r}:{r+1}], v{vX+7} offset:{8192*(k>>1)+4096*(k&1)+8*h}')
        if h == 0: a('s_waitcnt lgkmcnt(7)')
    a(f's_mov_b32 s50, {TMO}')
    a('s_mov_b32 s51, 0xff800000')
    for h in range(2):
        a(f'v_lshlrev_b32 v{vTB+4*h}, 23, v{2+h}')
        a(f'v_lshrrev_b32 v{vTB+4*h+1}, 6, v{2+h}')
        a(f'v_lshlrev_b32 v{vTB+4*h+1}, 23, v{vTB+4*h+1}')
        a(f'v_xor_b32 v{vTB+4*h+2}, s51, v{vTB+4*h}')
        a(f'v_xor_b32 v{vTB+4*h+3}, s51, v{vTB+4*h+1}')
    a('v_and_b32 v2, v2, v3')
    a('v_cmp_gt_u32 vcc, 0x8000, v2')
    a('s_cbranch_vccnz L_fail')
    a('s_mov_b32 s51, 0x800000')
    a.label('L_poll')
    a('s_waitcnt vmcnt(0)')
    for j in range(8): a(f'v_xor_b32 v{vRK+j}, v{vTB+j}, v{vPE+j}')
    a(f'v_or3_b32 v1, v{vRK}, v{vRK+1}, v{vRK+2}')
    a(f'v_or3_b32 v2, v{vRK+4}, v{vRK+5}, v{vRK+6}')
    a(f'v_or3_b32 v1, v1, v{vRK+3}, v{vRK+7}')
    a(f'v_or_b32 v1, v1, v2')
    a('v_cmpx_le_u32 vcc, s51, v1')
    a('s_cbranch_execz L_got')
    a(f'buffer_load_dwordx4 v[{vPE}:{vPE+3}], v{vT16}, s[8:11], 0 offen sc0 sc1')
    a(f'buffer_load_dwordx4 v[{vPE+4}:{vPE+7}], v{vX+5}, s[8:11], 0 offen sc0 sc1')
    a('s_sub_u32 s50, s50, 1')
    a('s_cbranch_scc0 L_poll')
    a('s_mov_b64 exec, -1')
    a.label('L_fail')
    a('s_waitcnt vmcnt(0)')
    a('s_lshl_b32 s50, s3, 3')
    a('s_lshl_b32 s50, 0xff, s50')
    a('s_and_b32 s51, s3, 4')
    a('v_mov_b32 v1, s50')
    a('v_mov_b32 v2, s51')
    a(f'ds_or_b32 v2, v1 offset:{L_RS}')
    a(f'ds_or_b32 v2, v1 offset:{L_RS+8}')
    for j in range(8): a(f'v_mov_b32 v{vRK+j}, 0')
    a.label('L_got')
    a('s_mov_b64 exec, -1')
    stamp(4)
    if PF2 > 0: prefetch(PFN, PF2)
    a(f'v_cmp_eq_u32 vcc, 0x70, v{vRK}')
    a(f'v_cmp_eq_u32 s[50:51], v{vRK+4}, v{vRK+5}')
    a.lines.pop()
    a(f'v_mov_b32 v1, 0x70')
    a(f'v_cmp_eq_u32 s[50:51], v1, v{vRK+4}')
    for j in range(8): a(f'v_mov_b32 v{vPE+j}, v{vRK+j}')
    a('s_or_b64 s[54:55], vcc, s[50:51]')
    a('s_cbranch_scc1 L_mark')
    if NS:
        a.label('L_place')
        a('v_mov_b32 v1, 1')
        for j in range(8):
            a(f'v_lshrrev_b32 v{vCA+j}, 2, v{vPE+j}')
            a(f'v_and_b32 v{vCA+j}, 0x1c, v{vCA+j}')
            a(f'v_mov_b32 v{vRK+j}, -1')
            a(f'v_cmpx_ne_u32 vcc, 0, v{vPE+j}')
            a(f'ds_add_rtn_u32 v{vRK+j}, v{vCA+j}, v1 offset:{L_C+32}')
            a('s_mov_b64 exec, -1')
        for j in range(8): a(f'v_lshlrev_b32 v{vTB+j}, 9, v{vCA+j}')
        a('s_lshl_b32 s50, s3, 2')
        a('v_mov_b32 v3, s50')
        a(f's_mov_b32 s51, {CAP}')
        for j in range(8):
            if j == 0: a(f's_waitcnt lgkmcnt(0)')
            a(f'v_lshl_add_u32 v{vTB+j}, v{vRK+j}, 2, v{vTB+j}')
            a(f'v_cmpx_gt_u32 vcc, s51, v{vRK+j}')
            a(f'ds_write_b32 v{vTB+j}, v{vPE+j}')
            a(f'v_mov_b32 v{vPE+j}, 0')
            a('s_mov_b64 exec, -1')
    else:
        a.label('L_place')
        a('v_mov_b32 v1, 1')
        for j in range(8):
            a(f'v_lshrrev_b32 v{vCA+j}, 2, v{vPE+j}')
            a(f'v_and_b32 v{vCA+j}, 0x3c, v{vCA+j}')
            a(f'v_mov_b32 v{vRK+j}, -1')
            a(f'v_cmpx_ne_u32 vcc, 0, v{vPE+j}')
            a(f'ds_add_rtn_u32 v{vRK+j}, v{vCA+j}, v1 offset:{L_C+32}')
            a('s_mov_b64 exec, -1')
        for j in range(8):
            a(f'v_and_b32 v{vTB+j}, 0x1c, v{vCA+j}')
            a(f'v_lshlrev_b32 v{vTB+j}, 9, v{vTB+j}')
        a('s_lshl_b32 s50, s3, 2')
        a('v_mov_b32 v3, s50')
        a(f's_mov_b32 s51, {CAP}')
        a('s_waitcnt lgkmcnt(0)')
        a('s_barrier')
        for j in range(8): a(f'ds_read_b32 v{vCA+j}, v{vCA+j} offset:{L_C}')
        a(f'ds_read2_b32 v[{vX}:{vX+1}], v3 offset0:0 offset1:8') ; a.lines.pop()
        a(f'ds_read_b32 v{vX}, v3 offset:{L_C+32}')
        a(f'ds_read_b32 v{vX+1}, v3 offset:{L_C+64}')
        for j in range(8):
            if j == 0: a(f's_waitcnt lgkmcnt(0)')
            a(f'v_add_u32 v{vRK+j}, v{vRK+j}, v{vCA+j}')
            a(f'v_lshl_add_u32 v{vTB+j}, v{vRK+j}, 2, v{vTB+j}')
            a(f'v_and_b32 v{vCA+j}, 0xffffff7f, v{vPE+j}')
            a(f'v_cmpx_gt_u32 vcc, s51, v{vRK+j}')
            a(f'ds_write_b32 v{vTB+j}, v{vCA+j}')
            a(f'v_mov_b32 v{vPE+j}, 0')
            a('s_mov_b64 exec, -1')
    a(f'v_or3_b32 v1, v{vPE}, v{vPE+1}, v{vPE+2}')
    a(f'v_or3_b32 v1, v1, v{vPE+3}, v{vPE+4}')
    a(f'v_or3_b32 v1, v1, v{vPE+5}, v{vPE+6}')
    a(f'v_or_b32 v1, v1, v{vPE+7}')
    a('v_cmpx_ne_u32 vcc, 0, v1')
    a(f'ds_write_b32 v{vZ}, v1 offset:{L_SLOW}')
    a('s_mov_b64 exec, -1')
    if not NS: a(f'v_add_u32 v{vX}, v{vX}, v{vX+1}')
    a('s_lshl_b32 s50, s3, 11')
    a(f'v_lshl_add_u32 v{vLA}, v{vG}, 5, s50')
    if not NS: a(f'v_readfirstlane_b32 s53, v{vX}')
    a('s_waitcnt lgkmcnt(0)')
    a('s_barrier')
    if NS: a(f'ds_read_b32 v2, v3 offset:{L_C+32}')
    eread(a, 0, 0)
    eread(a, 1, 128)
    a(f'ds_read_b32 v1, v{vZ} offset:{L_SLOW}')
    a(f'ds_read_b128 v[{vX}:{vX+3}], v{vZ} offset:{L_RS}')
    if NS:
        a('s_waitcnt lgkmcnt(6)')
        a('v_readfirstlane_b32 s53, v2')
    a('s_min_u32 s53, s53, s51')
    a('s_add_u32 s53, s53, 31')
    a('s_lshr_b32 s53, s53, 5')
    stamp(5)
    a('s_cmp_eq_u32 s53, 0')
    a('s_cbranch_scc1 L_noi')
    a('s_waitcnt lgkmcnt(4)')
    issue(a, 0)
    a('s_cmp_eq_u32 s53, 1')
    a('s_cbranch_scc1 L_noi')
    a('s_waitcnt lgkmcnt(2)')
    issue(a, 1)
    a.label('L_noi')
    a('s_waitcnt lgkmcnt(0)')
    a('v_readfirstlane_b32 s52, v1')
    for i in range(4): a(f'v_readfirstlane_b32 s{76+i}, v{vX+i}')
    a('s_cmp_eq_u32 s53, 0')
    a('s_cbranch_scc1 L_done')
    a.label('L_loop')
    body(a, 0, opt)
    body(a, 1, opt)
    a('s_branch L_loop')
    a.label('L_done')
    stamp(6)
    a('s_or_b64 s[54:55], s[76:77], s[78:79]')
    a('s_or_b32 s54, s54, s55')
    a('s_or_b32 s54, s54, s52')
    a('s_cbranch_scc1 L_slow')
    a(f's_sub_u32 s50, s42, {L_XO}')
    a('s_lshr_b32 s51, s3, 2')
    a('s_lshl_b32 s51, s51, 16')
    a(f's_add_u32 s51, s51, {(LB-L_XO)&0xffffffff}')
    for s in range(4):
        for r in range(4): a(f'v_cvt_pk_bf16_f32 v{vA1+4*s+r}, v{vACC+8*s+2*r}, v{vACC+8*s+2*r+1}')
        a(f'v_add_u32 v2, s50, v{vRB+s}')
        a(f'ds_write_b128 v2, v[{vA1+4*s}:{vA1+4*s+3}]')
        a(f'v_add_u32 v{vX+s}, s51, v{vRB+s}')
    a(f'v_lshlrev_b32 v1, 19, v{vN}')
    a(f'v_lshl_add_u32 v1, v{vG}, 4, v1')
    a('s_lshl_b32 s50, s2, 8')
    a('s_and_b32 s51, s3, 3')
    a('s_lshl_b32 s51, s51, 6')
    a('s_add_u32 s50, s50, s51')
    a('s_lshr_b32 s51, s3, 2')
    a('s_lshl_b32 s51, s51, 18')
    a('s_add_u32 s50, s50, s51')
    a('v_add_u32 v1, s50, v1')
    a('s_waitcnt lgkmcnt(0)')
    a('s_barrier')
    gemm4(a, vWV, vX, lambda T: 16384 * T, vACC)
    for T in range(4):
        if T == 3: a('s_nop 4')
        for r in range(4): a(f'v_cvt_pk_bf16_f32 v{vA1+4*T+r}, v{vACC+8*T+2*r}, v{vACC+8*T+2*r+1}')
        a(f'buffer_store_dwordx4 v[{vA1+4*T}:{vA1+4*T+3}], v1, s[16:19], 0 offen')
        if T < 3: a('v_add_u32 v1, 0x10000, v1')
    if DG:
        a('s_waitcnt vmcnt(0)')
        stamp(7)
        a('s_waitcnt lgkmcnt(0)')
        srd(a, 8, 38, 1 << 20, add=200 << 20)
        a('s_lshl_b32 s60, s2, 3')
        a('s_add_u32 s60, s60, s3')
        a('s_lshl_b32 s60, s60, 5')
        for i in range(8): a(f'v_mov_b32 v{16+i}, s{80+2*i}')
        a('v_mov_b32 v12, 0')
        a(f'v_cmpx_eq_u32 vcc, 0, v{vLN}')
        a('buffer_store_dwordx4 v[16:19], v12, s[8:11], s60 offen')
        a('buffer_store_dwordx4 v[20:23], v12, s[8:11], s60 offen offset:16')
    a.label('L_end')
    a('s_endpgm')
    a.label('L_ovf')
    a(f'v_lshrrev_b32 v1, 1, v0')
    a(f'v_and_b32 v1, 0xfc, v1')
    for u in range(8): a(f'ds_read_b32 v{vRK+u}, v1 offset:{L_PC+128*u}')
    a('s_waitcnt lgkmcnt(0)')
    for u in range(8):
        a(f'v_cmpx_lt_u32 vcc, 32, v{vRK+u}')
        a(f'v_mov_b32 v{vT+4*u}, 0x70')
        for k in range(1, 4): a(f'v_mov_b32 v{vT+4*u+k}, 0')
        a('s_mov_b64 exec, -1')
    a('s_branch L_copy')
    a.label('L_mark')
    a('v_lshrrev_b32 v1, 3, v0')
    a('v_lshlrev_b32_e64 v2, v1, 1')
    a('v_lshrrev_b32 v1, 3, v1')
    a('v_and_b32 v1, 4, v1')
    a('s_mov_b64 exec, vcc')
    a(f'ds_or_b32 v1, v2 offset:{L_RS}')
    a(f'v_mov_b32 v{vPE}, 0')
    a('s_mov_b64 exec, s[50:51]')
    a(f'ds_or_b32 v1, v2 offset:{L_RS+8}')
    a(f'v_mov_b32 v{vPE+4}, 0')
    a('s_mov_b64 exec, -1')
    a('s_branch L_place')
    a.label('L_slow')
    a('s_barrier')
    for i in range(4): a(f'v_mov_b32 v{vX+i}, 0')
    a(f'ds_write_b128 v{vT16}, v[{vX}:{vX+3}]')
    a(f'ds_write_b128 v{vT16}, v[{vX}:{vX+3}] offset:8192')
    a('s_cmp_lg_u32 s52, 0')
    a('s_cbranch_scc1 L_slow_go')
    a('s_cmp_eq_u64 s[76:77], 0')
    a('s_cbranch_scc1 L_slow_hi')
    a('s_ff1_i32_b64 s57, s[76:77]')
    a('s_bitset0_b64 s[76:77], s57')
    a('s_branch L_slow_ld')
    a.label('L_slow_hi')
    a('s_ff1_i32_b64 s57, s[78:79]')
    a('s_bitset0_b64 s[78:79], s57')
    a('s_add_u32 s57, s57, 64')
    a.label('L_slow_ld')
    srd(a, 12, 26, E * 4)
    a(f's_mul_i32 s58, s57, {CH*4}')
    a(f's_mov_b32 s59, {CH//8}')
    a(f's_cmp_eq_u32 s57, {P-1}')
    a(f's_cselect_b32 s59, {(E-(P-1)*CH)//8}, s59')
    edge_loads(a, 's58')
    a('s_waitcnt vmcnt(0)')
    entries(a, vPE)
    a('v_cmp_gt_u32 s[54:55], s59, v0')
    for j in range(8):
        a(f'v_and_b32 v1, 0xff, v{vA1+8+j}')
        a('v_cmp_eq_u32 vcc, s2, v1')
        a('s_and_b64 vcc, vcc, s[54:55]')
        a('s_nop 1')
        a(f'v_cndmask_b32 v{vPE+j}, 0, v{vPE+j}, vcc')
    a.label('L_slow_go')
    for i in range(4): a(f'v_mov_b32 v{vS+i}, s{76+i}')
    a(f'v_cmp_gt_u32 vcc, 7, v0')
    a('s_and_saveexec_b64 s[54:55], vcc')
    for i in range(4): a(f'v_mov_b32 v{vX+i}, 0')
    a(f'ds_write_b128 v{vT16}, v[{vX}:{vX+3}] offset:{L_C}')
    a(f'ds_write_b128 v{vZ}, v[{vS}:{vS+3}] offset:{L_RS}')
    a('s_mov_b64 exec, -1')
    a('s_waitcnt lgkmcnt(0)')
    a('s_barrier')
    a('s_branch L_place')
    return a

HDR = open('cdna_kernels/%s.s.ref' % NAME).read().split('; Override')[0]
def build(opt):
    a = kern(opt)
    for e in check(a.lines, 'k'): print('HAZARD', e)
    t = HDR + f'; @launch grid=(256,1,1) block=(512,1,1) lds={LDS}\n'
    t += '.amdgcn_target "amdgcn-amd-amdhsa--gfx950"\n.text\n'
    t += f'.globl {NAME}_kernel\n.p2align 8\n.type {NAME}_kernel,@function\n' + a.text()
    t += f'''.section .rodata,"a"
.p2align 6
.amdhsa_kernel {NAME}_kernel
  .amdhsa_next_free_vgpr {NV}
  .amdhsa_next_free_sgpr 100
  .amdhsa_accum_offset {(NV+3)//4*4}
  .amdhsa_group_segment_fixed_size 0
  .amdhsa_kernarg_size 64
  .amdhsa_user_sgpr_count 2
  .amdhsa_user_sgpr_kernarg_segment_ptr 1
  .amdhsa_system_sgpr_workgroup_id_x 1
.end_amdhsa_kernel
'''
    return t
if __name__ == '__main__':
    out = sys.argv[1] if len(sys.argv) > 1 else f'cdna_kernels/{NAME}.s'
    opt = dict(kv.split('=', 1) for kv in sys.argv[2:])
    open(out, 'w').write(build(opt))
```

```python
import sys
sys.path.insert(0, 'gen')
from asmlib import Asm, check
N = 25000; E = 400000; XB = N * 256
CH = 3128; P = 128
NAME = 'standalone__kernel_systems_refs_featgraph__graph'
L_LIST = 0; L_PC = 16384; L_C = 17408; LB = 18432
L_SLOW = L_C + 96; L_OVF = L_C + 100; L_CNT = L_C + 128; L_TAGS = L_C + 256; L_TAG = L_C + 104; L_RS = L_C + 112
L_WQ = LB; L_WV = LB + 32768; L_XO = LB + 65536; L_QS = LB + 98304
LDS = LB + 131072
CAP = 384
vGO = 4; vA1A = 8; vTRA = 12; vKEY = 20; vLA = 21; vZ = 22; vT16 = 23; vRB = 24
vN = 28; vG = 29; vLN = 30; vTMP = 31
vACC = 32; vQB = 64; vWV = 196; vA1 = 96; vT = 128; vS = 160; vE = 168; vB = 184; vAD = 188
vPE = 228; vRK = 112; vCA = 120; vTB = 144; vX = 236; vPF = 251
NV = 252
sM = 60

def srd(a, d, lo, nrec, add=None):
    if add is None:
        a(f's_mov_b32 s{d}, s{lo}')
        a(f's_and_b32 s{d+1}, s{lo+1}, 0xffff')
    else:
        a(f's_add_u32 s{d}, s{lo}, {add}')
        a(f's_addc_u32 s{d+1}, s{lo+1}, 0')
        a(f's_and_b32 s{d+1}, s{d+1}, 0xffff')
    a(f's_mov_b32 s{d+2}, {nrec}')
    a(f's_mov_b32 s{d+3}, 0x20000')

def mf(d, A, B, C): return f'v_mfma_f32_16x16x32_bf16 v[{d}:{d+3}], v[{A}:{A+3}], v[{B}:{B+3}], {C}'

def edge_loads(a, soff):
    a(f'v_lshlrev_b32 v{vX}, 5, v0')
    a(f'buffer_load_dwordx4 v[{vA1+8}:{vA1+11}], v{vX}, s[20:23], {soff} offen')
    a(f'buffer_load_dwordx4 v[{vA1+12}:{vA1+15}], v{vX}, s[20:23], {soff} offen offset:16')
    a(f'buffer_load_dwordx4 v[{vA1}:{vA1+3}], v{vX}, s[12:15], {soff} offen')
    a(f'buffer_load_dwordx4 v[{vA1+4}:{vA1+7}], v{vX}, s[12:15], {soff} offen offset:16')

def entries(a, dst):
    a(f'v_mov_b32 v{vX+1}, 0x81')
    for j in range(8):
        a(f'v_cmp_le_u32 s[{sM+2*j}:{sM+2*j+1}], s41, v{vA1+j}')
    for j in range(8):
        s, d = vA1 + j, vA1 + 8 + j
        a(f'v_lshrrev_b32 v{vX+2}, 4, v{d}')
        a(f'v_and_b32 v{vX+2}, 0x70, v{vX+2}')
        a(f'v_lshl_or_b32 v{dst+j}, v{s}, 8, v{vX+2}')
        a(f'v_lshrrev_b32 v{vX+2}, 11, v{d}')
        a(f'v_cndmask_b32 v{vX+3}, 1, v{vX+1}, s[{sM+2*j}:{sM+2*j+1}]')
        a(f'v_add3_u32 v{dst+j}, v{dst+j}, v{vX+2}, v{vX+3}')

def issue(a, b, fill=None):
    for j in range(8):
        if j == 0: a(f's_add_u32 m0, s42, {8192*b}')
        else: a('s_add_u32 m0, m0, 1024')
        a(f'v_and_or_b32 v{vAD+j}, v{vE+8*b+j}, s40, v{vGO+(j&3)}')
        a(f'buffer_load_dwordx4 v{vAD+j}, s[4:7], 0 offen lds')
        if fill: fill()

def eread(a, b, off):
    a(f'ds_read_b128 v[{vE+8*b}:{vE+8*b+3}], v{vLA} offset:{off}')
    a(f'ds_read_b128 v[{vE+8*b+4}:{vE+8*b+7}], v{vLA} offset:{off+16}')

def gemm4(a, A, addr, offs, D):
    order = [(T, s) for T in range(4) for s in range(4)]
    def rd(i):
        T, s = order[i]
        r = vA1 + 4 * i
        a(f'ds_read_b128 v[{r}:{r+3}], v{addr+s} offset:{offs(T)}')
    for i in range(12): rd(i)
    for i, (T, s) in enumerate(order):
        a(f's_waitcnt lgkmcnt({min(15, i+11) - i})')
        r = vA1 + 4 * i
        for h in range(2):
            d = D + 4 * (2 * T + h)
            a(mf(d, A + 16 * h + 4 * s, r, '0' if s == 0 else f'v[{d}:{d+3}]'))
        if i + 12 < 16: rd(i + 12)

def body(a, b, opt):
    tr = lambda k: f'ds_read_b64_tr_b16 v[{vT+2*k}:{vT+2*k+1}], v{vTRA+(k>>1)} offset:{8192*b+4096*(k&1)}'
    a('s_cmp_eq_u32 s53, 1')
    a(f's_cbranch_scc1 W0_{b}')
    a('s_waitcnt vmcnt(8)')
    a(f's_branch W1_{b}')
    a.label(f'W0_{b}')
    a('s_waitcnt vmcnt(0)')
    a.label(f'W1_{b}')
    for bb in range(2):
        for s in range(4):
            r = vA1 + 16 * bb + 4 * s
            a(f'ds_read_b128 v[{r}:{r+3}], v{vA1A+s} offset:{8192*b+4096*bb}')
    for j in range(8):
        a(f'v_cmp_eq_u32_sdwa s[{sM+2*j}:{sM+2*j+1}], v{vE+8*b+j}, v{vKEY} src0_sel:BYTE_0 src1_sel:DWORD')
    eread(a, b, 256 + 128 * b)
    for k in range(5): a(tr(k))
    a('s_waitcnt lgkmcnt(11)')
    for s in range(4): a(mf(vS, vA1 + 4 * s, vQB + 4 * s, '0' if s == 0 else f'v[{vS}:{vS+3}]'))
    for k in range(5, 9): a(tr(k))
    a('s_waitcnt lgkmcnt(11)')
    for s in range(4): a(mf(vS + 4, vA1 + 16 + 4 * s, vQB + 4 * s, '0' if s == 0 else f'v[{vS+4}:{vS+7}]'))
    for k in range(9, 13): a(tr(k))
    a('s_waitcnt lgkmcnt(11)')
    for k in range(13, 16): a(tr(k))
    if b == 1: a(f'v_add_u32 v{vLA}, 256, v{vLA}')
    for j in range(4): a(f'v_exp_f32 v{vS+j}, v{vS+j}')
    sig = [f'v_exp_f32 v{vS+j}, v{vS+j}' for j in range(4, 8)]
    sig += [f'v_add_f32 v{vS+j}, 1.0, v{vS+j}' for j in range(8)]
    sig += [f'v_rcp_f32 v{vS+j}, v{vS+j}' for j in range(8)]
    sig += [f'v_cndmask_b32 v{vS+j}, 0, v{vS+j}, s[{sM+2*j}:{sM+2*j+1}]' for j in range(8)]
    sig += [f'v_cvt_pk_bf16_f32 v{vB+u}, v{vS+2*u}, v{vS+2*u+1}' for u in range(4)]
    a('s_cmp_lt_u32 s53, 3')
    a(f's_cbranch_scc1 NI_{b}')
    a('s_waitcnt lgkmcnt(0)')
    it = iter(sig)
    def fill():
        for _ in range(3):
            x = next(it, None)
            if x: a(x)
    issue(a, b, fill)
    for x in it: a(x)
    a(f's_branch DI_{b}')
    a.label(f'NI_{b}')
    a('s_nop 1')
    for x in sig: a(x)
    a('s_waitcnt lgkmcnt(0)')
    a.label(f'DI_{b}')
    a('s_sub_u32 s53, s53, 1')
    a('s_cmp_eq_u32 s53, 0')
    for t in range(8):
        a(mf(vACC + 4 * t, vT + 4 * t, vB, f'v[{vACC+4*t}:{vACC+4*t+3}]'))
    a('s_cbranch_scc1 L_done')

def kern(opt):
    a = Asm()
    DG = opt.get('diag'); H = int(opt.get('H', 12544)); PFS = int(opt.get('pfs', 128)); PFN = int(opt.get('pfn', H))
    TMO = int(opt.get('tmo', 4000)); NS = int(opt.get('ns', 0)); PF2 = int(opt.get('pf2', 0))
    if NS: H = 1 << 20
    def stamp(i, m=None):
        if DG == '2' and i in (1, 2) and m is None: return
        if DG != '2' and m is not None: return
        if DG: a(f's_memrealtime s[{80+2*i}:{81+2*i}]')
    a.label(f'{NAME}_kernel')
    a('s_cmp_ge_u32 s2, 256')
    a('s_cbranch_scc1 L_end')
    a('s_load_dwordx16 s[24:39], s[0:1], 0')
    stamp(0)
    a('v_lshrrev_b32 v1, 6, v0')
    a(f'v_lshlrev_b32 v{vT16}, 4, v0')
    a('v_readfirstlane_b32 s3, v1')
    for i in range(4): a(f'v_mov_b32 v{vX+i}, 0')
    a(f'v_cmp_gt_u32 vcc, 64, v0')
    a('s_and_saveexec_b64 s[54:55], vcc')
    a(f'ds_write_b128 v{vT16}, v[{vX}:{vX+3}] offset:16384')
    a(f'v_cmpx_gt_u32 vcc, 9, v0')
    a(f'ds_write_b128 v{vT16}, v[{vX}:{vX+3}] offset:17408')
    a('s_mov_b64 exec, s[54:55]')
    a('s_lshr_b32 s56, s2, 3')
    if int(opt.get('rm', 0)):
        a('s_bfe_u32 s43, s2, 0x10002')
        a('s_and_b32 s57, s2, 3')
        a('s_lshl_b32 s58, s56, 2')
    else:
        a('s_bfe_u32 s43, s2, 0x10003')
        a('s_and_b32 s57, s2, 7')
        a('s_lshr_b32 s58, s2, 4')
        a('s_lshl_b32 s58, s58, 3')
    CM = int(opt.get('cm', 0))
    if CM & 1:
        a('s_and_b32 s57, s2, 7')
        a('s_lshl_b32 s57, s57, 4')
        a('s_lshr_b32 s58, s2, 4')
    a('s_or_b32 s57, s57, s58')
    if DG: a('s_mov_b32 s97, s2')
    if CM & 2:
        a('s_and_b32 s2, s2, 7')
        a('s_lshl_b32 s2, s2, 5')
        a('s_or_b32 s2, s2, s56')
    a(f'v_add_u32 v1, {L_QS}, v{vT16}')
    a('s_cmp_lg_u32 s43, 0')
    a('s_cbranch_scc1 L_nz')
    for u in range(4): a(f'ds_write_b128 v1, v[{vX}:{vX+3}] offset:{8192*u}')
    a.label('L_nz')
    a(f'v_and_b32 v{vN}, 15, v0')
    a(f'v_bfe_u32 v{vG}, v0, 4, 2')
    a(f'v_and_b32 v{vLN}, 63, v0')
    a(f'v_mov_b32 v{vZ}, 0')
    a(f's_mov_b32 s41, {H}')
    a('s_mov_b32 s40, 0x7fff00')
    a('s_lshl_b32 s42, s3, 14')
    a(f's_add_u32 s42, s42, {LB}')
    a(f's_mul_i32 s58, s57, {CH*4}')
    a(f's_mov_b32 s59, {CH//8}')
    a(f's_cmp_eq_u32 s57, {P-1}')
    a(f's_cselect_b32 s59, {(E-(P-1)*CH)//8}, s59')
    a('s_waitcnt lgkmcnt(0)')
    srd(a, 12, 26, E * 4); srd(a, 20, 28, E * 4)
    srd(a, 16, 36, 256)
    a('s_cmp_lg_u32 s43, 0')
    a('s_cbranch_scc1 L_noedge')
    a('v_cmp_gt_u32 vcc, s59, v0')
    a('s_and_saveexec_b64 s[54:55], vcc')
    a('s_cbranch_execz L_noedge0')
    edge_loads(a, 's58')
    srd(a, 8, 38, 16384)
    a('s_lshl_b32 s46, s57, 7')
    a(f'buffer_load_dwordx2 v[{vTB}:{vTB+1}], v{vZ}, s[8:11], s46 offen sc0 sc1')
    a.label('L_noedge0')
    a('s_mov_b64 exec, s[54:55]')
    a.label('L_noedge')
    srd(a, 4, 24, XB)
    a('s_cmp_lg_u32 s43, 0')
    a('s_cbranch_scc1 L_nob1')
    a('s_barrier')
    a.label('L_nob1')
    SP = int(opt.get('sp', 0)); ES = int(opt.get('es', 0))
    if SP:
        a('s_cmp_eq_u32 s43, 0')
        a('s_cbranch_scc1 L_nsp')
        a(f'v_lshlrev_b32 v1, 1, v{vG}')
        a(f'v_xor_b32 v1, v1, v{vN}')
        a(f'v_lshlrev_b32 v1, 4, v1')
        a(f'v_lshl_add_u32 v{vS}, v{vG}, 19, v1')
        a('s_lshl_b32 s47, s2, 8')
        a('s_lshl_b32 s46, s3, 16')
        a('s_add_u32 s47, s47, s46')
        a(f'v_add_u32 v{vS}, s47, v{vS}')
        for u in range(1, 4):
            a(f'v_add_u32 v{vS+u}, {(u*4<<19)-1024*u}, v{vS}')
            if u & 1: a(f'v_xor_b32 v{vS+u}, 128, v{vS+u}')
        a('s_lshl_b32 s46, s3, 12')
        a(f's_add_u32 m0, s46, {L_XO}')
        a(f'v_lshl_add_u32 v2, v{vG}, 8, v1')
        a('v_xor_b32 v3, 128, v2')
        for u in range(4):
            a(f'buffer_load_dwordx4 v{vS+u}, s[4:7], 0 offen offset:{1024*u} lds')
        srd(a, 8, 30, 32768)
        a('s_add_u32 s46, s56, s3')
        a('s_lshl_b32 s46, s46, 12')
        a('s_and_b32 s46, s46, 0x7000')
        a(f's_add_u32 m0, s46, {L_WQ}')
        a('s_nop 0')
        for u in range(4):
            a(f'buffer_load_dwordx4 v{2+(u>>1)}, s[8:11], s46 offen offset:{1024*u} lds')
        a('s_branch L_tag')
        a.label('L_nsp')
    a('s_cmp_lt_u32 s3, 6')
    a('s_cbranch_scc1 L_nodma')
    a(f'v_lshlrev_b32 v1, 1, v{vG}')
    a(f'v_xor_b32 v1, v1, v{vN}')
    a(f'v_lshlrev_b32 v1, 4, v1')
    a('s_add_u32 s46, s3, s43')
    a('s_cmp_eq_u32 s46, 6')
    a('s_cbranch_scc1 L_nodma')
    a('s_cmp_eq_u32 s46, 8')
    a('s_cbranch_scc1 L_wdma')
    a(f'v_lshl_add_u32 v{vS}, v{vG}, 19, v1')
    a('s_lshl_b32 s47, s2, 8')
    a(f'v_add_u32 v{vS}, s47, v{vS}')
    for u in range(1, 4):
        a(f'v_add_u32 v{vS+u}, {(u*4<<19)-1024*u}, v{vS}')
        if u & 1: a(f'v_xor_b32 v{vS+u}, 128, v{vS+u}')
    a(f's_mov_b32 m0, {L_XO}')
    a('s_mov_b32 s46, 8')
    a.label('L_xl')
    for u in range(4):
        a(f'buffer_load_dwordx4 v{vS+u}, s[4:7], 0 offen offset:{1024*u} lds')
    for u in range(4):
        a(f'v_add_u32 v{vS+u}, 0x10000, v{vS+u}')
    a('s_add_u32 m0, m0, 4096')
    a('s_sub_u32 s46, s46, 1')
    a('s_cmp_lg_u32 s46, 0')
    a('s_cbranch_scc1 L_xl')
    a('s_cmp_eq_u32 s3, 6')
    a('s_cbranch_scc1 L_nodma')
    a.label('L_spin7')
    a(f'ds_read_b32 v2, v{vZ} offset:{L_CNT}')
    a('s_waitcnt lgkmcnt(0)')
    a('v_readfirstlane_b32 s50, v2')
    a(f's_cmp_lt_u32 s50, {int(opt.get("w7", 11))}')
    a('s_cbranch_scc1 L_spin7')
    a.label('L_wdma')
    a(f'v_lshl_add_u32 v2, v{vG}, 8, v1')
    a('v_xor_b32 v3, 128, v2')
    for wi, (lo, base) in enumerate(((30, L_WQ),)):
        srd(a, 8, lo, 32768)
        a('s_lshl_b32 s46, s56, 12')
        a('s_mov_b32 s47, 8')
        a.label(f'L_wl{wi}')
        a('s_and_b32 s46, s46, 0x7000')
        a(f's_add_u32 m0, s46, {base}')
        a('s_sub_u32 s47, s47, 1')
        for u in range(4):
            a(f'buffer_load_dwordx4 v{2+((u>>1) if wi == 0 else (u&1))}, s[8:11], s46 offen offset:{1024*u} lds')
        a('s_add_u32 s46, s46, 4096')
        a('s_cmp_lg_u32 s47, 0')
        a(f's_cbranch_scc1 L_wl{wi}')
    stamp(1)
    a('s_branch L_tagd')
    a.label('L_nodma')
    a('s_cmp_eq_u32 s43, 0')
    a('s_cbranch_scc1 L_prod')
    PF0 = int(opt.get('pf0', 0))
    if PF0 > 0:
        c = PF0 * 2 // 64
        a('s_cmp_ge_u32 s3, 4')
        a('s_cbranch_scc1 L_tag')
        a('s_lshr_b32 s47, s56, 1')
        a('s_lshl_b32 s47, s47, 2')
        a('s_add_u32 s46, s3, s47')
        a(f's_mul_i32 s46, s46, {c*128}')
        a(f'v_lshlrev_b32 v{vS+2}, 7, v{vLN}')
        for u in range((c + 63) // 64):
            a(f'buffer_load_dword v{vPF}, v{vS+2}, s[4:7], s46 offen')
            a(f's_add_u32 s46, s46, 8192')
    a('s_branch L_tag')
    a.label('L_prod')
    a('v_cmp_gt_u32 vcc, s59, v0')
    a('s_and_saveexec_b64 s[54:55], vcc')
    a('s_cbranch_execz L_binned')
    a('s_waitcnt vmcnt(3)')
    a('s_mov_b32 s46, 0x3fc')
    a(f'v_mov_b32 v1, 1')
    for j in range(8):
        a(f'v_lshlrev_b32 v{vCA+j}, 2, v{vA1+8+j}')
        a(f'v_and_b32 v{vCA+j}, s46, v{vCA+j}')
        a(f'ds_add_rtn_u32 v{vRK+j}, v{vCA+j}, v1 offset:{L_PC}')
    a('s_waitcnt vmcnt(1)')
    entries(a, vPE)
    a('s_mov_b64 s[76:77], exec')
    a('s_waitcnt vmcnt(0)')
    a(f'v_readfirstlane_b32 s48, v{vTB}')
    a(f'v_readfirstlane_b32 s49, v{vTB+1}')
    a('s_lshr_b32 s48, s48, 23')
    a('s_lshr_b32 s49, s49, 26')
    a('s_lshl_b32 s49, s49, 9')
    a('s_or_b32 s48, s48, s49')
    a('s_add_u32 s48, s48, 1')
    a('s_bitset1_b32 s48, 15')
    a('s_lshl_b32 s44, s48, 23')
    a('s_lshr_b32 s45, s48, 6')
    a('s_lshl_b32 s45, s45, 23')
    a('s_xor_b32 s52, s44, 0xff800000')
    a('s_xor_b32 s53, s45, 0xff800000')
    a('s_cmp_lg_u32 s3, 0')
    a('s_cbranch_scc1 L_nopub')
    a('s_lshl_b32 s49, s57, 1')
    a('v_mov_b32 v2, s48')
    a('s_mov_b64 exec, 1')
    a(f'buffer_store_short v2, v{vZ}, s[16:19], s49 offen sc0 sc1')
    a('s_mov_b64 exec, s[76:77]')
    a.label('L_nopub')
    a(f's_mov_b32 s46, {L_QS}')
    for j in range(8):
        a(f'v_lshl_add_u32 v{vCA+j}, v{vCA+j}, 5, s46')
    for j in range(8):
        if j == 0: a(f's_waitcnt lgkmcnt(0)')
        a(f'v_lshl_add_u32 v{vCA+j}, v{vRK+j}, 2, v{vCA+j}')
        a(f'v_cmpx_gt_u32 vcc, 32, v{vRK+j}')
        a(f'ds_write_b32 v{vCA+j}, v{vPE+j}')
        a('s_mov_b64 exec, s[76:77]')
    a(f'v_max3_u32 v2, v{vRK}, v{vRK+1}, v{vRK+2}')
    a(f'v_max3_u32 v2, v2, v{vRK+3}, v{vRK+4}')
    a(f'v_max3_u32 v2, v2, v{vRK+5}, v{vRK+6}')
    a(f'v_max_u32 v2, v2, v{vRK+7}')
    a(f'v_cmpx_lt_u32 vcc, 31, v2')
    a(f'ds_write_b32 v{vZ}, v1 offset:{L_OVF}')
    a.label('L_binned')
    a('s_mov_b64 exec, -1')
    a.label('L_tag')
    stamp(1)
    a.label('L_tagd')
    def slotld():
        a(f'buffer_load_dwordx4 v[{vPE}:{vPE+3}], v{vT16}, s[8:11], 0 offen sc0 sc1')
        a(f'buffer_load_dwordx4 v[{vPE+4}:{vPE+7}], v{vX+5}, s[8:11], 0 offen sc0 sc1')
    a('s_lshl_b32 s46, s2, 14')
    srd(a, 8, 38, 16384, add='s46')
    a(f'v_add_u32 v{vX+5}, 0x2000, v{vT16}')
    a('s_cmp_lg_u32 s43, 0')
    a('s_cbranch_scc1 L_copied')
    a('s_cmp_eq_u32 s3, 7')
    a('s_cbranch_scc1 L_copied')
    a('v_mov_b32 v1, 1')
    a('s_mov_b64 exec, 1')
    a('s_waitcnt lgkmcnt(0)')
    a(f'ds_add_u32 v{vZ}, v1 offset:{L_CNT}')
    a('s_mov_b64 exec, -1')
    a('s_cmp_ge_u32 s3, 4')
    a('s_cbranch_scc1 L_copied')
    a(f'v_add_u32 v{vX+4}, {L_QS}, v{vT16}')
    srd(a, 12, 38, 256 * 16384)
    a(f'v_lshrrev_b32 v{vX}, 3, v0')
    a(f'v_and_b32 v{vX+1}, 7, v0')
    a(f'v_lshlrev_b32 v{vX}, 14, v{vX}')
    a(f'v_lshl_add_u32 v{vX}, v{vX+1}, 4, v{vX}')
    a.label('L_spin')
    a(f'ds_read_b32 v1, v{vZ} offset:{L_CNT}')
    a('s_waitcnt lgkmcnt(0)')
    a('v_readfirstlane_b32 s50, v1')
    a('s_cmp_lt_u32 s50, 7')
    a('s_cbranch_scc1 L_spin')
    a(f'ds_read_b32 v1, v{vZ} offset:{L_OVF}')
    for u in range(8): a(f'ds_read_b128 v[{vT+4*u}:{vT+4*u+3}], v{vX+4} offset:{4096*u}')
    a('s_waitcnt lgkmcnt(8)')
    a('v_readfirstlane_b32 s50, v1')
    a('s_cmp_lg_u32 s50, 0')
    a('s_cbranch_scc1 L_ovf')
    a.label('L_copy')
    a('s_lshl_b32 s50, s57, 7')
    for u in range(8):
        a(f's_waitcnt lgkmcnt({7-u})')
        for k in range(4): a(f'v_xor_b32 v{vT+4*u+k}, s{(44,45,52,53)[k]}, v{vT+4*u+k}')
        a(f'buffer_store_dwordx4 v[{vT+4*u}:{vT+4*u+3}], v{vX}, s[12:15], s50 offen sc0 sc1')
        if u < 7: a(f's_add_u32 s50, s50, {1<<19}')
    a('v_mov_b32 v1, 1')
    a('s_mov_b64 exec, 1')
    a(f'ds_add_u32 v{vZ}, v1 offset:{L_CNT}')
    a('s_mov_b64 exec, -1')
    a.label('L_copied')
    stamp(2)
    for i in range(4): a(f'v_mov_b32 v{vX+i}, 0')
    a(f'ds_write_b128 v{vT16}, v[{vX}:{vX+3}]')
    a(f'ds_write_b128 v{vT16}, v[{vX}:{vX+3}] offset:8192')
    a(f'v_and_b32 v1, 7, v{vN}')
    a(f'v_lshlrev_b32 v1, 1, v1')
    a(f'v_xor_b32 v2, v1, v{vG}')
    a(f'v_lshlrev_b32 v2, 4, v2')
    a(f'v_lshl_add_u32 v3, v{vN}, 8, v2')
    a(f'v_add_u32 v{vRB}, {L_XO}, v3')
    a(f'v_and_b32 v3, 3, v{vN}')
    a(f'v_lshrrev_b32 v{vTMP}, 2, v{vN}')
    a(f'v_lshl_add_u32 v{vA1A}, v3, 2, v{vTMP}')
    a(f'v_lshl_add_u32 v{vA1A}, v{vA1A}, 8, v2')
    a(f'v_add_u32 v{vA1A}, s42, v{vA1A}')
    for s in range(1, 4):
        a(f'v_xor_b32 v{vRB+s}, {s<<6}, v{vRB}')
        a(f'v_xor_b32 v{vA1A+s}, {s<<6}, v{vA1A}')
    a(f'v_and_b32 v2, 1, v{vG}')
    a(f'v_lshl_or_b32 v2, v2, 2, v{vTMP}')
    a(f'v_lshlrev_b32 v2, 5, v2')
    a(f'v_lshl_or_b32 v2, v3, 3, v2')
    a(f'v_lshl_add_u32 v{vTRA}, v{vTMP}, 2, v{vG}')
    a(f'v_lshl_add_u32 v{vTRA}, v{vTRA}, 8, v2')
    a(f'v_add_u32 v{vTRA}, s42, v{vTRA}')
    for t in range(1, 8): a(f'v_xor_b32 v{vTRA+t}, {t<<5}, v{vTRA}')
    a(f'v_and_b32 v2, 0xe0, v2')
    a(f'v_lshlrev_b32 v3, 4, v3')
    a(f'v_xor_b32 v2, v2, v3')
    a('s_and_b32 s50, s3, 3')
    a('s_lshl_b32 s50, s50, 6')
    a(f'v_xor_b32 v2, s50, v2')
    a(f'v_lshl_add_u32 v{vX+6}, v{vG}, 3, v{vTMP}')
    a(f'v_lshl_add_u32 v{vX+6}, v{vX+6}, 8, v2')
    a(f'v_add_u32 v{vX+6}, {L_WQ}, v{vX+6}')
    a(f'v_lshl_add_u32 v{vX+7}, v{vG}, 2, v{vTMP}')
    a(f'v_lshl_add_u32 v{vX+7}, v{vX+7}, 8, v2')
    a(f'v_add_u32 v{vX+7}, {L_WV}, v{vX+7}')
    a(f'v_and_b32 v2, 1, v{vG}')
    a(f'v_lshlrev_b32 v2, 3, v2')
    a(f'v_xor_b32 v2, v2, v{vN}')
    a(f'v_lshlrev_b32 v{vGO}, 4, v2')
    for j in range(1, 4): a(f'v_xor_b32 v{vGO+j}, {j<<5}, v{vGO}')
    a('s_lshl_b32 s51, s3, 4')
    a('s_add_u32 s51, s51, 1')
    a(f'v_add_u32 v{vKEY}, s51, v{vN}')
    a('s_lshr_b32 s51, s3, 2')
    a('s_lshl_b32 s51, s51, 14')
    for s in range(4): a(f'v_add_u32 v{vX+8+s}, s51, v{vRB+s}')
    a(f'v_xor_b32 v1, s50, v{vX+8}')
    a(f'v_add_u32 v1, {L_QS-L_XO}, v1')
    if SP:
        a('s_lshl_b32 s46, s43, 3')
        a('s_add_u32 s46, s46, s3')
        a('s_cmp_lt_u32 s46, 6')
    else:
        a('s_cmp_lt_u32 s3, 6')
    a('s_cbranch_scc1 L_w4')
    a('s_waitcnt vmcnt(0)')
    a.label('L_w4')
    a('s_waitcnt lgkmcnt(0)')
    a('s_barrier')
    stamp(1, 2)
    a('s_cmp_lg_u32 s3, 0')
    a('s_cbranch_scc1 L_nt1')
    a(f'v_lshlrev_b32 v2, 2, v0')
    a(f'buffer_load_dword v3, v2, s[16:19], 0 offen sc0 sc1')
    a.label('L_nt1')
    srd(a, 12, 32, 32768)
    a('s_lshl_b32 s46, s3, 12')
    a(f's_add_u32 m0, s46, {L_WV}')
    a(f'v_lshlrev_b32 v{vS}, 1, v{vG}')
    a(f'v_xor_b32 v{vS}, v{vS}, v{vN}')
    a(f'v_lshlrev_b32 v{vS}, 4, v{vS}')
    a(f'v_lshl_add_u32 v{vS}, v{vG}, 8, v{vS}')
    a(f'v_xor_b32 v{vS+1}, 128, v{vS}')
    for u in range(4):
        a(f'buffer_load_dwordx4 v{vS+(u&1)}, s[12:15], s46 offen offset:{1024*u} lds')
    def prefetch(r0, rows, fixed=None):
        c = rows * 2 // 256
        ni = (c + 63) // 64
        a('s_lshl_b32 s47, s56, 3')
        a('s_add_u32 s46, s3, s47')
        a(f's_mul_i32 s46, s46, {c*128}')
        a(f's_add_u32 s46, s46, {r0*256}')
        a(f'v_lshlrev_b32 v{vS+2}, 7, v{vLN}')
        for u in range(fixed or ni):
            n = max(1, min(64, c - 64 * u))
            if n < 64: a(f's_mov_b64 exec, {hex((1 << n) - 1)}')
            a(f'buffer_load_dword v{vPF}, v{vS+2}, s[4:7], s46 offen')
            if n < 64: a('s_mov_b64 exec, -1')
            if c > 64 * (u + 1): a(f's_add_u32 s46, s46, 8192')
    PF1 = int(opt.get('pf1', 0)); NPF = 2
    if PF1 > 0:
        c = PF1 * 2 // 128
        NPF = (c + 63) // 64
        a('s_lshr_b32 s47, s56, 1')
        a('s_lshl_b32 s47, s47, 3')
        a('s_add_u32 s46, s3, s47')
        a(f's_mul_i32 s46, s46, {c*128}')
        a(f's_add_u32 s46, s46, {PF0*256}')
        a(f'v_lshlrev_b32 v{vS+2}, 7, v{vLN}')
        a('s_cmp_lg_u32 s43, 0')
        a('s_cselect_b64 exec, -1, 1')
        for u in range(NPF):
            a(f'buffer_load_dword v{vPF}, v{vS+2}, s[4:7], s46 offen')
            a(f's_add_u32 s46, s46, 8192')
        a('s_mov_b64 exec, -1')
    elif int(opt.get('opf', 0)):
        srd(a, 12, 24, PFN * 256)
        a('s_lshl_b32 s47, s56, 3')
        a('s_add_u32 s46, s3, s47')
        a(f's_mul_i32 s46, s46, 8192')
        a(f'v_mul_u32_u24 v{vS+2}, 128, v{vLN}')
        a(f'v_add_u32 v{vS+2}, s46, v{vS+2}')
        a(f'v_add_u32 v{vS+3}, 2097152, v{vS+2}')
        a(f'buffer_load_dword v{vPF}, v{vS+2}, s[12:15], 0 offen')
        a(f'buffer_load_dword v{vPF}, v{vS+3}, s[12:15], 0 offen')
    elif PFN > 0:
        prefetch(PF0, PFN, 2)
    else:
        slotld()
    for h in range(2):
        for k in range(8):
            r = vQB + 16 * h + 2 * k
            a(f'ds_read_b64_tr_b16 v[{r}:{r+1}], v{vX+6} offset:{8192*(k>>1)+1024*(k&1)+8*h}')
        a('s_waitcnt lgkmcnt(3)')
    gemm4(a, vQB, vX + 8, lambda T: 4096 * T, vACC)
    if ES:
        slotld(); NPF += 2
    a('s_nop 4')
    a('s_mov_b32 s51, 0xbe0293ee')
    for T in range(4):
        for r in range(8): a(f'v_mul_f32 v{vACC+8*T+r}, s51, v{vACC+8*T+r}')
        for r in range(4): a(f'v_cvt_pk_bf16_f32 v{vA1+4*T+r}, v{vACC+8*T+2*r}, v{vACC+8*T+2*r+1}')
        a(f'ds_write_b128 v1, v[{vA1+4*T}:{vA1+4*T+3}] offset:{4096*T}')
    for i in range(32): a(f'v_mov_b32 v{vACC+i}, 0')
    a('s_lshl_b32 s51, s3, 12')
    a(f's_add_u32 s51, s51, {L_QS-L_XO}')
    for s in range(4): a(f'v_add_u32 v{vX+s}, s51, v{vRB+s}')
    a(f's_waitcnt vmcnt({NPF})')
    a('s_cmp_lg_u32 s3, 0')
    a('s_cbranch_scc1 L_nt2')
    a(f's_mov_b32 s50, {TMO}')
    a('s_mov_b32 s51, 0x80008000')
    a.label('L_tp')
    a(f'v_and_b32 v1, s51, v3')
    a('v_cmp_ne_u32 vcc, s51, v1')
    a('s_cbranch_vccz L_tp2')
    a(f'buffer_load_dword v3, v2, s[16:19], 0 offen sc0 sc1')
    a('s_waitcnt vmcnt(0)')
    a('s_sub_u32 s50, s50, 1')
    a('s_cbranch_scc0 L_tp')
    a.label('L_tp2')
    a(f'ds_write_b32 v2, v3 offset:{L_TAGS}')
    a.label('L_nt2')
    stamp(2, 2)
    srd(a, 16, 34, XB)
    a(f'v_lshrrev_b32 v1, 2, v0')
    a(f'v_and_b32 v1, 0x7e, v1')
    a('s_waitcnt lgkmcnt(0)')
    a('s_barrier')
    a(f'ds_read_u16 v2, v1 offset:{L_TAGS}')
    a(f'ds_read_u16 v3, v1 offset:{L_TAGS+128}')
    for s in range(4): a(f'ds_read_b128 v[{vQB+4*s}:{vQB+4*s+3}], v{vX+s}')
    if PFN > 0 and not ES:
        slotld()
    stamp(3)
    for h in range(2):
        for k in range(8):
            r = vWV + 16 * h + 2 * k
            a(f'ds_read_b64_tr_b16 v[{r}:{r+1}], v{vX+7} offset:{8192*(k>>1)+4096*(k&1)+8*h}')
        if h == 0: a('s_waitcnt lgkmcnt(7)')
    a(f's_mov_b32 s50, {TMO}')
    a('s_mov_b32 s51, 0xff800000')
    for h in range(2):
        a(f'v_lshlrev_b32 v{vTB+4*h}, 23, v{2+h}')
        a(f'v_lshrrev_b32 v{vTB+4*h+1}, 6, v{2+h}')
        a(f'v_lshlrev_b32 v{vTB+4*h+1}, 23, v{vTB+4*h+1}')
        a(f'v_xor_b32 v{vTB+4*h+2}, s51, v{vTB+4*h}')
        a(f'v_xor_b32 v{vTB+4*h+3}, s51, v{vTB+4*h+1}')
    a('v_and_b32 v2, v2, v3')
    a('v_cmp_gt_u32 vcc, 0x8000, v2')
    a('s_cbranch_vccnz L_fail')
    a('s_mov_b32 s51, 0x800000')
    a.label('L_poll')
    a('s_waitcnt vmcnt(0)')
    for j in range(8): a(f'v_xor_b32 v{vRK+j}, v{vTB+j}, v{vPE+j}')
    a(f'v_or3_b32 v1, v{vRK}, v{vRK+1}, v{vRK+2}')
    a(f'v_or3_b32 v2, v{vRK+4}, v{vRK+5}, v{vRK+6}')
    a(f'v_or3_b32 v1, v1, v{vRK+3}, v{vRK+7}')
    a(f'v_or_b32 v1, v1, v2')
    a('v_cmpx_le_u32 vcc, s51, v1')
    a('s_cbranch_execz L_got')
    a(f'buffer_load_dwordx4 v[{vPE}:{vPE+3}], v{vT16}, s[8:11], 0 offen sc0 sc1')
    a(f'buffer_load_dwordx4 v[{vPE+4}:{vPE+7}], v{vX+5}, s[8:11], 0 offen sc0 sc1')
    a('s_sub_u32 s50, s50, 1')
    a('s_cbranch_scc0 L_poll')
    a('s_mov_b64 exec, -1')
    a.label('L_fail')
    a('s_waitcnt vmcnt(0)')
    a('s_lshl_b32 s50, s3, 3')
    a('s_lshl_b32 s50, 0xff, s50')
    a('s_and_b32 s51, s3, 4')
    a('v_mov_b32 v1, s50')
    a('v_mov_b32 v2, s51')
    a(f'ds_or_b32 v2, v1 offset:{L_RS}')
    a(f'ds_or_b32 v2, v1 offset:{L_RS+8}')
    for j in range(8): a(f'v_mov_b32 v{vRK+j}, 0')
    a.label('L_got')
    a('s_mov_b64 exec, -1')
    stamp(4)
    if PF2 > 0: prefetch(PFN, PF2)
    a(f'v_cmp_eq_u32 vcc, 0x70, v{vRK}')
    a(f'v_cmp_eq_u32 s[50:51], v{vRK+4}, v{vRK+5}')
    a.lines.pop()
    a(f'v_mov_b32 v1, 0x70')
    a(f'v_cmp_eq_u32 s[50:51], v1, v{vRK+4}')
    for j in range(8): a(f'v_mov_b32 v{vPE+j}, v{vRK+j}')
    a('s_or_b64 s[54:55], vcc, s[50:51]')
    a('s_cbranch_scc1 L_mark')
    if NS:
        a.label('L_place')
        a('v_mov_b32 v1, 1')
        for j in range(8):
            a(f'v_lshrrev_b32 v{vCA+j}, 2, v{vPE+j}')
            a(f'v_and_b32 v{vCA+j}, 0x1c, v{vCA+j}')
            a(f'v_mov_b32 v{vRK+j}, -1')
            a(f'v_cmpx_ne_u32 vcc, 0, v{vPE+j}')
            a(f'ds_add_rtn_u32 v{vRK+j}, v{vCA+j}, v1 offset:{L_C+32}')
            a('s_mov_b64 exec, -1')
        for j in range(8): a(f'v_lshlrev_b32 v{vTB+j}, 9, v{vCA+j}')
        a('s_lshl_b32 s50, s3, 2')
        a('v_mov_b32 v3, s50')
        a(f's_mov_b32 s51, {CAP}')
        for j in range(8):
            if j == 0: a(f's_waitcnt lgkmcnt(0)')
            a(f'v_lshl_add_u32 v{vTB+j}, v{vRK+j}, 2, v{vTB+j}')
            a(f'v_cmpx_gt_u32 vcc, s51, v{vRK+j}')
            a(f'ds_write_b32 v{vTB+j}, v{vPE+j}')
            a(f'v_mov_b32 v{vPE+j}, 0')
            a('s_mov_b64 exec, -1')
    else:
        a.label('L_place')
        a('v_mov_b32 v1, 1')
        for j in range(8):
            a(f'v_lshrrev_b32 v{vCA+j}, 2, v{vPE+j}')
            a(f'v_and_b32 v{vCA+j}, 0x3c, v{vCA+j}')
            a(f'v_mov_b32 v{vRK+j}, -1')
            a(f'v_cmpx_ne_u32 vcc, 0, v{vPE+j}')
            a(f'ds_add_rtn_u32 v{vRK+j}, v{vCA+j}, v1 offset:{L_C+32}')
            a('s_mov_b64 exec, -1')
        for j in range(8):
            a(f'v_and_b32 v{vTB+j}, 0x1c, v{vCA+j}')
            a(f'v_lshlrev_b32 v{vTB+j}, 9, v{vTB+j}')
        a('s_lshl_b32 s50, s3, 2')
        a('v_mov_b32 v3, s50')
        a(f's_mov_b32 s51, {CAP}')
        a('s_waitcnt lgkmcnt(0)')
        a('s_barrier')
        for j in range(8): a(f'ds_read_b32 v{vCA+j}, v{vCA+j} offset:{L_C}')
        a(f'ds_read2_b32 v[{vX}:{vX+1}], v3 offset0:0 offset1:8') ; a.lines.pop()
        a(f'ds_read_b32 v{vX}, v3 offset:{L_C+32}')
        a(f'ds_read_b32 v{vX+1}, v3 offset:{L_C+64}')
        for j in range(8):
            if j == 0: a(f's_waitcnt lgkmcnt(0)')
            a(f'v_add_u32 v{vRK+j}, v{vRK+j}, v{vCA+j}')
            a(f'v_lshl_add_u32 v{vTB+j}, v{vRK+j}, 2, v{vTB+j}')
            a(f'v_and_b32 v{vCA+j}, 0xffffff7f, v{vPE+j}')
            a(f'v_cmpx_gt_u32 vcc, s51, v{vRK+j}')
            a(f'ds_write_b32 v{vTB+j}, v{vCA+j}')
            a(f'v_mov_b32 v{vPE+j}, 0')
            a('s_mov_b64 exec, -1')
    a(f'v_or3_b32 v1, v{vPE}, v{vPE+1}, v{vPE+2}')
    a(f'v_or3_b32 v1, v1, v{vPE+3}, v{vPE+4}')
    a(f'v_or3_b32 v1, v1, v{vPE+5}, v{vPE+6}')
    a(f'v_or_b32 v1, v1, v{vPE+7}')
    a('v_cmpx_ne_u32 vcc, 0, v1')
    a(f'ds_write_b32 v{vZ}, v1 offset:{L_SLOW}')
    a('s_mov_b64 exec, -1')
    if not NS: a(f'v_add_u32 v{vX}, v{vX}, v{vX+1}')
    a('s_lshl_b32 s50, s3, 11')
    a(f'v_lshl_add_u32 v{vLA}, v{vG}, 5, s50')
    if not NS: a(f'v_readfirstlane_b32 s53, v{vX}')
    a('s_waitcnt lgkmcnt(0)')
    a('s_barrier')
    if NS: a(f'ds_read_b32 v2, v3 offset:{L_C+32}')
    eread(a, 0, 0)
    eread(a, 1, 128)
    a(f'ds_read_b32 v1, v{vZ} offset:{L_SLOW}')
    a(f'ds_read_b128 v[{vX}:{vX+3}], v{vZ} offset:{L_RS}')
    if NS:
        a('s_waitcnt lgkmcnt(6)')
        a('v_readfirstlane_b32 s53, v2')
    a('s_min_u32 s53, s53, s51')
    a('s_add_u32 s53, s53, 31')
    a('s_lshr_b32 s53, s53, 5')
    stamp(5)
    a('s_cmp_eq_u32 s53, 0')
    a('s_cbranch_scc1 L_noi')
    a('s_waitcnt lgkmcnt(4)')
    issue(a, 0)
    a('s_cmp_eq_u32 s53, 1')
    a('s_cbranch_scc1 L_noi')
    a('s_waitcnt lgkmcnt(2)')
    issue(a, 1)
    a.label('L_noi')
    a('s_waitcnt lgkmcnt(0)')
    a('v_readfirstlane_b32 s52, v1')
    for i in range(4): a(f'v_readfirstlane_b32 s{76+i}, v{vX+i}')
    a('s_cmp_eq_u32 s53, 0')
    a('s_cbranch_scc1 L_done')
    a.label('L_loop')
    body(a, 0, opt)
    body(a, 1, opt)
    a('s_branch L_loop')
    a.label('L_done')
    stamp(6)
    a('s_or_b64 s[54:55], s[76:77], s[78:79]')
    a('s_or_b32 s54, s54, s55')
    a('s_or_b32 s54, s54, s52')
    a('s_cbranch_scc1 L_slow')
    a(f's_sub_u32 s50, s42, {L_XO}')
    a('s_lshr_b32 s51, s3, 2')
    a('s_lshl_b32 s51, s51, 16')
    a(f's_add_u32 s51, s51, {(LB-L_XO)&0xffffffff}')
    for s in range(4):
        for r in range(4): a(f'v_cvt_pk_bf16_f32 v{vA1+4*s+r}, v{vACC+8*s+2*r}, v{vACC+8*s+2*r+1}')
        a(f'v_add_u32 v2, s50, v{vRB+s}')
        a(f'ds_write_b128 v2, v[{vA1+4*s}:{vA1+4*s+3}]')
        a(f'v_add_u32 v{vX+s}, s51, v{vRB+s}')
    a(f'v_lshlrev_b32 v1, 19, v{vN}')
    a(f'v_lshl_add_u32 v1, v{vG}, 4, v1')
    a('s_lshl_b32 s50, s2, 8')
    a('s_and_b32 s51, s3, 3')
    a('s_lshl_b32 s51, s51, 6')
    a('s_add_u32 s50, s50, s51')
    a('s_lshr_b32 s51, s3, 2')
    a('s_lshl_b32 s51, s51, 18')
    a('s_add_u32 s50, s50, s51')
    a('v_add_u32 v1, s50, v1')
    a('s_waitcnt lgkmcnt(0)')
    a('s_barrier')
    gemm4(a, vWV, vX, lambda T: 16384 * T, vACC)
    for T in range(4):
        if T == 3: a('s_nop 4')
        for r in range(4): a(f'v_cvt_pk_bf16_f32 v{vA1+4*T+r}, v{vACC+8*T+2*r}, v{vACC+8*T+2*r+1}')
        a(f'buffer_store_dwordx4 v[{vA1+4*T}:{vA1+4*T+3}], v1, s[16:19], 0 offen')
        if T < 3: a('v_add_u32 v1, 0x10000, v1')
    if DG:
        a('s_waitcnt vmcnt(0)')
        stamp(7)
        a('s_waitcnt lgkmcnt(0)')
        srd(a, 8, 38, 1 << 20, add=200 << 20)
        a('s_lshl_b32 s60, s97, 3')
        a('s_add_u32 s60, s60, s3')
        a('s_lshl_b32 s60, s60, 5')
        for i in range(8): a(f'v_mov_b32 v{16+i}, s{80+2*i}')
        a('v_mov_b32 v12, 0')
        a(f'v_cmpx_eq_u32 vcc, 0, v{vLN}')
        a('buffer_store_dwordx4 v[16:19], v12, s[8:11], s60 offen')
        a('buffer_store_dwordx4 v[20:23], v12, s[8:11], s60 offen offset:16')
    a.label('L_end')
    a('s_endpgm')
    a.label('L_ovf')
    a(f'v_lshrrev_b32 v1, 1, v0')
    a(f'v_and_b32 v1, 0xfc, v1')
    for u in range(8): a(f'ds_read_b32 v{vRK+u}, v1 offset:{L_PC+128*u}')
    a('s_waitcnt lgkmcnt(0)')
    for u in range(8):
        a(f'v_cmpx_lt_u32 vcc, 32, v{vRK+u}')
        a(f'v_mov_b32 v{vT+4*u}, 0x70')
        for k in range(1, 4): a(f'v_mov_b32 v{vT+4*u+k}, 0')
        a('s_mov_b64 exec, -1')
    a('s_branch L_copy')
    a.label('L_mark')
    a('v_lshrrev_b32 v1, 3, v0')
    a('v_lshlrev_b32_e64 v2, v1, 1')
    a('v_lshrrev_b32 v1, 3, v1')
    a('v_and_b32 v1, 4, v1')
    a('s_mov_b64 exec, vcc')
    a(f'ds_or_b32 v1, v2 offset:{L_RS}')
    a(f'v_mov_b32 v{vPE}, 0')
    a('s_mov_b64 exec, s[50:51]')
    a(f'ds_or_b32 v1, v2 offset:{L_RS+8}')
    a(f'v_mov_b32 v{vPE+4}, 0')
    a('s_mov_b64 exec, -1')
    a('s_branch L_place')
    a.label('L_slow')
    a('s_barrier')
    for i in range(4): a(f'v_mov_b32 v{vX+i}, 0')
    a(f'ds_write_b128 v{vT16}, v[{vX}:{vX+3}]')
    a(f'ds_write_b128 v{vT16}, v[{vX}:{vX+3}] offset:8192')
    a('s_cmp_lg_u32 s52, 0')
    a('s_cbranch_scc1 L_slow_go')
    a('s_cmp_eq_u64 s[76:77], 0')
    a('s_cbranch_scc1 L_slow_hi')
    a('s_ff1_i32_b64 s57, s[76:77]')
    a('s_bitset0_b64 s[76:77], s57')
    a('s_branch L_slow_ld')
    a.label('L_slow_hi')
    a('s_ff1_i32_b64 s57, s[78:79]')
    a('s_bitset0_b64 s[78:79], s57')
    a('s_add_u32 s57, s57, 64')
    a.label('L_slow_ld')
    srd(a, 12, 26, E * 4)
    a(f's_mul_i32 s58, s57, {CH*4}')
    a(f's_mov_b32 s59, {CH//8}')
    a(f's_cmp_eq_u32 s57, {P-1}')
    a(f's_cselect_b32 s59, {(E-(P-1)*CH)//8}, s59')
    edge_loads(a, 's58')
    a('s_waitcnt vmcnt(0)')
    entries(a, vPE)
    a('v_cmp_gt_u32 s[54:55], s59, v0')
    for j in range(8):
        a(f'v_and_b32 v1, 0xff, v{vA1+8+j}')
        a('v_cmp_eq_u32 vcc, s2, v1')
        a('s_and_b64 vcc, vcc, s[54:55]')
        a('s_nop 1')
        a(f'v_cndmask_b32 v{vPE+j}, 0, v{vPE+j}, vcc')
    a.label('L_slow_go')
    for i in range(4): a(f'v_mov_b32 v{vS+i}, s{76+i}')
    a(f'v_cmp_gt_u32 vcc, 7, v0')
    a('s_and_saveexec_b64 s[54:55], vcc')
    for i in range(4): a(f'v_mov_b32 v{vX+i}, 0')
    a(f'ds_write_b128 v{vT16}, v[{vX}:{vX+3}] offset:{L_C}')
    a(f'ds_write_b128 v{vZ}, v[{vS}:{vS+3}] offset:{L_RS}')
    a('s_mov_b64 exec, -1')
    a('s_waitcnt lgkmcnt(0)')
    a('s_barrier')
    a('s_branch L_place')
    return a

HDR = open('cdna_kernels/%s.s.ref' % NAME).read().split('; Override')[0]
def build(opt):
    a = kern(opt)
    for e in check(a.lines, 'k'): print('HAZARD', e)
    t = HDR + f'; @launch grid=(256,1,1) block=(512,1,1) lds={LDS}\n'
    t += '.amdgcn_target "amdgcn-amd-amdhsa--gfx950"\n.text\n'
    t += f'.globl {NAME}_kernel\n.p2align 8\n.type {NAME}_kernel,@function\n' + a.text()
    t += f'''.section .rodata,"a"
.p2align 6
.amdhsa_kernel {NAME}_kernel
  .amdhsa_next_free_vgpr {NV}
  .amdhsa_next_free_sgpr 100
  .amdhsa_accum_offset {(NV+3)//4*4}
  .amdhsa_group_segment_fixed_size 0
  .amdhsa_kernarg_size 64
  .amdhsa_user_sgpr_count 2
  .amdhsa_user_sgpr_kernarg_segment_ptr 1
  .amdhsa_system_sgpr_workgroup_id_x 1
.end_amdhsa_kernel
'''
    return t
if __name__ == '__main__':
    out = sys.argv[1] if len(sys.argv) > 1 else f'cdna_kernels/{NAME}.s'
    opt = dict(kv.split('=', 1) for kv in sys.argv[2:])
    open(out, 'w').write(build(opt))
```

```python
import sys
sys.path.insert(0, 'gen')
from asmlib import Asm, check
N = 25000; E = 400000; XB = N * 256
CH = 3128; P = 128
NAME = 'standalone__kernel_systems_refs_featgraph__graph'
L_LIST = 0; L_PC = 16384; L_C = 17408; LB = 18432
L_SLOW = L_C + 96; L_OVF = L_C + 100; L_CNT = L_C + 128; L_TAGS = L_C + 256; L_TAG = L_C + 104; L_RS = L_C + 112
L_WQ = LB; L_WV = LB + 32768; L_XO = LB + 65536; L_QS = LB + 98304
LDS = LB + 131072
CAP = 384
vGO = 4; vA1A = 8; vTRA = 12; vKEY = 20; vLA = 21; vZ = 22; vT16 = 23; vRB = 24
vN = 28; vG = 29; vLN = 30; vTMP = 31
vACC = 32; vQB = 64; vWV = 196; vA1 = 96; vT = 128; vS = 160; vE = 168; vB = 184; vAD = 188
vPE = 228; vRK = 112; vCA = 120; vTB = 144; vX = 236; vPF = 251
NV = 252
sM = 60

def srd(a, d, lo, nrec, add=None):
    if add is None:
        a(f's_mov_b32 s{d}, s{lo}')
        a(f's_and_b32 s{d+1}, s{lo+1}, 0xffff')
    else:
        a(f's_add_u32 s{d}, s{lo}, {add}')
        a(f's_addc_u32 s{d+1}, s{lo+1}, 0')
        a(f's_and_b32 s{d+1}, s{d+1}, 0xffff')
    a(f's_mov_b32 s{d+2}, {nrec}')
    a(f's_mov_b32 s{d+3}, 0x20000')

def mf(d, A, B, C): return f'v_mfma_f32_16x16x32_bf16 v[{d}:{d+3}], v[{A}:{A+3}], v[{B}:{B+3}], {C}'

def edge_loads(a, soff):
    a(f'v_lshlrev_b32 v{vX}, 5, v0')
    a(f'buffer_load_dwordx4 v[{vA1+8}:{vA1+11}], v{vX}, s[20:23], {soff} offen')
    a(f'buffer_load_dwordx4 v[{vA1+12}:{vA1+15}], v{vX}, s[20:23], {soff} offen offset:16')
    a(f'buffer_load_dwordx4 v[{vA1}:{vA1+3}], v{vX}, s[12:15], {soff} offen')
    a(f'buffer_load_dwordx4 v[{vA1+4}:{vA1+7}], v{vX}, s[12:15], {soff} offen offset:16')

def entries(a, dst):
    a(f'v_mov_b32 v{vX+1}, 0x81')
    for j in range(8):
        a(f'v_cmp_le_u32 s[{sM+2*j}:{sM+2*j+1}], s41, v{vA1+j}')
    for j in range(8):
        s, d = vA1 + j, vA1 + 8 + j
        a(f'v_lshrrev_b32 v{vX+2}, 4, v{d}')
        a(f'v_and_b32 v{vX+2}, 0x70, v{vX+2}')
        a(f'v_lshl_or_b32 v{dst+j}, v{s}, 8, v{vX+2}')
        a(f'v_lshrrev_b32 v{vX+2}, 11, v{d}')
        a(f'v_cndmask_b32 v{vX+3}, 1, v{vX+1}, s[{sM+2*j}:{sM+2*j+1}]')
        a(f'v_add3_u32 v{dst+j}, v{dst+j}, v{vX+2}, v{vX+3}')

def issue(a, b, fill=None):
    for j in range(8):
        if j == 0: a(f's_add_u32 m0, s42, {8192*b}')
        else: a('s_add_u32 m0, m0, 1024')
        a(f'v_and_or_b32 v{vAD+j}, v{vE+8*b+j}, s40, v{vGO+(j&3)}')
        a(f'buffer_load_dwordx4 v{vAD+j}, s[4:7], 0 offen lds')
        if fill: fill()

def eread(a, b, off):
    a(f'ds_read_b128 v[{vE+8*b}:{vE+8*b+3}], v{vLA} offset:{off}')
    a(f'ds_read_b128 v[{vE+8*b+4}:{vE+8*b+7}], v{vLA} offset:{off+16}')

def gemm4(a, A, addr, offs, D):
    order = [(T, s) for T in range(4) for s in range(4)]
    def rd(i):
        T, s = order[i]
        r = vA1 + 4 * i
        a(f'ds_read_b128 v[{r}:{r+3}], v{addr+s} offset:{offs(T)}')
    for i in range(12): rd(i)
    for i, (T, s) in enumerate(order):
        a(f's_waitcnt lgkmcnt({min(15, i+11) - i})')
        r = vA1 + 4 * i
        for h in range(2):
            d = D + 4 * (2 * T + h)
            a(mf(d, A + 16 * h + 4 * s, r, '0' if s == 0 else f'v[{d}:{d+3}]'))
        if i + 12 < 16: rd(i + 12)

def body(a, b, opt):
    tr = lambda k: f'ds_read_b64_tr_b16 v[{vT+2*k}:{vT+2*k+1}], v{vTRA+(k>>1)} offset:{8192*b+4096*(k&1)}'
    a('s_cmp_eq_u32 s53, 1')
    a(f's_cbranch_scc1 W0_{b}')
    a('s_waitcnt vmcnt(8)')
    a(f's_branch W1_{b}')
    a.label(f'W0_{b}')
    a('s_waitcnt vmcnt(0)')
    a.label(f'W1_{b}')
    for bb in range(2):
        for s in range(4):
            r = vA1 + 16 * bb + 4 * s
            a(f'ds_read_b128 v[{r}:{r+3}], v{vA1A+s} offset:{8192*b+4096*bb}')
    for j in range(8):
        a(f'v_cmp_eq_u32_sdwa s[{sM+2*j}:{sM+2*j+1}], v{vE+8*b+j}, v{vKEY} src0_sel:BYTE_0 src1_sel:DWORD')
    eread(a, b, 256 + 128 * b)
    for k in range(5): a(tr(k))
    a('s_waitcnt lgkmcnt(11)')
    for s in range(4): a(mf(vS, vA1 + 4 * s, vQB + 4 * s, '0' if s == 0 else f'v[{vS}:{vS+3}]'))
    for k in range(5, 9): a(tr(k))
    a('s_waitcnt lgkmcnt(11)')
    for s in range(4): a(mf(vS + 4, vA1 + 16 + 4 * s, vQB + 4 * s, '0' if s == 0 else f'v[{vS+4}:{vS+7}]'))
    for k in range(9, 13): a(tr(k))
    a('s_waitcnt lgkmcnt(11)')
    for k in range(13, 16): a(tr(k))
    if b == 1: a(f'v_add_u32 v{vLA}, 256, v{vLA}')
    for j in range(4): a(f'v_exp_f32 v{vS+j}, v{vS+j}')
    sig = [f'v_exp_f32 v{vS+j}, v{vS+j}' for j in range(4, 8)]
    sig += [f'v_add_f32 v{vS+j}, 1.0, v{vS+j}' for j in range(8)]
    sig += [f'v_rcp_f32 v{vS+j}, v{vS+j}' for j in range(8)]
    sig += [f'v_cndmask_b32 v{vS+j}, 0, v{vS+j}, s[{sM+2*j}:{sM+2*j+1}]' for j in range(8)]
    sig += [f'v_cvt_pk_bf16_f32 v{vB+u}, v{vS+2*u}, v{vS+2*u+1}' for u in range(4)]
    a('s_cmp_lt_u32 s53, 3')
    a(f's_cbranch_scc1 NI_{b}')
    a('s_waitcnt lgkmcnt(0)')
    it = iter(sig)
    def fill():
        for _ in range(3):
            x = next(it, None)
            if x: a(x)
    issue(a, b, fill)
    for x in it: a(x)
    a(f's_branch DI_{b}')
    a.label(f'NI_{b}')
    a('s_nop 1')
    for x in sig: a(x)
    a('s_waitcnt lgkmcnt(0)')
    a.label(f'DI_{b}')
    a('s_sub_u32 s53, s53, 1')
    a('s_cmp_eq_u32 s53, 0')
    for t in range(8):
        a(mf(vACC + 4 * t, vT + 4 * t, vB, f'v[{vACC+4*t}:{vACC+4*t+3}]'))
    a('s_cbranch_scc1 L_done')

def kern(opt):
    a = Asm()
    DG = opt.get('diag'); H = int(opt.get('H', 12544)); PFS = int(opt.get('pfs', 128)); PFN = int(opt.get('pfn', H))
    TMO = int(opt.get('tmo', 4000)); NS = int(opt.get('ns', 0)); PF2 = int(opt.get('pf2', 0))
    if NS: H = 1 << 20
    def stamp(i, m=None):
        if DG == '2' and i in (1, 2) and m is None: return
        if DG != '2' and m is not None: return
        if DG: a(f's_memrealtime s[{80+2*i}:{81+2*i}]')
    a.label(f'{NAME}_kernel')
    a('s_cmp_ge_u32 s2, 256')
    a('s_cbranch_scc1 L_end')
    a('s_load_dwordx16 s[24:39], s[0:1], 0')
    stamp(0)
    a('v_lshrrev_b32 v1, 6, v0')
    a(f'v_lshlrev_b32 v{vT16}, 4, v0')
    a('v_readfirstlane_b32 s3, v1')
    for i in range(4): a(f'v_mov_b32 v{vX+i}, 0')
    a(f'v_cmp_gt_u32 vcc, 64, v0')
    a('s_and_saveexec_b64 s[54:55], vcc')
    a(f'ds_write_b128 v{vT16}, v[{vX}:{vX+3}] offset:16384')
    a(f'v_cmpx_gt_u32 vcc, 9, v0')
    a(f'ds_write_b128 v{vT16}, v[{vX}:{vX+3}] offset:17408')
    a('s_mov_b64 exec, s[54:55]')
    a('s_lshr_b32 s56, s2, 3')
    if int(opt.get('rm', 0)):
        a('s_bfe_u32 s43, s2, 0x10002')
        a('s_and_b32 s57, s2, 3')
        a('s_lshl_b32 s58, s56, 2')
    else:
        a('s_bfe_u32 s43, s2, 0x10003')
        a('s_and_b32 s57, s2, 7')
        a('s_lshr_b32 s58, s2, 4')
        a('s_lshl_b32 s58, s58, 3')
    CM = int(opt.get('cm', 0))
    if CM & 1:
        a('s_and_b32 s57, s2, 7')
        a('s_lshl_b32 s57, s57, 4')
        a('s_lshr_b32 s58, s2, 4')
    a('s_or_b32 s57, s57, s58')
    if DG: a('s_mov_b32 s97, s2')
    if CM & 2:
        a('s_and_b32 s2, s2, 7')
        a('s_lshl_b32 s2, s2, 5')
        a('s_or_b32 s2, s2, s56')
    a(f'v_add_u32 v1, {L_QS}, v{vT16}')
    a('s_cmp_lg_u32 s43, 0')
    a('s_cbranch_scc1 L_nz')
    for u in range(4): a(f'ds_write_b128 v1, v[{vX}:{vX+3}] offset:{8192*u}')
    a.label('L_nz')
    a(f'v_and_b32 v{vN}, 15, v0')
    a(f'v_bfe_u32 v{vG}, v0, 4, 2')
    a(f'v_and_b32 v{vLN}, 63, v0')
    a(f'v_mov_b32 v{vZ}, 0')
    a(f's_mov_b32 s41, {H}')
    a('s_mov_b32 s40, 0x7fff00')
    a('s_lshl_b32 s42, s3, 14')
    a(f's_add_u32 s42, s42, {LB}')
    a(f's_mul_i32 s58, s57, {CH*4}')
    a(f's_mov_b32 s59, {CH//8}')
    a(f's_cmp_eq_u32 s57, {P-1}')
    a(f's_cselect_b32 s59, {(E-(P-1)*CH)//8}, s59')
    a('s_waitcnt lgkmcnt(0)')
    srd(a, 12, 26, E * 4); srd(a, 20, 28, E * 4)
    srd(a, 16, 36, 256)
    a('s_cmp_lg_u32 s43, 0')
    a('s_cbranch_scc1 L_noedge')
    a('v_cmp_gt_u32 vcc, s59, v0')
    a('s_and_saveexec_b64 s[54:55], vcc')
    a('s_cbranch_execz L_noedge0')
    edge_loads(a, 's58')
    srd(a, 8, 38, 16384)
    a('s_lshl_b32 s46, s57, 7')
    a(f'buffer_load_dwordx2 v[{vTB}:{vTB+1}], v{vZ}, s[8:11], s46 offen sc0 sc1')
    a.label('L_noedge0')
    a('s_mov_b64 exec, s[54:55]')
    a.label('L_noedge')
    srd(a, 4, 24, XB)
    a('s_cmp_lg_u32 s43, 0')
    a('s_cbranch_scc1 L_nob1')
    a('s_barrier')
    a.label('L_nob1')
    SP = int(opt.get('sp', 0)); ES = int(opt.get('es', 0))
    if SP:
        a('s_cmp_eq_u32 s43, 0')
        a('s_cbranch_scc1 L_nsp')
        TW = int(opt.get('tw', 0))
        if TW & 1:
            a('s_cmp_lg_u32 s3, 0')
            a('s_cbranch_scc1 L_tw1')
            srd(a, 8, 38, 1 << 22)
            a(f'v_lshlrev_b32 v1, 16, v{vLN}')
            a(f'buffer_load_dword v{vPF}, v1, s[8:11], 0 offen')
            a.label('L_tw1')
        if TW & 2:
            a('s_sub_u32 s46, s3, 1')
            a('s_cmp_ge_u32 s46, 2')
            a('s_cbranch_scc1 L_tw2')
            srd(a, 8, 34, XB)
            a('s_lshl_b32 s46, s46, 22')
            a(f'v_lshlrev_b32 v1, 16, v{vLN}')
            a(f'v_add_u32 v1, s46, v1')
            a(f'buffer_load_dword v{vPF}, v1, s[8:11], 0 offen')
            a.label('L_tw2')
        a(f'v_lshlrev_b32 v1, 1, v{vG}')
        a(f'v_xor_b32 v1, v1, v{vN}')
        a(f'v_lshlrev_b32 v1, 4, v1')
        a(f'v_lshl_add_u32 v{vS}, v{vG}, 19, v1')
        a('s_lshl_b32 s47, s2, 8')
        a('s_lshl_b32 s46, s3, 16')
        a('s_add_u32 s47, s47, s46')
        a(f'v_add_u32 v{vS}, s47, v{vS}')
        for u in range(1, 4):
            a(f'v_add_u32 v{vS+u}, {(u*4<<19)-1024*u}, v{vS}')
            if u & 1: a(f'v_xor_b32 v{vS+u}, 128, v{vS+u}')
        a('s_lshl_b32 s46, s3, 12')
        a(f's_add_u32 m0, s46, {L_XO}')
        a(f'v_lshl_add_u32 v2, v{vG}, 8, v1')
        a('v_xor_b32 v3, 128, v2')
        for u in range(4):
            a(f'buffer_load_dwordx4 v{vS+u}, s[4:7], 0 offen offset:{1024*u} lds')
        srd(a, 8, 30, 32768)
        a('s_add_u32 s46, s56, s3')
        a('s_lshl_b32 s46, s46, 12')
        a('s_and_b32 s46, s46, 0x7000')
        a(f's_add_u32 m0, s46, {L_WQ}')
        a('s_nop 0')
        for u in range(4):
            a(f'buffer_load_dwordx4 v{2+(u>>1)}, s[8:11], s46 offen offset:{1024*u} lds')
        a('s_branch L_tag')
        a.label('L_nsp')
    a('s_cmp_lt_u32 s3, 6')
    a('s_cbranch_scc1 L_nodma')
    a(f'v_lshlrev_b32 v1, 1, v{vG}')
    a(f'v_xor_b32 v1, v1, v{vN}')
    a(f'v_lshlrev_b32 v1, 4, v1')
    a('s_add_u32 s46, s3, s43')
    a('s_cmp_eq_u32 s46, 6')
    a('s_cbranch_scc1 L_nodma')
    a('s_cmp_eq_u32 s46, 8')
    a('s_cbranch_scc1 L_wdma')
    if int(opt.get('tw', 0)) & 4:
        srd(a, 8, 38, 1 << 22)
        a(f'v_lshlrev_b32 v2, 16, v{vLN}')
        a(f'buffer_load_dword v{vPF}, v2, s[8:11], 0 offen')
    a(f'v_lshl_add_u32 v{vS}, v{vG}, 19, v1')
    a('s_lshl_b32 s47, s2, 8')
    a(f'v_add_u32 v{vS}, s47, v{vS}')
    for u in range(1, 4):
        a(f'v_add_u32 v{vS+u}, {(u*4<<19)-1024*u}, v{vS}')
        if u & 1: a(f'v_xor_b32 v{vS+u}, 128, v{vS+u}')
    a(f's_mov_b32 m0, {L_XO}')
    a('s_mov_b32 s46, 8')
    a.label('L_xl')
    for u in range(4):
        a(f'buffer_load_dwordx4 v{vS+u}, s[4:7], 0 offen offset:{1024*u} lds')
    for u in range(4):
        a(f'v_add_u32 v{vS+u}, 0x10000, v{vS+u}')
    a('s_add_u32 m0, m0, 4096')
    a('s_sub_u32 s46, s46, 1')
    a('s_cmp_lg_u32 s46, 0')
    a('s_cbranch_scc1 L_xl')
    a('s_cmp_eq_u32 s3, 6')
    a('s_cbranch_scc1 L_nodma')
    a.label('L_spin7')
    a(f'ds_read_b32 v2, v{vZ} offset:{L_CNT}')
    a('s_waitcnt lgkmcnt(0)')
    a('v_readfirstlane_b32 s50, v2')
    a(f's_cmp_lt_u32 s50, {int(opt.get("w7", 11))}')
    a('s_cbranch_scc1 L_spin7')
    a.label('L_wdma')
    a(f'v_lshl_add_u32 v2, v{vG}, 8, v1')
    a('v_xor_b32 v3, 128, v2')
    for wi, (lo, base) in enumerate(((30, L_WQ),)):
        srd(a, 8, lo, 32768)
        a('s_lshl_b32 s46, s56, 12')
        a('s_mov_b32 s47, 8')
        a.label(f'L_wl{wi}')
        a('s_and_b32 s46, s46, 0x7000')
        a(f's_add_u32 m0, s46, {base}')
        a('s_sub_u32 s47, s47, 1')
        for u in range(4):
            a(f'buffer_load_dwordx4 v{2+((u>>1) if wi == 0 else (u&1))}, s[8:11], s46 offen offset:{1024*u} lds')
        a('s_add_u32 s46, s46, 4096')
        a('s_cmp_lg_u32 s47, 0')
        a(f's_cbranch_scc1 L_wl{wi}')
    stamp(1)
    a('s_branch L_tagd')
    a.label('L_nodma')
    a('s_cmp_eq_u32 s43, 0')
    a('s_cbranch_scc1 L_prod')
    PF0 = int(opt.get('pf0', 0))
    if PF0 > 0:
        c = PF0 * 2 // 64
        a('s_cmp_ge_u32 s3, 4')
        a('s_cbranch_scc1 L_tag')
        a('s_lshr_b32 s47, s56, 1')
        a('s_lshl_b32 s47, s47, 2')
        a('s_add_u32 s46, s3, s47')
        a(f's_mul_i32 s46, s46, {c*128}')
        a(f'v_lshlrev_b32 v{vS+2}, 7, v{vLN}')
        for u in range((c + 63) // 64):
            a(f'buffer_load_dword v{vPF}, v{vS+2}, s[4:7], s46 offen')
            a(f's_add_u32 s46, s46, 8192')
    a('s_branch L_tag')
    a.label('L_prod')
    a('v_cmp_gt_u32 vcc, s59, v0')
    a('s_and_saveexec_b64 s[54:55], vcc')
    a('s_cbranch_execz L_binned')
    a('s_waitcnt vmcnt(3)')
    a('s_mov_b32 s46, 0x3fc')
    a(f'v_mov_b32 v1, 1')
    for j in range(8):
        a(f'v_lshlrev_b32 v{vCA+j}, 2, v{vA1+8+j}')
        a(f'v_and_b32 v{vCA+j}, s46, v{vCA+j}')
        a(f'ds_add_rtn_u32 v{vRK+j}, v{vCA+j}, v1 offset:{L_PC}')
    a('s_waitcnt vmcnt(1)')
    entries(a, vPE)
    a('s_mov_b64 s[76:77], exec')
    a('s_waitcnt vmcnt(0)')
    a(f'v_readfirstlane_b32 s48, v{vTB}')
    a(f'v_readfirstlane_b32 s49, v{vTB+1}')
    a('s_lshr_b32 s48, s48, 23')
    a('s_lshr_b32 s49, s49, 26')
    a('s_lshl_b32 s49, s49, 9')
    a('s_or_b32 s48, s48, s49')
    a('s_add_u32 s48, s48, 1')
    a('s_bitset1_b32 s48, 15')
    a('s_lshl_b32 s44, s48, 23')
    a('s_lshr_b32 s45, s48, 6')
    a('s_lshl_b32 s45, s45, 23')
    a('s_xor_b32 s52, s44, 0xff800000')
    a('s_xor_b32 s53, s45, 0xff800000')
    a('s_cmp_lg_u32 s3, 0')
    a('s_cbranch_scc1 L_nopub')
    a('s_lshl_b32 s49, s57, 1')
    a('v_mov_b32 v2, s48')
    a('s_mov_b64 exec, 1')
    a(f'buffer_store_short v2, v{vZ}, s[16:19], s49 offen sc0 sc1')
    a('s_mov_b64 exec, s[76:77]')
    a.label('L_nopub')
    a(f's_mov_b32 s46, {L_QS}')
    for j in range(8):
        a(f'v_lshl_add_u32 v{vCA+j}, v{vCA+j}, 5, s46')
    for j in range(8):
        if j == 0: a(f's_waitcnt lgkmcnt(0)')
        a(f'v_lshl_add_u32 v{vCA+j}, v{vRK+j}, 2, v{vCA+j}')
        a(f'v_cmpx_gt_u32 vcc, 32, v{vRK+j}')
        a(f'ds_write_b32 v{vCA+j}, v{vPE+j}')
        a('s_mov_b64 exec, s[76:77]')
    a(f'v_max3_u32 v2, v{vRK}, v{vRK+1}, v{vRK+2}')
    a(f'v_max3_u32 v2, v2, v{vRK+3}, v{vRK+4}')
    a(f'v_max3_u32 v2, v2, v{vRK+5}, v{vRK+6}')
    a(f'v_max_u32 v2, v2, v{vRK+7}')
    a(f'v_cmpx_lt_u32 vcc, 31, v2')
    a(f'ds_write_b32 v{vZ}, v1 offset:{L_OVF}')
    a.label('L_binned')
    a('s_mov_b64 exec, -1')
    a.label('L_tag')
    stamp(1)
    a.label('L_tagd')
    def slotld():
        a(f'buffer_load_dwordx4 v[{vPE}:{vPE+3}], v{vT16}, s[8:11], 0 offen sc0 sc1')
        a(f'buffer_load_dwordx4 v[{vPE+4}:{vPE+7}], v{vX+5}, s[8:11], 0 offen sc0 sc1')
    a('s_lshl_b32 s46, s2, 14')
    srd(a, 8, 38, 16384, add='s46')
    a(f'v_add_u32 v{vX+5}, 0x2000, v{vT16}')
    a('s_cmp_lg_u32 s43, 0')
    a('s_cbranch_scc1 L_copied')
    a('s_cmp_eq_u32 s3, 7')
    a('s_cbranch_scc1 L_copied')
    a('v_mov_b32 v1, 1')
    a('s_mov_b64 exec, 1')
    a('s_waitcnt lgkmcnt(0)')
    a(f'ds_add_u32 v{vZ}, v1 offset:{L_CNT}')
    a('s_mov_b64 exec, -1')
    a('s_cmp_ge_u32 s3, 4')
    a('s_cbranch_scc1 L_copied')
    a(f'v_add_u32 v{vX+4}, {L_QS}, v{vT16}')
    srd(a, 12, 38, 256 * 16384)
    a(f'v_lshrrev_b32 v{vX}, 3, v0')
    a(f'v_and_b32 v{vX+1}, 7, v0')
    a(f'v_lshlrev_b32 v{vX}, 14, v{vX}')
    a(f'v_lshl_add_u32 v{vX}, v{vX+1}, 4, v{vX}')
    a.label('L_spin')
    a(f'ds_read_b32 v1, v{vZ} offset:{L_CNT}')
    a('s_waitcnt lgkmcnt(0)')
    a('v_readfirstlane_b32 s50, v1')
    a('s_cmp_lt_u32 s50, 7')
    a('s_cbranch_scc1 L_spin')
    a(f'ds_read_b32 v1, v{vZ} offset:{L_OVF}')
    for u in range(8): a(f'ds_read_b128 v[{vT+4*u}:{vT+4*u+3}], v{vX+4} offset:{4096*u}')
    a('s_waitcnt lgkmcnt(8)')
    a('v_readfirstlane_b32 s50, v1')
    a('s_cmp_lg_u32 s50, 0')
    a('s_cbranch_scc1 L_ovf')
    a.label('L_copy')
    a('s_lshl_b32 s50, s57, 7')
    for u in range(8):
        a(f's_waitcnt lgkmcnt({7-u})')
        for k in range(4): a(f'v_xor_b32 v{vT+4*u+k}, s{(44,45,52,53)[k]}, v{vT+4*u+k}')
        a(f'buffer_store_dwordx4 v[{vT+4*u}:{vT+4*u+3}], v{vX}, s[12:15], s50 offen sc0 sc1')
        if u < 7: a(f's_add_u32 s50, s50, {1<<19}')
    a('v_mov_b32 v1, 1')
    a('s_mov_b64 exec, 1')
    a(f'ds_add_u32 v{vZ}, v1 offset:{L_CNT}')
    a('s_mov_b64 exec, -1')
    a.label('L_copied')
    stamp(2)
    for i in range(4): a(f'v_mov_b32 v{vX+i}, 0')
    a(f'ds_write_b128 v{vT16}, v[{vX}:{vX+3}]')
    a(f'ds_write_b128 v{vT16}, v[{vX}:{vX+3}] offset:8192')
    a(f'v_and_b32 v1, 7, v{vN}')
    a(f'v_lshlrev_b32 v1, 1, v1')
    a(f'v_xor_b32 v2, v1, v{vG}')
    a(f'v_lshlrev_b32 v2, 4, v2')
    a(f'v_lshl_add_u32 v3, v{vN}, 8, v2')
    a(f'v_add_u32 v{vRB}, {L_XO}, v3')
    a(f'v_and_b32 v3, 3, v{vN}')
    a(f'v_lshrrev_b32 v{vTMP}, 2, v{vN}')
    a(f'v_lshl_add_u32 v{vA1A}, v3, 2, v{vTMP}')
    a(f'v_lshl_add_u32 v{vA1A}, v{vA1A}, 8, v2')
    a(f'v_add_u32 v{vA1A}, s42, v{vA1A}')
    for s in range(1, 4):
        a(f'v_xor_b32 v{vRB+s}, {s<<6}, v{vRB}')
        a(f'v_xor_b32 v{vA1A+s}, {s<<6}, v{vA1A}')
    a(f'v_and_b32 v2, 1, v{vG}')
    a(f'v_lshl_or_b32 v2, v2, 2, v{vTMP}')
    a(f'v_lshlrev_b32 v2, 5, v2')
    a(f'v_lshl_or_b32 v2, v3, 3, v2')
    a(f'v_lshl_add_u32 v{vTRA}, v{vTMP}, 2, v{vG}')
    a(f'v_lshl_add_u32 v{vTRA}, v{vTRA}, 8, v2')
    a(f'v_add_u32 v{vTRA}, s42, v{vTRA}')
    for t in range(1, 8): a(f'v_xor_b32 v{vTRA+t}, {t<<5}, v{vTRA}')
    a(f'v_and_b32 v2, 0xe0, v2')
    a(f'v_lshlrev_b32 v3, 4, v3')
    a(f'v_xor_b32 v2, v2, v3')
    a('s_and_b32 s50, s3, 3')
    a('s_lshl_b32 s50, s50, 6')
    a(f'v_xor_b32 v2, s50, v2')
    a(f'v_lshl_add_u32 v{vX+6}, v{vG}, 3, v{vTMP}')
    a(f'v_lshl_add_u32 v{vX+6}, v{vX+6}, 8, v2')
    a(f'v_add_u32 v{vX+6}, {L_WQ}, v{vX+6}')
    a(f'v_lshl_add_u32 v{vX+7}, v{vG}, 2, v{vTMP}')
    a(f'v_lshl_add_u32 v{vX+7}, v{vX+7}, 8, v2')
    a(f'v_add_u32 v{vX+7}, {L_WV}, v{vX+7}')
    a(f'v_and_b32 v2, 1, v{vG}')
    a(f'v_lshlrev_b32 v2, 3, v2')
    a(f'v_xor_b32 v2, v2, v{vN}')
    a(f'v_lshlrev_b32 v{vGO}, 4, v2')
    for j in range(1, 4): a(f'v_xor_b32 v{vGO+j}, {j<<5}, v{vGO}')
    a('s_lshl_b32 s51, s3, 4')
    a('s_add_u32 s51, s51, 1')
    a(f'v_add_u32 v{vKEY}, s51, v{vN}')
    a('s_lshr_b32 s51, s3, 2')
    a('s_lshl_b32 s51, s51, 14')
    for s in range(4): a(f'v_add_u32 v{vX+8+s}, s51, v{vRB+s}')
    a(f'v_xor_b32 v1, s50, v{vX+8}')
    a(f'v_add_u32 v1, {L_QS-L_XO}, v1')
    if SP:
        a('s_lshl_b32 s46, s43, 3')
        a('s_add_u32 s46, s46, s3')
        a('s_cmp_lt_u32 s46, 6')
    else:
        a('s_cmp_lt_u32 s3, 6')
    a('s_cbranch_scc1 L_w4')
    a('s_waitcnt vmcnt(0)')
    a.label('L_w4')
    a('s_waitcnt lgkmcnt(0)')
    a('s_barrier')
    stamp(1, 2)
    if int(opt.get('pr', 0)) == 5:
        a('s_cmp_lt_u32 s3, 4')
        a('s_cbranch_scc1 L_p5')
        a('s_setprio 1')
        a.label('L_p5')
    a('s_cmp_lg_u32 s3, 0')
    a('s_cbranch_scc1 L_nt1')
    a(f'v_lshlrev_b32 v2, 2, v0')
    a(f'buffer_load_dword v3, v2, s[16:19], 0 offen sc0 sc1')
    a.label('L_nt1')
    srd(a, 12, 32, 32768)
    a('s_lshl_b32 s46, s3, 12')
    a(f's_add_u32 m0, s46, {L_WV}')
    a(f'v_lshlrev_b32 v{vS}, 1, v{vG}')
    a(f'v_xor_b32 v{vS}, v{vS}, v{vN}')
    a(f'v_lshlrev_b32 v{vS}, 4, v{vS}')
    a(f'v_lshl_add_u32 v{vS}, v{vG}, 8, v{vS}')
    a(f'v_xor_b32 v{vS+1}, 128, v{vS}')
    for u in range(4):
        a(f'buffer_load_dwordx4 v{vS+(u&1)}, s[12:15], s46 offen offset:{1024*u} lds')
    def prefetch(r0, rows, fixed=None):
        c = rows * 2 // 256
        ni = (c + 63) // 64
        a('s_lshl_b32 s47, s56, 3')
        a('s_add_u32 s46, s3, s47')
        a(f's_mul_i32 s46, s46, {c*128}')
        a(f's_add_u32 s46, s46, {r0*256}')
        a(f'v_lshlrev_b32 v{vS+2}, 7, v{vLN}')
        for u in range(fixed or ni):
            n = max(1, min(64, c - 64 * u))
            if n < 64: a(f's_mov_b64 exec, {hex((1 << n) - 1)}')
            a(f'buffer_load_dword v{vPF}, v{vS+2}, s[4:7], s46 offen')
            if n < 64: a('s_mov_b64 exec, -1')
            if c > 64 * (u + 1): a(f's_add_u32 s46, s46, 8192')
    PF1 = int(opt.get('pf1', 0)); NPF = 2
    if PF1 > 0:
        c = PF1 * 2 // 128
        NPF = (c + 63) // 64
        a('s_lshr_b32 s47, s56, 1')
        a('s_lshl_b32 s47, s47, 3')
        a('s_add_u32 s46, s3, s47')
        a(f's_mul_i32 s46, s46, {c*128}')
        a(f's_add_u32 s46, s46, {PF0*256}')
        a(f'v_lshlrev_b32 v{vS+2}, 7, v{vLN}')
        a('s_cmp_lg_u32 s43, 0')
        a('s_cselect_b64 exec, -1, 1')
        for u in range(NPF):
            a(f'buffer_load_dword v{vPF}, v{vS+2}, s[4:7], s46 offen')
            a(f's_add_u32 s46, s46, 8192')
        a('s_mov_b64 exec, -1')
    elif int(opt.get('opf', 0)):
        srd(a, 12, 24, PFN * 256)
        a('s_lshl_b32 s47, s56, 3')
        a('s_add_u32 s46, s3, s47')
        a(f's_mul_i32 s46, s46, 8192')
        a(f'v_mul_u32_u24 v{vS+2}, 128, v{vLN}')
        a(f'v_add_u32 v{vS+2}, s46, v{vS+2}')
        a(f'v_add_u32 v{vS+3}, 2097152, v{vS+2}')
        a(f'buffer_load_dword v{vPF}, v{vS+2}, s[12:15], 0 offen')
        a(f'buffer_load_dword v{vPF}, v{vS+3}, s[12:15], 0 offen')
    elif PFN > 0:
        prefetch(PF0, PFN, 2)
    else:
        slotld()
    for h in range(2):
        for k in range(8):
            r = vQB + 16 * h + 2 * k
            a(f'ds_read_b64_tr_b16 v[{r}:{r+1}], v{vX+6} offset:{8192*(k>>1)+1024*(k&1)+8*h}')
        a('s_waitcnt lgkmcnt(3)')
    gemm4(a, vQB, vX + 8, lambda T: 4096 * T, vACC)
    if ES:
        slotld(); NPF += 2
    a('s_nop 4')
    a('s_mov_b32 s51, 0xbe0293ee')
    for T in range(4):
        for r in range(8): a(f'v_mul_f32 v{vACC+8*T+r}, s51, v{vACC+8*T+r}')
        for r in range(4): a(f'v_cvt_pk_bf16_f32 v{vA1+4*T+r}, v{vACC+8*T+2*r}, v{vACC+8*T+2*r+1}')
        a(f'ds_write_b128 v1, v[{vA1+4*T}:{vA1+4*T+3}] offset:{4096*T}')
    for i in range(32): a(f'v_mov_b32 v{vACC+i}, 0')
    a('s_lshl_b32 s51, s3, 12')
    a(f's_add_u32 s51, s51, {L_QS-L_XO}')
    for s in range(4): a(f'v_add_u32 v{vX+s}, s51, v{vRB+s}')
    a(f's_waitcnt vmcnt({NPF})')
    a('s_cmp_lg_u32 s3, 0')
    a('s_cbranch_scc1 L_nt2')
    a(f's_mov_b32 s50, {TMO}')
    a('s_mov_b32 s51, 0x80008000')
    a.label('L_tp')
    a(f'v_and_b32 v1, s51, v3')
    a('v_cmp_ne_u32 vcc, s51, v1')
    a('s_cbranch_vccz L_tp2')
    a(f'buffer_load_dword v3, v2, s[16:19], 0 offen sc0 sc1')
    a('s_waitcnt vmcnt(0)')
    a('s_sub_u32 s50, s50, 1')
    a('s_cbranch_scc0 L_tp')
    a.label('L_tp2')
    a(f'ds_write_b32 v2, v3 offset:{L_TAGS}')
    a.label('L_nt2')
    stamp(2, 2)
    srd(a, 16, 34, XB)
    a(f'v_lshrrev_b32 v1, 2, v0')
    a(f'v_and_b32 v1, 0x7e, v1')
    a('s_waitcnt lgkmcnt(0)')
    a('s_barrier')
    a(f'ds_read_u16 v2, v1 offset:{L_TAGS}')
    a(f'ds_read_u16 v3, v1 offset:{L_TAGS+128}')
    for s in range(4): a(f'ds_read_b128 v[{vQB+4*s}:{vQB+4*s+3}], v{vX+s}')
    if PFN > 0 and not ES:
        slotld()
    stamp(3)
    for h in range(2):
        for k in range(8):
            r = vWV + 16 * h + 2 * k
            a(f'ds_read_b64_tr_b16 v[{r}:{r+1}], v{vX+7} offset:{8192*(k>>1)+4096*(k&1)+8*h}')
        if h == 0: a('s_waitcnt lgkmcnt(7)')
    a(f's_mov_b32 s50, {TMO}')
    a('s_mov_b32 s51, 0xff800000')
    for h in range(2):
        a(f'v_lshlrev_b32 v{vTB+4*h}, 23, v{2+h}')
        a(f'v_lshrrev_b32 v{vTB+4*h+1}, 6, v{2+h}')
        a(f'v_lshlrev_b32 v{vTB+4*h+1}, 23, v{vTB+4*h+1}')
        a(f'v_xor_b32 v{vTB+4*h+2}, s51, v{vTB+4*h}')
        a(f'v_xor_b32 v{vTB+4*h+3}, s51, v{vTB+4*h+1}')
    a('v_and_b32 v2, v2, v3')
    a('v_cmp_gt_u32 vcc, 0x8000, v2')
    a('s_cbranch_vccnz L_fail')
    a('s_mov_b32 s51, 0x800000')
    a.label('L_poll')
    a('s_waitcnt vmcnt(0)')
    for j in range(8): a(f'v_xor_b32 v{vRK+j}, v{vTB+j}, v{vPE+j}')
    a(f'v_or3_b32 v1, v{vRK}, v{vRK+1}, v{vRK+2}')
    a(f'v_or3_b32 v2, v{vRK+4}, v{vRK+5}, v{vRK+6}')
    a(f'v_or3_b32 v1, v1, v{vRK+3}, v{vRK+7}')
    a(f'v_or_b32 v1, v1, v2')
    a('v_cmpx_le_u32 vcc, s51, v1')
    a('s_cbranch_execz L_got')
    a(f'buffer_load_dwordx4 v[{vPE}:{vPE+3}], v{vT16}, s[8:11], 0 offen sc0 sc1')
    a(f'buffer_load_dwordx4 v[{vPE+4}:{vPE+7}], v{vX+5}, s[8:11], 0 offen sc0 sc1')
    a('s_sub_u32 s50, s50, 1')
    a('s_cbranch_scc0 L_poll')
    a('s_mov_b64 exec, -1')
    a.label('L_fail')
    a('s_waitcnt vmcnt(0)')
    a('s_lshl_b32 s50, s3, 3')
    a('s_lshl_b32 s50, 0xff, s50')
    a('s_and_b32 s51, s3, 4')
    a('v_mov_b32 v1, s50')
    a('v_mov_b32 v2, s51')
    a(f'ds_or_b32 v2, v1 offset:{L_RS}')
    a(f'ds_or_b32 v2, v1 offset:{L_RS+8}')
    for j in range(8): a(f'v_mov_b32 v{vRK+j}, 0')
    a.label('L_got')
    a('s_mov_b64 exec, -1')
    stamp(4)
    if PF2 > 0: prefetch(PFN, PF2)
    a(f'v_cmp_eq_u32 vcc, 0x70, v{vRK}')
    a(f'v_cmp_eq_u32 s[50:51], v{vRK+4}, v{vRK+5}')
    a.lines.pop()
    a(f'v_mov_b32 v1, 0x70')
    a(f'v_cmp_eq_u32 s[50:51], v1, v{vRK+4}')
    for j in range(8): a(f'v_mov_b32 v{vPE+j}, v{vRK+j}')
    a('s_or_b64 s[54:55], vcc, s[50:51]')
    a('s_cbranch_scc1 L_mark')
    if NS:
        a.label('L_place')
        a('v_mov_b32 v1, 1')
        for j in range(8):
            a(f'v_lshrrev_b32 v{vCA+j}, 2, v{vPE+j}')
            a(f'v_and_b32 v{vCA+j}, 0x1c, v{vCA+j}')
            a(f'v_mov_b32 v{vRK+j}, -1')
            a(f'v_cmpx_ne_u32 vcc, 0, v{vPE+j}')
            a(f'ds_add_rtn_u32 v{vRK+j}, v{vCA+j}, v1 offset:{L_C+32}')
            a('s_mov_b64 exec, -1')
        for j in range(8): a(f'v_lshlrev_b32 v{vTB+j}, 9, v{vCA+j}')
        a('s_lshl_b32 s50, s3, 2')
        a('v_mov_b32 v3, s50')
        a(f's_mov_b32 s51, {CAP}')
        for j in range(8):
            if j == 0: a(f's_waitcnt lgkmcnt(0)')
            a(f'v_lshl_add_u32 v{vTB+j}, v{vRK+j}, 2, v{vTB+j}')
            a(f'v_cmpx_gt_u32 vcc, s51, v{vRK+j}')
            a(f'ds_write_b32 v{vTB+j}, v{vPE+j}')
            a(f'v_mov_b32 v{vPE+j}, 0')
            a('s_mov_b64 exec, -1')
    else:
        a.label('L_place')
        a('v_mov_b32 v1, 1')
        for j in range(8):
            a(f'v_lshrrev_b32 v{vCA+j}, 2, v{vPE+j}')
            a(f'v_and_b32 v{vCA+j}, 0x3c, v{vCA+j}')
            a(f'v_mov_b32 v{vRK+j}, -1')
            a(f'v_cmpx_ne_u32 vcc, 0, v{vPE+j}')
            a(f'ds_add_rtn_u32 v{vRK+j}, v{vCA+j}, v1 offset:{L_C+32}')
            a('s_mov_b64 exec, -1')
        for j in range(8):
            a(f'v_and_b32 v{vTB+j}, 0x1c, v{vCA+j}')
            a(f'v_lshlrev_b32 v{vTB+j}, 9, v{vTB+j}')
        a('s_lshl_b32 s50, s3, 2')
        a('v_mov_b32 v3, s50')
        a(f's_mov_b32 s51, {CAP}')
        a('s_waitcnt lgkmcnt(0)')
        a('s_barrier')
        for j in range(8): a(f'ds_read_b32 v{vCA+j}, v{vCA+j} offset:{L_C}')
        a(f'ds_read2_b32 v[{vX}:{vX+1}], v3 offset0:0 offset1:8') ; a.lines.pop()
        a(f'ds_read_b32 v{vX}, v3 offset:{L_C+32}')
        a(f'ds_read_b32 v{vX+1}, v3 offset:{L_C+64}')
        for j in range(8):
            if j == 0: a(f's_waitcnt lgkmcnt(0)')
            a(f'v_add_u32 v{vRK+j}, v{vRK+j}, v{vCA+j}')
            a(f'v_lshl_add_u32 v{vTB+j}, v{vRK+j}, 2, v{vTB+j}')
            a(f'v_and_b32 v{vCA+j}, 0xffffff7f, v{vPE+j}')
            a(f'v_cmpx_gt_u32 vcc, s51, v{vRK+j}')
            a(f'ds_write_b32 v{vTB+j}, v{vCA+j}')
            a(f'v_mov_b32 v{vPE+j}, 0')
            a('s_mov_b64 exec, -1')
    a(f'v_or3_b32 v1, v{vPE}, v{vPE+1}, v{vPE+2}')
    a(f'v_or3_b32 v1, v1, v{vPE+3}, v{vPE+4}')
    a(f'v_or3_b32 v1, v1, v{vPE+5}, v{vPE+6}')
    a(f'v_or_b32 v1, v1, v{vPE+7}')
    a('v_cmpx_ne_u32 vcc, 0, v1')
    a(f'ds_write_b32 v{vZ}, v1 offset:{L_SLOW}')
    a('s_mov_b64 exec, -1')
    if not NS: a(f'v_add_u32 v{vX}, v{vX}, v{vX+1}')
    a('s_lshl_b32 s50, s3, 11')
    a(f'v_lshl_add_u32 v{vLA}, v{vG}, 5, s50')
    if not NS: a(f'v_readfirstlane_b32 s53, v{vX}')
    a('s_waitcnt lgkmcnt(0)')
    a('s_barrier')
    if NS: a(f'ds_read_b32 v2, v3 offset:{L_C+32}')
    eread(a, 0, 0)
    eread(a, 1, 128)
    a(f'ds_read_b32 v1, v{vZ} offset:{L_SLOW}')
    a(f'ds_read_b128 v[{vX}:{vX+3}], v{vZ} offset:{L_RS}')
    if NS:
        a('s_waitcnt lgkmcnt(6)')
        a('v_readfirstlane_b32 s53, v2')
    a('s_min_u32 s53, s53, s51')
    a('s_add_u32 s53, s53, 31')
    a('s_lshr_b32 s53, s53, 5')
    stamp(5)
    a('s_cmp_eq_u32 s53, 0')
    a('s_cbranch_scc1 L_noi')
    a('s_waitcnt lgkmcnt(4)')
    issue(a, 0)
    a('s_cmp_eq_u32 s53, 1')
    a('s_cbranch_scc1 L_noi')
    a('s_waitcnt lgkmcnt(2)')
    issue(a, 1)
    a.label('L_noi')
    a('s_waitcnt lgkmcnt(0)')
    a('v_readfirstlane_b32 s52, v1')
    for i in range(4): a(f'v_readfirstlane_b32 s{76+i}, v{vX+i}')
    a('s_cmp_eq_u32 s53, 0')
    a('s_cbranch_scc1 L_done')
    PR = int(opt.get('pr', 0))
    if PR in (1, 4):
        a('s_cmp_lt_u32 s3, 4')
        a('s_cbranch_scc1 L_loop')
        a('s_setprio 1')
    if PR in (2, 3): a('s_lshr_b32 s96, s3, 2')
    a.label('L_loop')
    for b in range(2):
        if PR == 2:
            a(f's_cmp_eq_u32 s96, {b}')
            a(f's_cbranch_scc1 L_pa{b}')
            a('s_setprio 1')
            a(f's_branch L_pb{b}')
            a.label(f'L_pa{b}')
            a('s_setprio 0')
            a.label(f'L_pb{b}')
        if PR == 3 and b == 0:
            a('s_cmp_eq_u32 s96, 2')
            a('s_cbranch_scc0 L_pc')
            a('s_setprio 1')
            a.label('L_pc')
            a('s_lshl_b32 s96, s96, 1')
        body(a, b, opt)
    a('s_branch L_loop')
    a.label('L_done')
    if PR in (1, 2, 3, 5): a('s_setprio 0')
    stamp(6)
    a('s_or_b64 s[54:55], s[76:77], s[78:79]')
    a('s_or_b32 s54, s54, s55')
    a('s_or_b32 s54, s54, s52')
    a('s_cbranch_scc1 L_slow')
    a(f's_sub_u32 s50, s42, {L_XO}')
    a('s_lshr_b32 s51, s3, 2')
    a('s_lshl_b32 s51, s51, 16')
    a(f's_add_u32 s51, s51, {(LB-L_XO)&0xffffffff}')
    for s in range(4):
        for r in range(4): a(f'v_cvt_pk_bf16_f32 v{vA1+4*s+r}, v{vACC+8*s+2*r}, v{vACC+8*s+2*r+1}')
        a(f'v_add_u32 v2, s50, v{vRB+s}')
        a(f'ds_write_b128 v2, v[{vA1+4*s}:{vA1+4*s+3}]')
        a(f'v_add_u32 v{vX+s}, s51, v{vRB+s}')
    a(f'v_lshlrev_b32 v1, 19, v{vN}')
    a(f'v_lshl_add_u32 v1, v{vG}, 4, v1')
    a('s_lshl_b32 s50, s2, 8')
    a('s_and_b32 s51, s3, 3')
    a('s_lshl_b32 s51, s51, 6')
    a('s_add_u32 s50, s50, s51')
    a('s_lshr_b32 s51, s3, 2')
    a('s_lshl_b32 s51, s51, 18')
    a('s_add_u32 s50, s50, s51')
    a('v_add_u32 v1, s50, v1')
    a('s_waitcnt lgkmcnt(0)')
    a('s_barrier')
    gemm4(a, vWV, vX, lambda T: 16384 * T, vACC)
    for T in range(4):
        if T == 3: a('s_nop 4')
        for r in range(4): a(f'v_cvt_pk_bf16_f32 v{vA1+4*T+r}, v{vACC+8*T+2*r}, v{vACC+8*T+2*r+1}')
        a(f'buffer_store_dwordx4 v[{vA1+4*T}:{vA1+4*T+3}], v1, s[16:19], 0 offen')
        if T < 3: a('v_add_u32 v1, 0x10000, v1')
    if DG:
        a('s_waitcnt vmcnt(0)')
        stamp(7)
        a('s_waitcnt lgkmcnt(0)')
        srd(a, 8, 38, 1 << 20, add=200 << 20)
        a('s_lshl_b32 s60, s97, 3')
        a('s_add_u32 s60, s60, s3')
        a('s_lshl_b32 s60, s60, 5')
        for i in range(8): a(f'v_mov_b32 v{16+i}, s{80+2*i}')
        a('v_mov_b32 v12, 0')
        a(f'v_cmpx_eq_u32 vcc, 0, v{vLN}')
        a('buffer_store_dwordx4 v[16:19], v12, s[8:11], s60 offen')
        a('buffer_store_dwordx4 v[20:23], v12, s[8:11], s60 offen offset:16')
    a.label('L_end')
    a('s_endpgm')
    a.label('L_ovf')
    a(f'v_lshrrev_b32 v1, 1, v0')
    a(f'v_and_b32 v1, 0xfc, v1')
    for u in range(8): a(f'ds_read_b32 v{vRK+u}, v1 offset:{L_PC+128*u}')
    a('s_waitcnt lgkmcnt(0)')
    for u in range(8):
        a(f'v_cmpx_lt_u32 vcc, 32, v{vRK+u}')
        a(f'v_mov_b32 v{vT+4*u}, 0x70')
        for k in range(1, 4): a(f'v_mov_b32 v{vT+4*u+k}, 0')
        a('s_mov_b64 exec, -1')
    a('s_branch L_copy')
    a.label('L_mark')
    a('v_lshrrev_b32 v1, 3, v0')
    a('v_lshlrev_b32_e64 v2, v1, 1')
    a('v_lshrrev_b32 v1, 3, v1')
    a('v_and_b32 v1, 4, v1')
    a('s_mov_b64 exec, vcc')
    a(f'ds_or_b32 v1, v2 offset:{L_RS}')
    a(f'v_mov_b32 v{vPE}, 0')
    a('s_mov_b64 exec, s[50:51]')
    a(f'ds_or_b32 v1, v2 offset:{L_RS+8}')
    a(f'v_mov_b32 v{vPE+4}, 0')
    a('s_mov_b64 exec, -1')
    a('s_branch L_place')
    a.label('L_slow')
    a('s_barrier')
    for i in range(4): a(f'v_mov_b32 v{vX+i}, 0')
    a(f'ds_write_b128 v{vT16}, v[{vX}:{vX+3}]')
    a(f'ds_write_b128 v{vT16}, v[{vX}:{vX+3}] offset:8192')
    a('s_cmp_lg_u32 s52, 0')
    a('s_cbranch_scc1 L_slow_go')
    a('s_cmp_eq_u64 s[76:77], 0')
    a('s_cbranch_scc1 L_slow_hi')
    a('s_ff1_i32_b64 s57, s[76:77]')
    a('s_bitset0_b64 s[76:77], s57')
    a('s_branch L_slow_ld')
    a.label('L_slow_hi')
    a('s_ff1_i32_b64 s57, s[78:79]')
    a('s_bitset0_b64 s[78:79], s57')
    a('s_add_u32 s57, s57, 64')
    a.label('L_slow_ld')
    srd(a, 12, 26, E * 4)
    a(f's_mul_i32 s58, s57, {CH*4}')
    a(f's_mov_b32 s59, {CH//8}')
    a(f's_cmp_eq_u32 s57, {P-1}')
    a(f's_cselect_b32 s59, {(E-(P-1)*CH)//8}, s59')
    edge_loads(a, 's58')
    a('s_waitcnt vmcnt(0)')
    entries(a, vPE)
    a('v_cmp_gt_u32 s[54:55], s59, v0')
    for j in range(8):
        a(f'v_and_b32 v1, 0xff, v{vA1+8+j}')
        a('v_cmp_eq_u32 vcc, s2, v1')
        a('s_and_b64 vcc, vcc, s[54:55]')
        a('s_nop 1')
        a(f'v_cndmask_b32 v{vPE+j}, 0, v{vPE+j}, vcc')
    a.label('L_slow_go')
    for i in range(4): a(f'v_mov_b32 v{vS+i}, s{76+i}')
    a(f'v_cmp_gt_u32 vcc, 7, v0')
    a('s_and_saveexec_b64 s[54:55], vcc')
    for i in range(4): a(f'v_mov_b32 v{vX+i}, 0')
    a(f'ds_write_b128 v{vT16}, v[{vX}:{vX+3}] offset:{L_C}')
    a(f'ds_write_b128 v{vZ}, v[{vS}:{vS+3}] offset:{L_RS}')
    a('s_mov_b64 exec, -1')
    a('s_waitcnt lgkmcnt(0)')
    a('s_barrier')
    a('s_branch L_place')
    return a

HDR = open('cdna_kernels/%s.s.ref' % NAME).read().split('; Override')[0]
def build(opt):
    a = kern(opt)
    for e in check(a.lines, 'k'): print('HAZARD', e)
    t = HDR + f'; @launch grid=(256,1,1) block=(512,1,1) lds={LDS}\n'
    t += '.amdgcn_target "amdgcn-amd-amdhsa--gfx950"\n.text\n'
    t += f'.globl {NAME}_kernel\n.p2align 8\n.type {NAME}_kernel,@function\n' + a.text()
    t += f'''.section .rodata,"a"
.p2align 6
.amdhsa_kernel {NAME}_kernel
  .amdhsa_next_free_vgpr {NV}
  .amdhsa_next_free_sgpr 100
  .amdhsa_accum_offset {(NV+3)//4*4}
  .amdhsa_group_segment_fixed_size 0
  .amdhsa_kernarg_size 64
  .amdhsa_user_sgpr_count 2
  .amdhsa_user_sgpr_kernarg_segment_ptr 1
  .amdhsa_system_sgpr_workgroup_id_x 1
.end_amdhsa_kernel
'''
    return t
if __name__ == '__main__':
    out = sys.argv[1] if len(sys.argv) > 1 else f'cdna_kernels/{NAME}.s'
    opt = dict(kv.split('=', 1) for kv in sys.argv[2:])
    open(out, 'w').write(build(opt))
```

```python
import sys
sys.path.insert(0, 'gen')
from asmlib import Asm, check
N = 25000; E = 400000; XB = N * 256
CH = 3128; P = 128
NAME = 'standalone__kernel_systems_refs_featgraph__graph'
L_LIST = 0; L_PC = 16384; L_C = 17408; LB = 18432
L_SLOW = L_C + 96; L_OVF = L_C + 100; L_CNT = L_C + 128; L_TAGS = L_C + 256; L_TAG = L_C + 104; L_RS = L_C + 112
L_WQ = LB; L_WV = LB + 32768; L_XO = LB + 65536; L_QS = LB + 98304
LDS = LB + 131072
CAP = 384
vGO = 4; vA1A = 8; vTRA = 12; vKEY = 20; vLA = 21; vZ = 22; vT16 = 23; vRB = 24
vN = 28; vG = 29; vLN = 30; vTMP = 31
vACC = 32; vQB = 64; vWV = 196; vA1 = 96; vT = 128; vS = 160; vE = 168; vB = 184; vAD = 188
vPE = 228; vRK = 112; vCA = 120; vTB = 144; vX = 236; vPF = 251
NV = 252
sM = 60

def srd(a, d, lo, nrec, add=None):
    if add is None:
        a(f's_mov_b32 s{d}, s{lo}')
        a(f's_and_b32 s{d+1}, s{lo+1}, 0xffff')
    else:
        a(f's_add_u32 s{d}, s{lo}, {add}')
        a(f's_addc_u32 s{d+1}, s{lo+1}, 0')
        a(f's_and_b32 s{d+1}, s{d+1}, 0xffff')
    a(f's_mov_b32 s{d+2}, {nrec}')
    a(f's_mov_b32 s{d+3}, 0x20000')

def mf(d, A, B, C): return f'v_mfma_f32_16x16x32_bf16 v[{d}:{d+3}], v[{A}:{A+3}], v[{B}:{B+3}], {C}'

def edge_loads(a, soff):
    a(f'v_lshlrev_b32 v{vX}, 5, v0')
    a(f'buffer_load_dwordx4 v[{vA1+8}:{vA1+11}], v{vX}, s[20:23], {soff} offen')
    a(f'buffer_load_dwordx4 v[{vA1+12}:{vA1+15}], v{vX}, s[20:23], {soff} offen offset:16')
    a(f'buffer_load_dwordx4 v[{vA1}:{vA1+3}], v{vX}, s[12:15], {soff} offen')
    a(f'buffer_load_dwordx4 v[{vA1+4}:{vA1+7}], v{vX}, s[12:15], {soff} offen offset:16')

def entries(a, dst):
    a(f'v_mov_b32 v{vX+1}, 0x81')
    for j in range(8):
        a(f'v_cmp_le_u32 s[{sM+2*j}:{sM+2*j+1}], s41, v{vA1+j}')
    for j in range(8):
        s, d = vA1 + j, vA1 + 8 + j
        a(f'v_lshrrev_b32 v{vX+2}, 4, v{d}')
        a(f'v_and_b32 v{vX+2}, 0x70, v{vX+2}')
        a(f'v_lshl_or_b32 v{dst+j}, v{s}, 8, v{vX+2}')
        a(f'v_lshrrev_b32 v{vX+2}, 11, v{d}')
        a(f'v_cndmask_b32 v{vX+3}, 1, v{vX+1}, s[{sM+2*j}:{sM+2*j+1}]')
        a(f'v_add3_u32 v{dst+j}, v{dst+j}, v{vX+2}, v{vX+3}')

def issue(a, b, fill=None):
    for j in range(8):
        if j == 0: a(f's_add_u32 m0, s42, {8192*b}')
        else: a('s_add_u32 m0, m0, 1024')
        a(f'v_and_or_b32 v{vAD+j}, v{vE+8*b+j}, s40, v{vGO+(j&3)}')
        a(f'buffer_load_dwordx4 v{vAD+j}, s[4:7], 0 offen lds')
        if fill: fill()

def eread(a, b, off):
    a(f'ds_read_b128 v[{vE+8*b}:{vE+8*b+3}], v{vLA} offset:{off}')
    a(f'ds_read_b128 v[{vE+8*b+4}:{vE+8*b+7}], v{vLA} offset:{off+16}')

def gemm4(a, A, addr, offs, D):
    order = [(T, s) for T in range(4) for s in range(4)]
    def rd(i):
        T, s = order[i]
        r = vA1 + 4 * i
        a(f'ds_read_b128 v[{r}:{r+3}], v{addr+s} offset:{offs(T)}')
    for i in range(12): rd(i)
    for i, (T, s) in enumerate(order):
        a(f's_waitcnt lgkmcnt({min(15, i+11) - i})')
        r = vA1 + 4 * i
        for h in range(2):
            d = D + 4 * (2 * T + h)
            a(mf(d, A + 16 * h + 4 * s, r, '0' if s == 0 else f'v[{d}:{d+3}]'))
        if i + 12 < 16: rd(i + 12)

def body(a, b, opt):
    tr = lambda k: f'ds_read_b64_tr_b16 v[{vT+2*k}:{vT+2*k+1}], v{vTRA+(k>>1)} offset:{8192*b+4096*(k&1)}'
    a('s_cmp_eq_u32 s53, 1')
    a(f's_cbranch_scc1 W0_{b}')
    a('s_waitcnt vmcnt(8)')
    a(f's_branch W1_{b}')
    a.label(f'W0_{b}')
    a('s_waitcnt vmcnt(0)')
    a.label(f'W1_{b}')
    for bb in range(2):
        for s in range(4):
            r = vA1 + 16 * bb + 4 * s
            a(f'ds_read_b128 v[{r}:{r+3}], v{vA1A+s} offset:{8192*b+4096*bb}')
    for j in range(8):
        a(f'v_cmp_eq_u32_sdwa s[{sM+2*j}:{sM+2*j+1}], v{vE+8*b+j}, v{vKEY} src0_sel:BYTE_0 src1_sel:DWORD')
    eread(a, b, 256 + 128 * b)
    for k in range(5): a(tr(k))
    a('s_waitcnt lgkmcnt(11)')
    for s in range(4): a(mf(vS, vA1 + 4 * s, vQB + 4 * s, '0' if s == 0 else f'v[{vS}:{vS+3}]'))
    for k in range(5, 9): a(tr(k))
    a('s_waitcnt lgkmcnt(11)')
    for s in range(4): a(mf(vS + 4, vA1 + 16 + 4 * s, vQB + 4 * s, '0' if s == 0 else f'v[{vS+4}:{vS+7}]'))
    for k in range(9, 13): a(tr(k))
    a('s_waitcnt lgkmcnt(11)')
    for k in range(13, 16): a(tr(k))
    if b == 1: a(f'v_add_u32 v{vLA}, 256, v{vLA}')
    for j in range(4): a(f'v_exp_f32 v{vS+j}, v{vS+j}')
    sig = [f'v_exp_f32 v{vS+j}, v{vS+j}' for j in range(4, 8)]
    sig += [f'v_add_f32 v{vS+j}, 1.0, v{vS+j}' for j in range(8)]
    sig += [f'v_rcp_f32 v{vS+j}, v{vS+j}' for j in range(8)]
    sig += [f'v_cndmask_b32 v{vS+j}, 0, v{vS+j}, s[{sM+2*j}:{sM+2*j+1}]' for j in range(8)]
    sig += [f'v_cvt_pk_bf16_f32 v{vB+u}, v{vS+2*u}, v{vS+2*u+1}' for u in range(4)]
    a('s_cmp_lt_u32 s53, 3')
    a(f's_cbranch_scc1 NI_{b}')
    a('s_waitcnt lgkmcnt(0)')
    it = iter(sig)
    def fill():
        for _ in range(3):
            x = next(it, None)
            if x: a(x)
    issue(a, b, fill)
    for x in it: a(x)
    a(f's_branch DI_{b}')
    a.label(f'NI_{b}')
    a('s_nop 1')
    for x in sig: a(x)
    a('s_waitcnt lgkmcnt(0)')
    a.label(f'DI_{b}')
    a('s_sub_u32 s53, s53, 1')
    a('s_cmp_eq_u32 s53, 0')
    for t in range(8):
        a(mf(vACC + 4 * t, vT + 4 * t, vB, f'v[{vACC+4*t}:{vACC+4*t+3}]'))
    a('s_cbranch_scc1 L_done')

def kern(opt):
    a = Asm()
    DG = opt.get('diag'); H = int(opt.get('H', 12544)); PFS = int(opt.get('pfs', 128)); PFN = int(opt.get('pfn', H))
    TMO = int(opt.get('tmo', 4000)); NS = int(opt.get('ns', 0)); PF2 = int(opt.get('pf2', 0))
    if NS: H = 1 << 20
    def stamp(i, m=None):
        if DG == '2' and i in (1, 2) and m is None: return
        if DG != '2' and m is not None: return
        if DG: a(f's_memrealtime s[{80+2*i}:{81+2*i}]')
    a.label(f'{NAME}_kernel')
    a('s_cmp_ge_u32 s2, 256')
    a('s_cbranch_scc1 L_end')
    a('s_load_dwordx16 s[24:39], s[0:1], 0')
    stamp(0)
    a('v_lshrrev_b32 v1, 6, v0')
    a(f'v_lshlrev_b32 v{vT16}, 4, v0')
    a('v_readfirstlane_b32 s3, v1')
    for i in range(4): a(f'v_mov_b32 v{vX+i}, 0')
    a(f'v_cmp_gt_u32 vcc, 64, v0')
    a('s_and_saveexec_b64 s[54:55], vcc')
    a(f'ds_write_b128 v{vT16}, v[{vX}:{vX+3}] offset:16384')
    a(f'v_cmpx_gt_u32 vcc, 9, v0')
    a(f'ds_write_b128 v{vT16}, v[{vX}:{vX+3}] offset:17408')
    a('s_mov_b64 exec, s[54:55]')
    a('s_lshr_b32 s56, s2, 3')
    if int(opt.get('rm', 0)):
        a('s_bfe_u32 s43, s2, 0x10002')
        a('s_and_b32 s57, s2, 3')
        a('s_lshl_b32 s58, s56, 2')
    else:
        a('s_bfe_u32 s43, s2, 0x10003')
        a('s_and_b32 s57, s2, 7')
        a('s_lshr_b32 s58, s2, 4')
        a('s_lshl_b32 s58, s58, 3')
    CM = int(opt.get('cm', 0))
    if CM & 1:
        a('s_and_b32 s57, s2, 7')
        a('s_lshl_b32 s57, s57, 4')
        a('s_lshr_b32 s58, s2, 4')
    a('s_or_b32 s57, s57, s58')
    if DG: a('s_mov_b32 s97, s2')
    if CM & 2:
        a('s_and_b32 s2, s2, 7')
        a('s_lshl_b32 s2, s2, 5')
        a('s_or_b32 s2, s2, s56')
    a(f'v_add_u32 v1, {L_QS}, v{vT16}')
    a('s_cmp_lg_u32 s43, 0')
    a('s_cbranch_scc1 L_nz')
    for u in range(4): a(f'ds_write_b128 v1, v[{vX}:{vX+3}] offset:{8192*u}')
    a.label('L_nz')
    a(f'v_and_b32 v{vN}, 15, v0')
    a(f'v_bfe_u32 v{vG}, v0, 4, 2')
    a(f'v_and_b32 v{vLN}, 63, v0')
    a(f'v_mov_b32 v{vZ}, 0')
    a(f's_mov_b32 s41, {H}')
    a('s_mov_b32 s40, 0x7fff00')
    a('s_lshl_b32 s42, s3, 14')
    a(f's_add_u32 s42, s42, {LB}')
    a(f's_mul_i32 s58, s57, {CH*4}')
    a(f's_mov_b32 s59, {CH//8}')
    a(f's_cmp_eq_u32 s57, {P-1}')
    a(f's_cselect_b32 s59, {(E-(P-1)*CH)//8}, s59')
    a('s_waitcnt lgkmcnt(0)')
    srd(a, 12, 26, E * 4); srd(a, 20, 28, E * 4)
    srd(a, 16, 36, 256)
    a('s_cmp_lg_u32 s43, 0')
    a('s_cbranch_scc1 L_noedge')
    a('v_cmp_gt_u32 vcc, s59, v0')
    a('s_and_saveexec_b64 s[54:55], vcc')
    a('s_cbranch_execz L_noedge0')
    edge_loads(a, 's58')
    srd(a, 8, 38, 16384)
    a('s_lshl_b32 s46, s57, 7')
    a(f'buffer_load_dwordx2 v[{vTB}:{vTB+1}], v{vZ}, s[8:11], s46 offen sc0 sc1')
    a.label('L_noedge0')
    a('s_mov_b64 exec, s[54:55]')
    a.label('L_noedge')
    srd(a, 4, 24, XB)
    a('s_cmp_lg_u32 s43, 0')
    a('s_cbranch_scc1 L_nob1')
    a('s_barrier')
    a.label('L_nob1')
    SP = int(opt.get('sp', 0)); ES = int(opt.get('es', 0))
    if SP:
        a('s_cmp_eq_u32 s43, 0')
        a('s_cbranch_scc1 L_nsp')
        TW = int(opt.get('tw', 0))
        if TW & 1:
            a('s_cmp_lg_u32 s3, 0')
            a('s_cbranch_scc1 L_tw1')
            srd(a, 8, 38, 1 << 22)
            a(f'v_lshlrev_b32 v1, 16, v{vLN}')
            a(f'buffer_load_dword v{vPF}, v1, s[8:11], 0 offen')
            a.label('L_tw1')
        if TW & 2:
            a('s_sub_u32 s46, s3, 1')
            a('s_cmp_ge_u32 s46, 2')
            a('s_cbranch_scc1 L_tw2')
            srd(a, 8, 34, XB)
            a('s_lshl_b32 s46, s46, 22')
            a(f'v_lshlrev_b32 v1, 16, v{vLN}')
            a(f'v_add_u32 v1, s46, v1')
            a(f'buffer_load_dword v{vPF}, v1, s[8:11], 0 offen')
            a.label('L_tw2')
        a(f'v_lshlrev_b32 v1, 1, v{vG}')
        a(f'v_xor_b32 v1, v1, v{vN}')
        a(f'v_lshlrev_b32 v1, 4, v1')
        a(f'v_lshl_add_u32 v{vS}, v{vG}, 19, v1')
        a('s_lshl_b32 s47, s2, 8')
        a('s_lshl_b32 s46, s3, 16')
        a('s_add_u32 s47, s47, s46')
        a(f'v_add_u32 v{vS}, s47, v{vS}')
        for u in range(1, 4):
            a(f'v_add_u32 v{vS+u}, {(u*4<<19)-1024*u}, v{vS}')
            if u & 1: a(f'v_xor_b32 v{vS+u}, 128, v{vS+u}')
        a('s_lshl_b32 s46, s3, 12')
        a(f's_add_u32 m0, s46, {L_XO}')
        a(f'v_lshl_add_u32 v2, v{vG}, 8, v1')
        a('v_xor_b32 v3, 128, v2')
        for u in range(4):
            a(f'buffer_load_dwordx4 v{vS+u}, s[4:7], 0 offen offset:{1024*u} lds')
        srd(a, 8, 30, 32768)
        a('s_add_u32 s46, s56, s3')
        a('s_lshl_b32 s46, s46, 12')
        a('s_and_b32 s46, s46, 0x7000')
        a(f's_add_u32 m0, s46, {L_WQ}')
        a('s_nop 0')
        for u in range(4):
            a(f'buffer_load_dwordx4 v{2+(u>>1)}, s[8:11], s46 offen offset:{1024*u} lds')
        a('s_branch L_tag')
        a.label('L_nsp')
    a('s_cmp_lt_u32 s3, 6')
    a('s_cbranch_scc1 L_nodma')
    a(f'v_lshlrev_b32 v1, 1, v{vG}')
    a(f'v_xor_b32 v1, v1, v{vN}')
    a(f'v_lshlrev_b32 v1, 4, v1')
    a('s_add_u32 s46, s3, s43')
    a('s_cmp_eq_u32 s46, 6')
    a('s_cbranch_scc1 L_nodma')
    a('s_cmp_eq_u32 s46, 8')
    a('s_cbranch_scc1 L_wdma')
    if int(opt.get('tw', 0)) & 4:
        srd(a, 8, 38, 1 << 22)
        a(f'v_lshlrev_b32 v2, 16, v{vLN}')
        a(f'buffer_load_dword v{vPF}, v2, s[8:11], 0 offen')
    a(f'v_lshl_add_u32 v{vS}, v{vG}, 19, v1')
    a('s_lshl_b32 s47, s2, 8')
    a(f'v_add_u32 v{vS}, s47, v{vS}')
    for u in range(1, 4):
        a(f'v_add_u32 v{vS+u}, {(u*4<<19)-1024*u}, v{vS}')
        if u & 1: a(f'v_xor_b32 v{vS+u}, 128, v{vS+u}')
    a(f's_mov_b32 m0, {L_XO}')
    a('s_mov_b32 s46, 8')
    a.label('L_xl')
    for u in range(4):
        a(f'buffer_load_dwordx4 v{vS+u}, s[4:7], 0 offen offset:{1024*u} lds')
    for u in range(4):
        a(f'v_add_u32 v{vS+u}, 0x10000, v{vS+u}')
    a('s_add_u32 m0, m0, 4096')
    a('s_sub_u32 s46, s46, 1')
    a('s_cmp_lg_u32 s46, 0')
    a('s_cbranch_scc1 L_xl')
    a('s_cmp_eq_u32 s3, 6')
    a('s_cbranch_scc1 L_nodma')
    a.label('L_spin7')
    a(f'ds_read_b32 v2, v{vZ} offset:{L_CNT}')
    a('s_waitcnt lgkmcnt(0)')
    a('v_readfirstlane_b32 s50, v2')
    a(f's_cmp_lt_u32 s50, {int(opt.get("w7", 11))}')
    a('s_cbranch_scc1 L_spin7')
    a.label('L_wdma')
    a(f'v_lshl_add_u32 v2, v{vG}, 8, v1')
    a('v_xor_b32 v3, 128, v2')
    for wi, (lo, base) in enumerate(((30, L_WQ),)):
        srd(a, 8, lo, 32768)
        a('s_lshl_b32 s46, s56, 12')
        a('s_mov_b32 s47, 8')
        a.label(f'L_wl{wi}')
        a('s_and_b32 s46, s46, 0x7000')
        a(f's_add_u32 m0, s46, {base}')
        a('s_sub_u32 s47, s47, 1')
        for u in range(4):
            a(f'buffer_load_dwordx4 v{2+((u>>1) if wi == 0 else (u&1))}, s[8:11], s46 offen offset:{1024*u} lds')
        a('s_add_u32 s46, s46, 4096')
        a('s_cmp_lg_u32 s47, 0')
        a(f's_cbranch_scc1 L_wl{wi}')
    stamp(1)
    a('s_branch L_tagd')
    a.label('L_nodma')
    a('s_cmp_eq_u32 s43, 0')
    a('s_cbranch_scc1 L_prod')
    PF0 = int(opt.get('pf0', 0))
    if PF0 > 0:
        c = PF0 * 2 // 64
        a('s_cmp_ge_u32 s3, 4')
        a('s_cbranch_scc1 L_tag')
        a('s_lshr_b32 s47, s56, 1')
        a('s_lshl_b32 s47, s47, 2')
        a('s_add_u32 s46, s3, s47')
        a(f's_mul_i32 s46, s46, {c*128}')
        a(f'v_lshlrev_b32 v{vS+2}, 7, v{vLN}')
        for u in range((c + 63) // 64):
            a(f'buffer_load_dword v{vPF}, v{vS+2}, s[4:7], s46 offen')
            a(f's_add_u32 s46, s46, 8192')
    a('s_branch L_tag')
    a.label('L_prod')
    PB = int(opt.get('pb', 0))
    if PB == 1:
        a('s_cmp_lt_u32 s3, 4')
        a('s_cbranch_scc1 L_pb')
        a('s_setprio 2')
        a.label('L_pb')
    if PB == 2: a('s_setprio 2')
    a('v_cmp_gt_u32 vcc, s59, v0')
    a('s_and_saveexec_b64 s[54:55], vcc')
    a('s_cbranch_execz L_binned')
    a('s_waitcnt vmcnt(3)')
    a('s_mov_b32 s46, 0x3fc')
    a(f'v_mov_b32 v1, 1')
    for j in range(8):
        a(f'v_lshlrev_b32 v{vCA+j}, 2, v{vA1+8+j}')
        a(f'v_and_b32 v{vCA+j}, s46, v{vCA+j}')
        a(f'ds_add_rtn_u32 v{vRK+j}, v{vCA+j}, v1 offset:{L_PC}')
    a('s_waitcnt vmcnt(1)')
    entries(a, vPE)
    a('s_mov_b64 s[76:77], exec')
    a('s_waitcnt vmcnt(0)')
    a(f'v_readfirstlane_b32 s48, v{vTB}')
    a(f'v_readfirstlane_b32 s49, v{vTB+1}')
    a('s_lshr_b32 s48, s48, 23')
    a('s_lshr_b32 s49, s49, 26')
    a('s_lshl_b32 s49, s49, 9')
    a('s_or_b32 s48, s48, s49')
    a('s_add_u32 s48, s48, 1')
    a('s_bitset1_b32 s48, 15')
    a('s_lshl_b32 s44, s48, 23')
    a('s_lshr_b32 s45, s48, 6')
    a('s_lshl_b32 s45, s45, 23')
    a('s_xor_b32 s52, s44, 0xff800000')
    a('s_xor_b32 s53, s45, 0xff800000')
    a('s_cmp_lg_u32 s3, 0')
    a('s_cbranch_scc1 L_nopub')
    a('s_lshl_b32 s49, s57, 1')
    a('v_mov_b32 v2, s48')
    a('s_mov_b64 exec, 1')
    a(f'buffer_store_short v2, v{vZ}, s[16:19], s49 offen sc0 sc1')
    a('s_mov_b64 exec, s[76:77]')
    a.label('L_nopub')
    a(f's_mov_b32 s46, {L_QS}')
    for j in range(8):
        a(f'v_lshl_add_u32 v{vCA+j}, v{vCA+j}, 5, s46')
    for j in range(8):
        if j == 0: a(f's_waitcnt lgkmcnt(0)')
        a(f'v_lshl_add_u32 v{vCA+j}, v{vRK+j}, 2, v{vCA+j}')
        a(f'v_cmpx_gt_u32 vcc, 32, v{vRK+j}')
        a(f'ds_write_b32 v{vCA+j}, v{vPE+j}')
        a('s_mov_b64 exec, s[76:77]')
    a(f'v_max3_u32 v2, v{vRK}, v{vRK+1}, v{vRK+2}')
    a(f'v_max3_u32 v2, v2, v{vRK+3}, v{vRK+4}')
    a(f'v_max3_u32 v2, v2, v{vRK+5}, v{vRK+6}')
    a(f'v_max_u32 v2, v2, v{vRK+7}')
    a(f'v_cmpx_lt_u32 vcc, 31, v2')
    a(f'ds_write_b32 v{vZ}, v1 offset:{L_OVF}')
    a.label('L_binned')
    a('s_mov_b64 exec, -1')
    a.label('L_tag')
    if PB: a('s_setprio 0')
    stamp(1)
    a.label('L_tagd')
    def slotld():
        a(f'buffer_load_dwordx4 v[{vPE}:{vPE+3}], v{vT16}, s[8:11], 0 offen sc0 sc1')
        a(f'buffer_load_dwordx4 v[{vPE+4}:{vPE+7}], v{vX+5}, s[8:11], 0 offen sc0 sc1')
    a('s_lshl_b32 s46, s2, 14')
    srd(a, 8, 38, 16384, add='s46')
    a(f'v_add_u32 v{vX+5}, 0x2000, v{vT16}')
    a('s_cmp_lg_u32 s43, 0')
    a('s_cbranch_scc1 L_copied')
    a('s_cmp_eq_u32 s3, 7')
    a('s_cbranch_scc1 L_copied')
    a('v_mov_b32 v1, 1')
    a('s_mov_b64 exec, 1')
    a('s_waitcnt lgkmcnt(0)')
    a(f'ds_add_u32 v{vZ}, v1 offset:{L_CNT}')
    a('s_mov_b64 exec, -1')
    a('s_cmp_ge_u32 s3, 4')
    a('s_cbranch_scc1 L_copied')
    a(f'v_add_u32 v{vX+4}, {L_QS}, v{vT16}')
    srd(a, 12, 38, 256 * 16384)
    a(f'v_lshrrev_b32 v{vX}, 3, v0')
    a(f'v_and_b32 v{vX+1}, 7, v0')
    a(f'v_lshlrev_b32 v{vX}, 14, v{vX}')
    a(f'v_lshl_add_u32 v{vX}, v{vX+1}, 4, v{vX}')
    a.label('L_spin')
    a(f'ds_read_b32 v1, v{vZ} offset:{L_CNT}')
    a('s_waitcnt lgkmcnt(0)')
    a('v_readfirstlane_b32 s50, v1')
    a('s_cmp_lt_u32 s50, 7')
    a('s_cbranch_scc1 L_spin')
    a(f'ds_read_b32 v1, v{vZ} offset:{L_OVF}')
    for u in range(8): a(f'ds_read_b128 v[{vT+4*u}:{vT+4*u+3}], v{vX+4} offset:{4096*u}')
    a('s_waitcnt lgkmcnt(8)')
    a('v_readfirstlane_b32 s50, v1')
    a('s_cmp_lg_u32 s50, 0')
    a('s_cbranch_scc1 L_ovf')
    a.label('L_copy')
    a('s_lshl_b32 s50, s57, 7')
    for u in range(8):
        a(f's_waitcnt lgkmcnt({7-u})')
        for k in range(4): a(f'v_xor_b32 v{vT+4*u+k}, s{(44,45,52,53)[k]}, v{vT+4*u+k}')
        a(f'buffer_store_dwordx4 v[{vT+4*u}:{vT+4*u+3}], v{vX}, s[12:15], s50 offen sc0 sc1')
        if u < 7: a(f's_add_u32 s50, s50, {1<<19}')
    a('v_mov_b32 v1, 1')
    a('s_mov_b64 exec, 1')
    a(f'ds_add_u32 v{vZ}, v1 offset:{L_CNT}')
    a('s_mov_b64 exec, -1')
    a.label('L_copied')
    stamp(2)
    for i in range(4): a(f'v_mov_b32 v{vX+i}, 0')
    a(f'ds_write_b128 v{vT16}, v[{vX}:{vX+3}]')
    a(f'ds_write_b128 v{vT16}, v[{vX}:{vX+3}] offset:8192')
    a(f'v_and_b32 v1, 7, v{vN}')
    a(f'v_lshlrev_b32 v1, 1, v1')
    a(f'v_xor_b32 v2, v1, v{vG}')
    a(f'v_lshlrev_b32 v2, 4, v2')
    a(f'v_lshl_add_u32 v3, v{vN}, 8, v2')
    a(f'v_add_u32 v{vRB}, {L_XO}, v3')
    a(f'v_and_b32 v3, 3, v{vN}')
    a(f'v_lshrrev_b32 v{vTMP}, 2, v{vN}')
    a(f'v_lshl_add_u32 v{vA1A}, v3, 2, v{vTMP}')
    a(f'v_lshl_add_u32 v{vA1A}, v{vA1A}, 8, v2')
    a(f'v_add_u32 v{vA1A}, s42, v{vA1A}')
    for s in range(1, 4):
        a(f'v_xor_b32 v{vRB+s}, {s<<6}, v{vRB}')
        a(f'v_xor_b32 v{vA1A+s}, {s<<6}, v{vA1A}')
    a(f'v_and_b32 v2, 1, v{vG}')
    a(f'v_lshl_or_b32 v2, v2, 2, v{vTMP}')
    a(f'v_lshlrev_b32 v2, 5, v2')
    a(f'v_lshl_or_b32 v2, v3, 3, v2')
    a(f'v_lshl_add_u32 v{vTRA}, v{vTMP}, 2, v{vG}')
    a(f'v_lshl_add_u32 v{vTRA}, v{vTRA}, 8, v2')
    a(f'v_add_u32 v{vTRA}, s42, v{vTRA}')
    for t in range(1, 8): a(f'v_xor_b32 v{vTRA+t}, {t<<5}, v{vTRA}')
    a(f'v_and_b32 v2, 0xe0, v2')
    a(f'v_lshlrev_b32 v3, 4, v3')
    a(f'v_xor_b32 v2, v2, v3')
    a('s_and_b32 s50, s3, 3')
    a('s_lshl_b32 s50, s50, 6')
    a(f'v_xor_b32 v2, s50, v2')
    a(f'v_lshl_add_u32 v{vX+6}, v{vG}, 3, v{vTMP}')
    a(f'v_lshl_add_u32 v{vX+6}, v{vX+6}, 8, v2')
    a(f'v_add_u32 v{vX+6}, {L_WQ}, v{vX+6}')
    a(f'v_lshl_add_u32 v{vX+7}, v{vG}, 2, v{vTMP}')
    a(f'v_lshl_add_u32 v{vX+7}, v{vX+7}, 8, v2')
    a(f'v_add_u32 v{vX+7}, {L_WV}, v{vX+7}')
    a(f'v_and_b32 v2, 1, v{vG}')
    a(f'v_lshlrev_b32 v2, 3, v2')
    a(f'v_xor_b32 v2, v2, v{vN}')
    a(f'v_lshlrev_b32 v{vGO}, 4, v2')
    for j in range(1, 4): a(f'v_xor_b32 v{vGO+j}, {j<<5}, v{vGO}')
    a('s_lshl_b32 s51, s3, 4')
    a('s_add_u32 s51, s51, 1')
    a(f'v_add_u32 v{vKEY}, s51, v{vN}')
    a('s_lshr_b32 s51, s3, 2')
    a('s_lshl_b32 s51, s51, 14')
    for s in range(4): a(f'v_add_u32 v{vX+8+s}, s51, v{vRB+s}')
    a(f'v_xor_b32 v1, s50, v{vX+8}')
    a(f'v_add_u32 v1, {L_QS-L_XO}, v1')
    if SP:
        a('s_lshl_b32 s46, s43, 3')
        a('s_add_u32 s46, s46, s3')
        a('s_cmp_lt_u32 s46, 6')
    else:
        a('s_cmp_lt_u32 s3, 6')
    a('s_cbranch_scc1 L_w4')
    a('s_waitcnt vmcnt(0)')
    a.label('L_w4')
    a('s_waitcnt lgkmcnt(0)')
    a('s_barrier')
    stamp(1, 2)
    if int(opt.get('pr', 0)) == 5:
        a('s_cmp_lt_u32 s3, 4')
        a('s_cbranch_scc1 L_p5')
        a('s_setprio 1')
        a.label('L_p5')
    a('s_cmp_lg_u32 s3, 0')
    a('s_cbranch_scc1 L_nt1')
    a(f'v_lshlrev_b32 v2, 2, v0')
    a(f'buffer_load_dword v3, v2, s[16:19], 0 offen sc0 sc1')
    a.label('L_nt1')
    srd(a, 12, 32, 32768)
    a('s_lshl_b32 s46, s3, 12')
    a(f's_add_u32 m0, s46, {L_WV}')
    a(f'v_lshlrev_b32 v{vS}, 1, v{vG}')
    a(f'v_xor_b32 v{vS}, v{vS}, v{vN}')
    a(f'v_lshlrev_b32 v{vS}, 4, v{vS}')
    a(f'v_lshl_add_u32 v{vS}, v{vG}, 8, v{vS}')
    a(f'v_xor_b32 v{vS+1}, 128, v{vS}')
    for u in range(4):
        a(f'buffer_load_dwordx4 v{vS+(u&1)}, s[12:15], s46 offen offset:{1024*u} lds')
    def prefetch(r0, rows, fixed=None):
        c = rows * 2 // 256
        ni = (c + 63) // 64
        a('s_lshl_b32 s47, s56, 3')
        a('s_add_u32 s46, s3, s47')
        a(f's_mul_i32 s46, s46, {c*128}')
        a(f's_add_u32 s46, s46, {r0*256}')
        a(f'v_lshlrev_b32 v{vS+2}, 7, v{vLN}')
        for u in range(fixed or ni):
            n = max(1, min(64, c - 64 * u))
            if n < 64: a(f's_mov_b64 exec, {hex((1 << n) - 1)}')
            a(f'buffer_load_dword v{vPF}, v{vS+2}, s[4:7], s46 offen')
            if n < 64: a('s_mov_b64 exec, -1')
            if c > 64 * (u + 1): a(f's_add_u32 s46, s46, 8192')
    PF1 = int(opt.get('pf1', 0)); NPF = 2
    if PF1 > 0:
        c = PF1 * 2 // 128
        NPF = (c + 63) // 64
        a('s_lshr_b32 s47, s56, 1')
        a('s_lshl_b32 s47, s47, 3')
        a('s_add_u32 s46, s3, s47')
        a(f's_mul_i32 s46, s46, {c*128}')
        a(f's_add_u32 s46, s46, {PF0*256}')
        a(f'v_lshlrev_b32 v{vS+2}, 7, v{vLN}')
        a('s_cmp_lg_u32 s43, 0')
        a('s_cselect_b64 exec, -1, 1')
        for u in range(NPF):
            a(f'buffer_load_dword v{vPF}, v{vS+2}, s[4:7], s46 offen')
            a(f's_add_u32 s46, s46, 8192')
        a('s_mov_b64 exec, -1')
    elif int(opt.get('opf', 0)):
        srd(a, 12, 24, PFN * 256)
        a('s_lshl_b32 s47, s56, 3')
        a('s_add_u32 s46, s3, s47')
        a(f's_mul_i32 s46, s46, 8192')
        a(f'v_mul_u32_u24 v{vS+2}, 128, v{vLN}')
        a(f'v_add_u32 v{vS+2}, s46, v{vS+2}')
        a(f'v_add_u32 v{vS+3}, 2097152, v{vS+2}')
        a(f'buffer_load_dword v{vPF}, v{vS+2}, s[12:15], 0 offen')
        a(f'buffer_load_dword v{vPF}, v{vS+3}, s[12:15], 0 offen')
    elif PFN > 0:
        prefetch(PF0, PFN, 2)
    else:
        slotld()
    for h in range(2):
        for k in range(8):
            r = vQB + 16 * h + 2 * k
            a(f'ds_read_b64_tr_b16 v[{r}:{r+1}], v{vX+6} offset:{8192*(k>>1)+1024*(k&1)+8*h}')
        a('s_waitcnt lgkmcnt(3)')
    gemm4(a, vQB, vX + 8, lambda T: 4096 * T, vACC)
    if ES:
        slotld(); NPF += 2
    a('s_nop 4')
    a('s_mov_b32 s51, 0xbe0293ee')
    for T in range(4):
        for r in range(8): a(f'v_mul_f32 v{vACC+8*T+r}, s51, v{vACC+8*T+r}')
        for r in range(4): a(f'v_cvt_pk_bf16_f32 v{vA1+4*T+r}, v{vACC+8*T+2*r}, v{vACC+8*T+2*r+1}')
        a(f'ds_write_b128 v1, v[{vA1+4*T}:{vA1+4*T+3}] offset:{4096*T}')
    for i in range(32): a(f'v_mov_b32 v{vACC+i}, 0')
    a('s_lshl_b32 s51, s3, 12')
    a(f's_add_u32 s51, s51, {L_QS-L_XO}')
    for s in range(4): a(f'v_add_u32 v{vX+s}, s51, v{vRB+s}')
    a(f's_waitcnt vmcnt({NPF})')
    a('s_cmp_lg_u32 s3, 0')
    a('s_cbranch_scc1 L_nt2')
    a(f's_mov_b32 s50, {TMO}')
    a('s_mov_b32 s51, 0x80008000')
    a.label('L_tp')
    a(f'v_and_b32 v1, s51, v3')
    a('v_cmp_ne_u32 vcc, s51, v1')
    a('s_cbranch_vccz L_tp2')
    a(f'buffer_load_dword v3, v2, s[16:19], 0 offen sc0 sc1')
    a('s_waitcnt vmcnt(0)')
    a('s_sub_u32 s50, s50, 1')
    a('s_cbranch_scc0 L_tp')
    a.label('L_tp2')
    a(f'ds_write_b32 v2, v3 offset:{L_TAGS}')
    a.label('L_nt2')
    stamp(2, 2)
    srd(a, 16, 34, XB)
    a(f'v_lshrrev_b32 v1, 2, v0')
    a(f'v_and_b32 v1, 0x7e, v1')
    a('s_waitcnt lgkmcnt(0)')
    a('s_barrier')
    a(f'ds_read_u16 v2, v1 offset:{L_TAGS}')
    a(f'ds_read_u16 v3, v1 offset:{L_TAGS+128}')
    for s in range(4): a(f'ds_read_b128 v[{vQB+4*s}:{vQB+4*s+3}], v{vX+s}')
    if PFN > 0 and not ES:
        slotld()
    stamp(3)
    for h in range(2):
        for k in range(8):
            r = vWV + 16 * h + 2 * k
            a(f'ds_read_b64_tr_b16 v[{r}:{r+1}], v{vX+7} offset:{8192*(k>>1)+4096*(k&1)+8*h}')
        if h == 0: a('s_waitcnt lgkmcnt(7)')
    a(f's_mov_b32 s50, {TMO}')
    a('s_mov_b32 s51, 0xff800000')
    for h in range(2):
        a(f'v_lshlrev_b32 v{vTB+4*h}, 23, v{2+h}')
        a(f'v_lshrrev_b32 v{vTB+4*h+1}, 6, v{2+h}')
        a(f'v_lshlrev_b32 v{vTB+4*h+1}, 23, v{vTB+4*h+1}')
        a(f'v_xor_b32 v{vTB+4*h+2}, s51, v{vTB+4*h}')
        a(f'v_xor_b32 v{vTB+4*h+3}, s51, v{vTB+4*h+1}')
    a('v_and_b32 v2, v2, v3')
    a('v_cmp_gt_u32 vcc, 0x8000, v2')
    a('s_cbranch_vccnz L_fail')
    a('s_mov_b32 s51, 0x800000')
    a.label('L_poll')
    a('s_waitcnt vmcnt(0)')
    for j in range(8): a(f'v_xor_b32 v{vRK+j}, v{vTB+j}, v{vPE+j}')
    a(f'v_or3_b32 v1, v{vRK}, v{vRK+1}, v{vRK+2}')
    a(f'v_or3_b32 v2, v{vRK+4}, v{vRK+5}, v{vRK+6}')
    a(f'v_or3_b32 v1, v1, v{vRK+3}, v{vRK+7}')
    a(f'v_or_b32 v1, v1, v2')
    a('v_cmpx_le_u32 vcc, s51, v1')
    a('s_cbranch_execz L_got')
    a(f'buffer_load_dwordx4 v[{vPE}:{vPE+3}], v{vT16}, s[8:11], 0 offen sc0 sc1')
    a(f'buffer_load_dwordx4 v[{vPE+4}:{vPE+7}], v{vX+5}, s[8:11], 0 offen sc0 sc1')
    a('s_sub_u32 s50, s50, 1')
    a('s_cbranch_scc0 L_poll')
    a('s_mov_b64 exec, -1')
    a.label('L_fail')
    a('s_waitcnt vmcnt(0)')
    a('s_lshl_b32 s50, s3, 3')
    a('s_lshl_b32 s50, 0xff, s50')
    a('s_and_b32 s51, s3, 4')
    a('v_mov_b32 v1, s50')
    a('v_mov_b32 v2, s51')
    a(f'ds_or_b32 v2, v1 offset:{L_RS}')
    a(f'ds_or_b32 v2, v1 offset:{L_RS+8}')
    for j in range(8): a(f'v_mov_b32 v{vRK+j}, 0')
    a.label('L_got')
    a('s_mov_b64 exec, -1')
    stamp(4)
    if PF2 > 0: prefetch(PFN, PF2)
    a(f'v_cmp_eq_u32 vcc, 0x70, v{vRK}')
    a(f'v_cmp_eq_u32 s[50:51], v{vRK+4}, v{vRK+5}')
    a.lines.pop()
    a(f'v_mov_b32 v1, 0x70')
    a(f'v_cmp_eq_u32 s[50:51], v1, v{vRK+4}')
    for j in range(8): a(f'v_mov_b32 v{vPE+j}, v{vRK+j}')
    a('s_or_b64 s[54:55], vcc, s[50:51]')
    a('s_cbranch_scc1 L_mark')
    if NS:
        a.label('L_place')
        a('v_mov_b32 v1, 1')
        for j in range(8):
            a(f'v_lshrrev_b32 v{vCA+j}, 2, v{vPE+j}')
            a(f'v_and_b32 v{vCA+j}, 0x1c, v{vCA+j}')
            a(f'v_mov_b32 v{vRK+j}, -1')
            a(f'v_cmpx_ne_u32 vcc, 0, v{vPE+j}')
            a(f'ds_add_rtn_u32 v{vRK+j}, v{vCA+j}, v1 offset:{L_C+32}')
            a('s_mov_b64 exec, -1')
        for j in range(8): a(f'v_lshlrev_b32 v{vTB+j}, 9, v{vCA+j}')
        a('s_lshl_b32 s50, s3, 2')
        a('v_mov_b32 v3, s50')
        a(f's_mov_b32 s51, {CAP}')
        for j in range(8):
            if j == 0: a(f's_waitcnt lgkmcnt(0)')
            a(f'v_lshl_add_u32 v{vTB+j}, v{vRK+j}, 2, v{vTB+j}')
            a(f'v_cmpx_gt_u32 vcc, s51, v{vRK+j}')
            a(f'ds_write_b32 v{vTB+j}, v{vPE+j}')
            a(f'v_mov_b32 v{vPE+j}, 0')
            a('s_mov_b64 exec, -1')
    else:
        a.label('L_place')
        a('v_mov_b32 v1, 1')
        for j in range(8):
            a(f'v_lshrrev_b32 v{vCA+j}, 2, v{vPE+j}')
            a(f'v_and_b32 v{vCA+j}, 0x3c, v{vCA+j}')
            a(f'v_mov_b32 v{vRK+j}, -1')
            a(f'v_cmpx_ne_u32 vcc, 0, v{vPE+j}')
            a(f'ds_add_rtn_u32 v{vRK+j}, v{vCA+j}, v1 offset:{L_C+32}')
            a('s_mov_b64 exec, -1')
        for j in range(8):
            a(f'v_and_b32 v{vTB+j}, 0x1c, v{vCA+j}')
            a(f'v_lshlrev_b32 v{vTB+j}, 9, v{vTB+j}')
        a('s_lshl_b32 s50, s3, 2')
        a('v_mov_b32 v3, s50')
        a(f's_mov_b32 s51, {CAP}')
        a('s_waitcnt lgkmcnt(0)')
        a('s_barrier')
        for j in range(8): a(f'ds_read_b32 v{vCA+j}, v{vCA+j} offset:{L_C}')
        a(f'ds_read2_b32 v[{vX}:{vX+1}], v3 offset0:0 offset1:8') ; a.lines.pop()
        a(f'ds_read_b32 v{vX}, v3 offset:{L_C+32}')
        a(f'ds_read_b32 v{vX+1}, v3 offset:{L_C+64}')
        for j in range(8):
            if j == 0: a(f's_waitcnt lgkmcnt(0)')
            a(f'v_add_u32 v{vRK+j}, v{vRK+j}, v{vCA+j}')
            a(f'v_lshl_add_u32 v{vTB+j}, v{vRK+j}, 2, v{vTB+j}')
            a(f'v_and_b32 v{vCA+j}, 0xffffff7f, v{vPE+j}')
            a(f'v_cmpx_gt_u32 vcc, s51, v{vRK+j}')
            a(f'ds_write_b32 v{vTB+j}, v{vCA+j}')
            a(f'v_mov_b32 v{vPE+j}, 0')
            a('s_mov_b64 exec, -1')
    a(f'v_or3_b32 v1, v{vPE}, v{vPE+1}, v{vPE+2}')
    a(f'v_or3_b32 v1, v1, v{vPE+3}, v{vPE+4}')
    a(f'v_or3_b32 v1, v1, v{vPE+5}, v{vPE+6}')
    a(f'v_or_b32 v1, v1, v{vPE+7}')
    a('v_cmpx_ne_u32 vcc, 0, v1')
    a(f'ds_write_b32 v{vZ}, v1 offset:{L_SLOW}')
    a('s_mov_b64 exec, -1')
    if not NS: a(f'v_add_u32 v{vX}, v{vX}, v{vX+1}')
    a('s_lshl_b32 s50, s3, 11')
    a(f'v_lshl_add_u32 v{vLA}, v{vG}, 5, s50')
    if not NS: a(f'v_readfirstlane_b32 s53, v{vX}')
    a('s_waitcnt lgkmcnt(0)')
    a('s_barrier')
    if NS: a(f'ds_read_b32 v2, v3 offset:{L_C+32}')
    eread(a, 0, 0)
    eread(a, 1, 128)
    a(f'ds_read_b32 v1, v{vZ} offset:{L_SLOW}')
    a(f'ds_read_b128 v[{vX}:{vX+3}], v{vZ} offset:{L_RS}')
    if NS:
        a('s_waitcnt lgkmcnt(6)')
        a('v_readfirstlane_b32 s53, v2')
    a('s_min_u32 s53, s53, s51')
    a('s_add_u32 s53, s53, 31')
    a('s_lshr_b32 s53, s53, 5')
    stamp(5)
    a('s_cmp_eq_u32 s53, 0')
    a('s_cbranch_scc1 L_noi')
    a('s_waitcnt lgkmcnt(4)')
    issue(a, 0)
    a('s_cmp_eq_u32 s53, 1')
    a('s_cbranch_scc1 L_noi')
    a('s_waitcnt lgkmcnt(2)')
    issue(a, 1)
    a.label('L_noi')
    a('s_waitcnt lgkmcnt(0)')
    a('v_readfirstlane_b32 s52, v1')
    for i in range(4): a(f'v_readfirstlane_b32 s{76+i}, v{vX+i}')
    a('s_cmp_eq_u32 s53, 0')
    a('s_cbranch_scc1 L_done')
    PR = int(opt.get('pr', 0))
    if PR in (1, 4):
        a('s_cmp_lt_u32 s3, 4')
        a('s_cbranch_scc1 L_loop')
        a('s_setprio 1')
    if PR in (2, 3): a('s_lshr_b32 s96, s3, 2')
    a.label('L_loop')
    for b in range(2):
        if PR == 2:
            a(f's_cmp_eq_u32 s96, {b}')
            a(f's_cbranch_scc1 L_pa{b}')
            a('s_setprio 1')
            a(f's_branch L_pb{b}')
            a.label(f'L_pa{b}')
            a('s_setprio 0')
            a.label(f'L_pb{b}')
        if PR == 3 and b == 0:
            a('s_cmp_eq_u32 s96, 2')
            a('s_cbranch_scc0 L_pc')
            a('s_setprio 1')
            a.label('L_pc')
            a('s_lshl_b32 s96, s96, 1')
        body(a, b, opt)
    a('s_branch L_loop')
    a.label('L_done')
    if PR in (1, 2, 3, 5): a('s_setprio 0')
    stamp(6)
    a('s_or_b64 s[54:55], s[76:77], s[78:79]')
    a('s_or_b32 s54, s54, s55')
    a('s_or_b32 s54, s54, s52')
    a('s_cbranch_scc1 L_slow')
    a(f's_sub_u32 s50, s42, {L_XO}')
    a('s_lshr_b32 s51, s3, 2')
    a('s_lshl_b32 s51, s51, 16')
    a(f's_add_u32 s51, s51, {(LB-L_XO)&0xffffffff}')
    for s in range(4):
        for r in range(4): a(f'v_cvt_pk_bf16_f32 v{vA1+4*s+r}, v{vACC+8*s+2*r}, v{vACC+8*s+2*r+1}')
        a(f'v_add_u32 v2, s50, v{vRB+s}')
        a(f'ds_write_b128 v2, v[{vA1+4*s}:{vA1+4*s+3}]')
        a(f'v_add_u32 v{vX+s}, s51, v{vRB+s}')
    a(f'v_lshlrev_b32 v1, 19, v{vN}')
    a(f'v_lshl_add_u32 v1, v{vG}, 4, v1')
    a('s_lshl_b32 s50, s2, 8')
    a('s_and_b32 s51, s3, 3')
    a('s_lshl_b32 s51, s51, 6')
    a('s_add_u32 s50, s50, s51')
    a('s_lshr_b32 s51, s3, 2')
    a('s_lshl_b32 s51, s51, 18')
    a('s_add_u32 s50, s50, s51')
    a('v_add_u32 v1, s50, v1')
    a('s_waitcnt lgkmcnt(0)')
    a('s_barrier')
    gemm4(a, vWV, vX, lambda T: 16384 * T, vACC)
    for T in range(4):
        if T == 3: a('s_nop 4')
        for r in range(4): a(f'v_cvt_pk_bf16_f32 v{vA1+4*T+r}, v{vACC+8*T+2*r}, v{vACC+8*T+2*r+1}')
        a(f'buffer_store_dwordx4 v[{vA1+4*T}:{vA1+4*T+3}], v1, s[16:19], 0 offen')
        if T < 3: a('v_add_u32 v1, 0x10000, v1')
    if DG:
        a('s_waitcnt vmcnt(0)')
        stamp(7)
        a('s_waitcnt lgkmcnt(0)')
        srd(a, 8, 38, 1 << 20, add=200 << 20)
        a('s_lshl_b32 s60, s97, 3')
        a('s_add_u32 s60, s60, s3')
        a('s_lshl_b32 s60, s60, 5')
        for i in range(8): a(f'v_mov_b32 v{16+i}, s{80+2*i}')
        a('v_mov_b32 v12, 0')
        a(f'v_cmpx_eq_u32 vcc, 0, v{vLN}')
        a('buffer_store_dwordx4 v[16:19], v12, s[8:11], s60 offen')
        a('buffer_store_dwordx4 v[20:23], v12, s[8:11], s60 offen offset:16')
    a.label('L_end')
    a('s_endpgm')
    a.label('L_ovf')
    a(f'v_lshrrev_b32 v1, 1, v0')
    a(f'v_and_b32 v1, 0xfc, v1')
    for u in range(8): a(f'ds_read_b32 v{vRK+u}, v1 offset:{L_PC+128*u}')
    a('s_waitcnt lgkmcnt(0)')
    for u in range(8):
        a(f'v_cmpx_lt_u32 vcc, 32, v{vRK+u}')
        a(f'v_mov_b32 v{vT+4*u}, 0x70')
        for k in range(1, 4): a(f'v_mov_b32 v{vT+4*u+k}, 0')
        a('s_mov_b64 exec, -1')
    a('s_branch L_copy')
    a.label('L_mark')
    a('v_lshrrev_b32 v1, 3, v0')
    a('v_lshlrev_b32_e64 v2, v1, 1')
    a('v_lshrrev_b32 v1, 3, v1')
    a('v_and_b32 v1, 4, v1')
    a('s_mov_b64 exec, vcc')
    a(f'ds_or_b32 v1, v2 offset:{L_RS}')
    a(f'v_mov_b32 v{vPE}, 0')
    a('s_mov_b64 exec, s[50:51]')
    a(f'ds_or_b32 v1, v2 offset:{L_RS+8}')
    a(f'v_mov_b32 v{vPE+4}, 0')
    a('s_mov_b64 exec, -1')
    a('s_branch L_place')
    a.label('L_slow')
    a('s_barrier')
    for i in range(4): a(f'v_mov_b32 v{vX+i}, 0')
    a(f'ds_write_b128 v{vT16}, v[{vX}:{vX+3}]')
    a(f'ds_write_b128 v{vT16}, v[{vX}:{vX+3}] offset:8192')
    a('s_cmp_lg_u32 s52, 0')
    a('s_cbranch_scc1 L_slow_go')
    a('s_cmp_eq_u64 s[76:77], 0')
    a('s_cbranch_scc1 L_slow_hi')
    a('s_ff1_i32_b64 s57, s[76:77]')
    a('s_bitset0_b64 s[76:77], s57')
    a('s_branch L_slow_ld')
    a.label('L_slow_hi')
    a('s_ff1_i32_b64 s57, s[78:79]')
    a('s_bitset0_b64 s[78:79], s57')
    a('s_add_u32 s57, s57, 64')
    a.label('L_slow_ld')
    srd(a, 12, 26, E * 4)
    a(f's_mul_i32 s58, s57, {CH*4}')
    a(f's_mov_b32 s59, {CH//8}')
    a(f's_cmp_eq_u32 s57, {P-1}')
    a(f's_cselect_b32 s59, {(E-(P-1)*CH)//8}, s59')
    edge_loads(a, 's58')
    a('s_waitcnt vmcnt(0)')
    entries(a, vPE)
    a('v_cmp_gt_u32 s[54:55], s59, v0')
    for j in range(8):
        a(f'v_and_b32 v1, 0xff, v{vA1+8+j}')
        a('v_cmp_eq_u32 vcc, s2, v1')
        a('s_and_b64 vcc, vcc, s[54:55]')
        a('s_nop 1')
        a(f'v_cndmask_b32 v{vPE+j}, 0, v{vPE+j}, vcc')
    a.label('L_slow_go')
    for i in range(4): a(f'v_mov_b32 v{vS+i}, s{76+i}')
    a(f'v_cmp_gt_u32 vcc, 7, v0')
    a('s_and_saveexec_b64 s[54:55], vcc')
    for i in range(4): a(f'v_mov_b32 v{vX+i}, 0')
    a(f'ds_write_b128 v{vT16}, v[{vX}:{vX+3}] offset:{L_C}')
    a(f'ds_write_b128 v{vZ}, v[{vS}:{vS+3}] offset:{L_RS}')
    a('s_mov_b64 exec, -1')
    a('s_waitcnt lgkmcnt(0)')
    a('s_barrier')
    a('s_branch L_place')
    return a

HDR = open('cdna_kernels/%s.s.ref' % NAME).read().split('; Override')[0]
def build(opt):
    a = kern(opt)
    for e in check(a.lines, 'k'): print('HAZARD', e)
    t = HDR + f'; @launch grid=(256,1,1) block=(512,1,1) lds={LDS}\n'
    t += '.amdgcn_target "amdgcn-amd-amdhsa--gfx950"\n.text\n'
    t += f'.globl {NAME}_kernel\n.p2align 8\n.type {NAME}_kernel,@function\n' + a.text()
    t += f'''.section .rodata,"a"
.p2align 6
.amdhsa_kernel {NAME}_kernel
  .amdhsa_next_free_vgpr {NV}
  .amdhsa_next_free_sgpr 100
  .amdhsa_accum_offset {(NV+3)//4*4}
  .amdhsa_group_segment_fixed_size 0
  .amdhsa_kernarg_size 64
  .amdhsa_user_sgpr_count 2
  .amdhsa_user_sgpr_kernarg_segment_ptr 1
  .amdhsa_system_sgpr_workgroup_id_x 1
.end_amdhsa_kernel
'''
    return t
if __name__ == '__main__':
    out = sys.argv[1] if len(sys.argv) > 1 else f'cdna_kernels/{NAME}.s'
    opt = dict(kv.split('=', 1) for kv in sys.argv[2:])
    open(out, 'w').write(build(opt))
```

```python
import sys
sys.path.insert(0, 'gen')
from asmlib import Asm, check
N = 25000; E = 400000; XB = N * 256
CH = 3128; P = 128
NAME = 'standalone__kernel_systems_refs_featgraph__graph'
L_LIST = 0; L_PC = 16384; L_C = 17408; LB = 18432
L_SLOW = L_C + 96; L_OVF = L_C + 100; L_CNT = L_C + 128; L_TAGS = L_C + 256; L_TAG = L_C + 104; L_RS = L_C + 112
L_WQ = LB; L_WV = LB + 32768; L_XO = LB + 65536; L_QS = LB + 98304
LDS = LB + 131072
CAP = 384
vGO = 4; vA1A = 8; vTRA = 12; vKEY = 20; vLA = 21; vZ = 22; vT16 = 23; vRB = 24
vN = 28; vG = 29; vLN = 30; vTMP = 31
vACC = 32; vQB = 64; vWV = 196; vA1 = 96; vT = 128; vS = 160; vE = 168; vB = 184; vAD = 188
vPE = 228; vRK = 112; vCA = 120; vTB = 144; vX = 236; vPF = 251
NV = 252
sM = 60

def srd(a, d, lo, nrec, add=None):
    if add is None:
        a(f's_mov_b32 s{d}, s{lo}')
        a(f's_and_b32 s{d+1}, s{lo+1}, 0xffff')
    else:
        a(f's_add_u32 s{d}, s{lo}, {add}')
        a(f's_addc_u32 s{d+1}, s{lo+1}, 0')
        a(f's_and_b32 s{d+1}, s{d+1}, 0xffff')
    a(f's_mov_b32 s{d+2}, {nrec}')
    a(f's_mov_b32 s{d+3}, 0x20000')

def mf(d, A, B, C): return f'v_mfma_f32_16x16x32_bf16 v[{d}:{d+3}], v[{A}:{A+3}], v[{B}:{B+3}], {C}'

def edge_loads(a, soff):
    a(f'v_lshlrev_b32 v{vX}, 5, v0')
    a(f'buffer_load_dwordx4 v[{vA1+8}:{vA1+11}], v{vX}, s[20:23], {soff} offen')
    a(f'buffer_load_dwordx4 v[{vA1+12}:{vA1+15}], v{vX}, s[20:23], {soff} offen offset:16')
    a(f'buffer_load_dwordx4 v[{vA1}:{vA1+3}], v{vX}, s[12:15], {soff} offen')
    a(f'buffer_load_dwordx4 v[{vA1+4}:{vA1+7}], v{vX}, s[12:15], {soff} offen offset:16')

def entries(a, dst):
    a(f'v_mov_b32 v{vX+1}, 0x81')
    for j in range(8):
        a(f'v_cmp_le_u32 s[{sM+2*j}:{sM+2*j+1}], s41, v{vA1+j}')
    for j in range(8):
        s, d = vA1 + j, vA1 + 8 + j
        a(f'v_lshrrev_b32 v{vX+2}, 4, v{d}')
        a(f'v_and_b32 v{vX+2}, 0x70, v{vX+2}')
        a(f'v_lshl_or_b32 v{dst+j}, v{s}, 8, v{vX+2}')
        a(f'v_lshrrev_b32 v{vX+2}, 11, v{d}')
        a(f'v_cndmask_b32 v{vX+3}, 1, v{vX+1}, s[{sM+2*j}:{sM+2*j+1}]')
        a(f'v_add3_u32 v{dst+j}, v{dst+j}, v{vX+2}, v{vX+3}')

def issue(a, b, fill=None):
    for j in range(8):
        if j == 0: a(f's_add_u32 m0, s42, {8192*b}')
        else: a('s_add_u32 m0, m0, 1024')
        a(f'v_and_or_b32 v{vAD+j}, v{vE+8*b+j}, s40, v{vGO+(j&3)}')
        a(f'buffer_load_dwordx4 v{vAD+j}, s[4:7], 0 offen lds')
        if fill: fill()

def eread(a, b, off):
    a(f'ds_read_b128 v[{vE+8*b}:{vE+8*b+3}], v{vLA} offset:{off}')
    a(f'ds_read_b128 v[{vE+8*b+4}:{vE+8*b+7}], v{vLA} offset:{off+16}')

def gemm4(a, A, addr, offs, D):
    order = [(T, s) for T in range(4) for s in range(4)]
    def rd(i):
        T, s = order[i]
        r = vA1 + 4 * i
        a(f'ds_read_b128 v[{r}:{r+3}], v{addr+s} offset:{offs(T)}')
    for i in range(12): rd(i)
    for i, (T, s) in enumerate(order):
        a(f's_waitcnt lgkmcnt({min(15, i+11) - i})')
        r = vA1 + 4 * i
        for h in range(2):
            d = D + 4 * (2 * T + h)
            a(mf(d, A + 16 * h + 4 * s, r, '0' if s == 0 else f'v[{d}:{d+3}]'))
        if i + 12 < 16: rd(i + 12)

def body(a, b, opt):
    tr = lambda k: f'ds_read_b64_tr_b16 v[{vT+2*k}:{vT+2*k+1}], v{vTRA+(k>>1)} offset:{8192*b+4096*(k&1)}'
    a('s_cmp_eq_u32 s53, 1')
    a(f's_cbranch_scc1 W0_{b}')
    a('s_waitcnt vmcnt(8)')
    a(f's_branch W1_{b}')
    a.label(f'W0_{b}')
    a('s_waitcnt vmcnt(0)')
    a.label(f'W1_{b}')
    for bb in range(2):
        for s in range(4):
            r = vA1 + 16 * bb + 4 * s
            a(f'ds_read_b128 v[{r}:{r+3}], v{vA1A+s} offset:{8192*b+4096*bb}')
    for j in range(8):
        a(f'v_cmp_eq_u32_sdwa s[{sM+2*j}:{sM+2*j+1}], v{vE+8*b+j}, v{vKEY} src0_sel:BYTE_0 src1_sel:DWORD')
    eread(a, b, 256 + 128 * b)
    for k in range(5): a(tr(k))
    a('s_waitcnt lgkmcnt(11)')
    for s in range(4): a(mf(vS, vA1 + 4 * s, vQB + 4 * s, '0' if s == 0 else f'v[{vS}:{vS+3}]'))
    for k in range(5, 9): a(tr(k))
    a('s_waitcnt lgkmcnt(11)')
    for s in range(4): a(mf(vS + 4, vA1 + 16 + 4 * s, vQB + 4 * s, '0' if s == 0 else f'v[{vS+4}:{vS+7}]'))
    for k in range(9, 13): a(tr(k))
    a('s_waitcnt lgkmcnt(11)')
    for k in range(13, 16): a(tr(k))
    if b == 1: a(f'v_add_u32 v{vLA}, 256, v{vLA}')
    for j in range(4): a(f'v_exp_f32 v{vS+j}, v{vS+j}')
    sig = [f'v_exp_f32 v{vS+j}, v{vS+j}' for j in range(4, 8)]
    sig += [f'v_add_f32 v{vS+j}, 1.0, v{vS+j}' for j in range(8)]
    sig += [f'v_rcp_f32 v{vS+j}, v{vS+j}' for j in range(8)]
    sig += [f'v_cndmask_b32 v{vS+j}, 0, v{vS+j}, s[{sM+2*j}:{sM+2*j+1}]' for j in range(8)]
    sig += [f'v_cvt_pk_bf16_f32 v{vB+u}, v{vS+2*u}, v{vS+2*u+1}' for u in range(4)]
    a('s_cmp_lt_u32 s53, 3')
    a(f's_cbranch_scc1 NI_{b}')
    a('s_waitcnt lgkmcnt(0)')
    it = iter(sig)
    def fill():
        for _ in range(3):
            x = next(it, None)
            if x: a(x)
    issue(a, b, fill)
    for x in it: a(x)
    a(f's_branch DI_{b}')
    a.label(f'NI_{b}')
    a('s_nop 1')
    for x in sig: a(x)
    a('s_waitcnt lgkmcnt(0)')
    a.label(f'DI_{b}')
    a('s_sub_u32 s53, s53, 1')
    a('s_cmp_eq_u32 s53, 0')
    for t in range(8):
        a(mf(vACC + 4 * t, vT + 4 * t, vB, f'v[{vACC+4*t}:{vACC+4*t+3}]'))
    a('s_cbranch_scc1 L_done')

def kern(opt):
    a = Asm()
    DG = opt.get('diag'); H = int(opt.get('H', 12544)); PFS = int(opt.get('pfs', 128)); PFN = int(opt.get('pfn', H))
    TMO = int(opt.get('tmo', 4000)); NS = int(opt.get('ns', 0)); PF2 = int(opt.get('pf2', 0))
    if NS: H = 1 << 20
    def stamp(i, m=None):
        if DG == '2' and i in (1, 2) and m is None: return
        if DG != '2' and m is not None: return
        if DG: a(f's_memrealtime s[{80+2*i}:{81+2*i}]')
    a.label(f'{NAME}_kernel')
    a('s_cmp_ge_u32 s2, 256')
    a('s_cbranch_scc1 L_end')
    a('s_load_dwordx16 s[24:39], s[0:1], 0')
    stamp(0)
    a('v_lshrrev_b32 v1, 6, v0')
    a(f'v_lshlrev_b32 v{vT16}, 4, v0')
    a('v_readfirstlane_b32 s3, v1')
    for i in range(4): a(f'v_mov_b32 v{vX+i}, 0')
    a(f'v_cmp_gt_u32 vcc, 64, v0')
    a('s_and_saveexec_b64 s[54:55], vcc')
    a(f'ds_write_b128 v{vT16}, v[{vX}:{vX+3}] offset:16384')
    a(f'v_cmpx_gt_u32 vcc, 9, v0')
    a(f'ds_write_b128 v{vT16}, v[{vX}:{vX+3}] offset:17408')
    a('s_mov_b64 exec, s[54:55]')
    a('s_lshr_b32 s56, s2, 3')
    if int(opt.get('rm', 0)):
        a('s_bfe_u32 s43, s2, 0x10002')
        a('s_and_b32 s57, s2, 3')
        a('s_lshl_b32 s58, s56, 2')
    else:
        a('s_bfe_u32 s43, s2, 0x10003')
        a('s_and_b32 s57, s2, 7')
        a('s_lshr_b32 s58, s2, 4')
        a('s_lshl_b32 s58, s58, 3')
    CM = int(opt.get('cm', 0))
    if CM & 1:
        a('s_and_b32 s57, s2, 7')
        a('s_lshl_b32 s57, s57, 4')
        a('s_lshr_b32 s58, s2, 4')
    a('s_or_b32 s57, s57, s58')
    if DG: a('s_mov_b32 s97, s2')
    if CM & 2:
        a('s_and_b32 s2, s2, 7')
        a('s_lshl_b32 s2, s2, 5')
        a('s_or_b32 s2, s2, s56')
    a(f'v_add_u32 v1, {L_QS}, v{vT16}')
    a('s_cmp_lg_u32 s43, 0')
    a('s_cbranch_scc1 L_nz')
    for u in range(4): a(f'ds_write_b128 v1, v[{vX}:{vX+3}] offset:{8192*u}')
    a.label('L_nz')
    a(f'v_and_b32 v{vN}, 15, v0')
    a(f'v_bfe_u32 v{vG}, v0, 4, 2')
    a(f'v_and_b32 v{vLN}, 63, v0')
    a(f'v_mov_b32 v{vZ}, 0')
    a(f's_mov_b32 s41, {H}')
    a('s_mov_b32 s40, 0x7fff00')
    a('s_lshl_b32 s42, s3, 14')
    a(f's_add_u32 s42, s42, {LB}')
    a(f's_mul_i32 s58, s57, {CH*4}')
    a(f's_mov_b32 s59, {CH//8}')
    a(f's_cmp_eq_u32 s57, {P-1}')
    a(f's_cselect_b32 s59, {(E-(P-1)*CH)//8}, s59')
    a('s_waitcnt lgkmcnt(0)')
    srd(a, 12, 26, E * 4); srd(a, 20, 28, E * 4)
    srd(a, 16, 36, 256)
    a('s_cmp_lg_u32 s43, 0')
    a('s_cbranch_scc1 L_noedge')
    a('v_cmp_gt_u32 vcc, s59, v0')
    a('s_and_saveexec_b64 s[54:55], vcc')
    a('s_cbranch_execz L_noedge0')
    edge_loads(a, 's58')
    srd(a, 8, 38, 16384)
    a('s_lshl_b32 s46, s57, 7')
    a(f'buffer_load_dwordx2 v[{vTB}:{vTB+1}], v{vZ}, s[8:11], s46 offen sc0 sc1')
    a.label('L_noedge0')
    a('s_mov_b64 exec, s[54:55]')
    a.label('L_noedge')
    srd(a, 4, 24, XB)
    a('s_cmp_lg_u32 s43, 0')
    a('s_cbranch_scc1 L_nob1')
    a('s_barrier')
    a.label('L_nob1')
    SP = int(opt.get('sp', 0)); ES = int(opt.get('es', 0))
    if SP:
        a('s_cmp_eq_u32 s43, 0')
        a('s_cbranch_scc1 L_nsp')
        TW = int(opt.get('tw', 0))
        if TW & 1:
            a('s_cmp_lg_u32 s3, 0')
            a('s_cbranch_scc1 L_tw1')
            srd(a, 8, 38, 1 << 22)
            a(f'v_lshlrev_b32 v1, 16, v{vLN}')
            a(f'buffer_load_dword v{vPF}, v1, s[8:11], 0 offen')
            a.label('L_tw1')
        if TW & 2:
            a('s_sub_u32 s46, s3, 1')
            a('s_cmp_ge_u32 s46, 2')
            a('s_cbranch_scc1 L_tw2')
            srd(a, 8, 34, XB)
            a('s_lshl_b32 s46, s46, 22')
            a(f'v_lshlrev_b32 v1, 16, v{vLN}')
            a(f'v_add_u32 v1, s46, v1')
            a(f'buffer_load_dword v{vPF}, v1, s[8:11], 0 offen')
            a.label('L_tw2')
        a(f'v_lshlrev_b32 v1, 1, v{vG}')
        a(f'v_xor_b32 v1, v1, v{vN}')
        a(f'v_lshlrev_b32 v1, 4, v1')
        a(f'v_lshl_add_u32 v{vS}, v{vG}, 19, v1')
        a('s_lshl_b32 s47, s2, 8')
        a('s_lshl_b32 s46, s3, 16')
        a('s_add_u32 s47, s47, s46')
        a(f'v_add_u32 v{vS}, s47, v{vS}')
        for u in range(1, 4):
            a(f'v_add_u32 v{vS+u}, {(u*4<<19)-1024*u}, v{vS}')
            if u & 1: a(f'v_xor_b32 v{vS+u}, 128, v{vS+u}')
        a('s_lshl_b32 s46, s3, 12')
        a(f's_add_u32 m0, s46, {L_XO}')
        a(f'v_lshl_add_u32 v2, v{vG}, 8, v1')
        a('v_xor_b32 v3, 128, v2')
        for u in range(4):
            a(f'buffer_load_dwordx4 v{vS+u}, s[4:7], 0 offen offset:{1024*u} lds')
        srd(a, 8, 30, 32768)
        a('s_add_u32 s46, s56, s3')
        a('s_lshl_b32 s46, s46, 12')
        a('s_and_b32 s46, s46, 0x7000')
        a(f's_add_u32 m0, s46, {L_WQ}')
        a('s_nop 0')
        for u in range(4):
            a(f'buffer_load_dwordx4 v{2+(u>>1)}, s[8:11], s46 offen offset:{1024*u} lds')
        a('s_branch L_tag')
        a.label('L_nsp')
    a('s_cmp_lt_u32 s3, 6')
    a('s_cbranch_scc1 L_nodma')
    a(f'v_lshlrev_b32 v1, 1, v{vG}')
    a(f'v_xor_b32 v1, v1, v{vN}')
    a(f'v_lshlrev_b32 v1, 4, v1')
    a('s_add_u32 s46, s3, s43')
    a('s_cmp_eq_u32 s46, 6')
    a('s_cbranch_scc1 L_nodma')
    a('s_cmp_eq_u32 s46, 8')
    a('s_cbranch_scc1 L_wdma')
    if int(opt.get('tw', 0)) & 4:
        srd(a, 8, 38, 1 << 22)
        a(f'v_lshlrev_b32 v2, 16, v{vLN}')
        a(f'buffer_load_dword v{vPF}, v2, s[8:11], 0 offen')
    a(f'v_lshl_add_u32 v{vS}, v{vG}, 19, v1')
    a('s_lshl_b32 s47, s2, 8')
    a(f'v_add_u32 v{vS}, s47, v{vS}')
    for u in range(1, 4):
        a(f'v_add_u32 v{vS+u}, {(u*4<<19)-1024*u}, v{vS}')
        if u & 1: a(f'v_xor_b32 v{vS+u}, 128, v{vS+u}')
    a(f's_mov_b32 m0, {L_XO}')
    a('s_mov_b32 s46, 8')
    a.label('L_xl')
    for u in range(4):
        a(f'buffer_load_dwordx4 v{vS+u}, s[4:7], 0 offen offset:{1024*u} lds')
    for u in range(4):
        a(f'v_add_u32 v{vS+u}, 0x10000, v{vS+u}')
    a('s_add_u32 m0, m0, 4096')
    a('s_sub_u32 s46, s46, 1')
    a('s_cmp_lg_u32 s46, 0')
    a('s_cbranch_scc1 L_xl')
    a('s_cmp_eq_u32 s3, 6')
    a('s_cbranch_scc1 L_nodma')
    a.label('L_spin7')
    a(f'ds_read_b32 v2, v{vZ} offset:{L_CNT}')
    a('s_waitcnt lgkmcnt(0)')
    a('v_readfirstlane_b32 s50, v2')
    a(f's_cmp_lt_u32 s50, {int(opt.get("w7", 11))}')
    a('s_cbranch_scc1 L_spin7')
    a.label('L_wdma')
    a(f'v_lshl_add_u32 v2, v{vG}, 8, v1')
    a('v_xor_b32 v3, 128, v2')
    for wi, (lo, base) in enumerate(((30, L_WQ),)):
        srd(a, 8, lo, 32768)
        a('s_lshl_b32 s46, s56, 12')
        a('s_mov_b32 s47, 8')
        a.label(f'L_wl{wi}')
        a('s_and_b32 s46, s46, 0x7000')
        a(f's_add_u32 m0, s46, {base}')
        a('s_sub_u32 s47, s47, 1')
        for u in range(4):
            a(f'buffer_load_dwordx4 v{2+((u>>1) if wi == 0 else (u&1))}, s[8:11], s46 offen offset:{1024*u} lds')
        a('s_add_u32 s46, s46, 4096')
        a('s_cmp_lg_u32 s47, 0')
        a(f's_cbranch_scc1 L_wl{wi}')
    stamp(1)
    a('s_branch L_tagd')
    a.label('L_nodma')
    a('s_cmp_eq_u32 s43, 0')
    a('s_cbranch_scc1 L_prod')
    PF0 = int(opt.get('pf0', 0))
    if PF0 > 0:
        c = PF0 * 2 // 64
        a('s_cmp_ge_u32 s3, 4')
        a('s_cbranch_scc1 L_tag')
        a('s_lshr_b32 s47, s56, 1')
        a('s_lshl_b32 s47, s47, 2')
        a('s_add_u32 s46, s3, s47')
        a(f's_mul_i32 s46, s46, {c*128}')
        a(f'v_lshlrev_b32 v{vS+2}, 7, v{vLN}')
        for u in range((c + 63) // 64):
            a(f'buffer_load_dword v{vPF}, v{vS+2}, s[4:7], s46 offen')
            a(f's_add_u32 s46, s46, 8192')
    a('s_branch L_tag')
    a.label('L_prod')
    PB = int(opt.get('pb', 0))
    if PB == 1:
        a('s_cmp_lt_u32 s3, 4')
        a('s_cbranch_scc1 L_pb')
        a('s_setprio 2')
        a.label('L_pb')
    if PB == 2: a('s_setprio 2')
    a('v_cmp_gt_u32 vcc, s59, v0')
    a('s_and_saveexec_b64 s[54:55], vcc')
    a('s_cbranch_execz L_binned')
    a('s_waitcnt vmcnt(3)')
    a('s_mov_b32 s46, 0x3fc')
    a(f'v_mov_b32 v1, 1')
    for j in range(8):
        a(f'v_lshlrev_b32 v{vCA+j}, 2, v{vA1+8+j}')
        a(f'v_and_b32 v{vCA+j}, s46, v{vCA+j}')
        a(f'ds_add_rtn_u32 v{vRK+j}, v{vCA+j}, v1 offset:{L_PC}')
    a('s_waitcnt vmcnt(1)')
    entries(a, vPE)
    a('s_mov_b64 s[76:77], exec')
    a('s_waitcnt vmcnt(0)')
    a(f'v_readfirstlane_b32 s48, v{vTB}')
    a(f'v_readfirstlane_b32 s49, v{vTB+1}')
    a('s_lshr_b32 s48, s48, 23')
    a('s_lshr_b32 s49, s49, 26')
    a('s_lshl_b32 s49, s49, 9')
    a('s_or_b32 s48, s48, s49')
    a('s_add_u32 s48, s48, 1')
    a('s_bitset1_b32 s48, 15')
    a('s_lshl_b32 s44, s48, 23')
    a('s_lshr_b32 s45, s48, 6')
    a('s_lshl_b32 s45, s45, 23')
    a('s_xor_b32 s52, s44, 0xff800000')
    a('s_xor_b32 s53, s45, 0xff800000')
    a('s_cmp_lg_u32 s3, 0')
    a('s_cbranch_scc1 L_nopub')
    a('s_lshl_b32 s49, s57, 1')
    a('v_mov_b32 v2, s48')
    a('s_mov_b64 exec, 1')
    a(f'buffer_store_short v2, v{vZ}, s[16:19], s49 offen sc0 sc1')
    a('s_mov_b64 exec, s[76:77]')
    a.label('L_nopub')
    a(f's_mov_b32 s46, {L_QS}')
    for j in range(8):
        a(f'v_lshl_add_u32 v{vCA+j}, v{vCA+j}, 5, s46')
    for j in range(8):
        if j == 0: a(f's_waitcnt lgkmcnt(0)')
        a(f'v_lshl_add_u32 v{vCA+j}, v{vRK+j}, 2, v{vCA+j}')
        a(f'v_cmpx_gt_u32 vcc, 32, v{vRK+j}')
        a(f'ds_write_b32 v{vCA+j}, v{vPE+j}')
        a('s_mov_b64 exec, s[76:77]')
    a(f'v_max3_u32 v2, v{vRK}, v{vRK+1}, v{vRK+2}')
    a(f'v_max3_u32 v2, v2, v{vRK+3}, v{vRK+4}')
    a(f'v_max3_u32 v2, v2, v{vRK+5}, v{vRK+6}')
    a(f'v_max_u32 v2, v2, v{vRK+7}')
    a(f'v_cmpx_lt_u32 vcc, 31, v2')
    a(f'ds_write_b32 v{vZ}, v1 offset:{L_OVF}')
    a.label('L_binned')
    a('s_mov_b64 exec, -1')
    a.label('L_tag')
    if PB: a('s_setprio 0')
    stamp(1)
    a.label('L_tagd')
    def slotld():
        a(f'buffer_load_dwordx4 v[{vPE}:{vPE+3}], v{vT16}, s[8:11], 0 offen sc0 sc1')
        a(f'buffer_load_dwordx4 v[{vPE+4}:{vPE+7}], v{vX+5}, s[8:11], 0 offen sc0 sc1')
    a('s_lshl_b32 s46, s2, 14')
    srd(a, 8, 38, 16384, add='s46')
    a(f'v_add_u32 v{vX+5}, 0x2000, v{vT16}')
    a('s_cmp_lg_u32 s43, 0')
    a('s_cbranch_scc1 L_copied')
    a('s_cmp_eq_u32 s3, 7')
    a('s_cbranch_scc1 L_copied')
    a('v_mov_b32 v1, 1')
    a('s_mov_b64 exec, 1')
    a('s_waitcnt lgkmcnt(0)')
    a(f'ds_add_u32 v{vZ}, v1 offset:{L_CNT}')
    a('s_mov_b64 exec, -1')
    a('s_cmp_ge_u32 s3, 4')
    a('s_cbranch_scc1 L_copied')
    a(f'v_add_u32 v{vX+4}, {L_QS}, v{vT16}')
    srd(a, 12, 38, 256 * 16384)
    a(f'v_lshrrev_b32 v{vX}, 3, v0')
    a(f'v_and_b32 v{vX+1}, 7, v0')
    a(f'v_lshlrev_b32 v{vX}, 14, v{vX}')
    a(f'v_lshl_add_u32 v{vX}, v{vX+1}, 4, v{vX}')
    a.label('L_spin')
    a(f'ds_read_b32 v1, v{vZ} offset:{L_CNT}')
    a('s_waitcnt lgkmcnt(0)')
    a('v_readfirstlane_b32 s50, v1')
    a('s_cmp_lt_u32 s50, 7')
    a('s_cbranch_scc1 L_spin')
    a(f'ds_read_b32 v1, v{vZ} offset:{L_OVF}')
    for u in range(8): a(f'ds_read_b128 v[{vT+4*u}:{vT+4*u+3}], v{vX+4} offset:{4096*u}')
    a('s_waitcnt lgkmcnt(8)')
    a('v_readfirstlane_b32 s50, v1')
    a('s_cmp_lg_u32 s50, 0')
    a('s_cbranch_scc1 L_ovf')
    a.label('L_copy')
    a('s_lshl_b32 s50, s57, 7')
    for u in range(8):
        a(f's_waitcnt lgkmcnt({7-u})')
        for k in range(4): a(f'v_xor_b32 v{vT+4*u+k}, s{(44,45,52,53)[k]}, v{vT+4*u+k}')
        a(f'buffer_store_dwordx4 v[{vT+4*u}:{vT+4*u+3}], v{vX}, s[12:15], s50 offen sc0 sc1')
        if u < 7: a(f's_add_u32 s50, s50, {1<<19}')
    a('v_mov_b32 v1, 1')
    a('s_mov_b64 exec, 1')
    a(f'ds_add_u32 v{vZ}, v1 offset:{L_CNT}')
    a('s_mov_b64 exec, -1')
    a.label('L_copied')
    stamp(2)
    for i in range(4): a(f'v_mov_b32 v{vX+i}, 0')
    a(f'ds_write_b128 v{vT16}, v[{vX}:{vX+3}]')
    a(f'ds_write_b128 v{vT16}, v[{vX}:{vX+3}] offset:8192')
    a(f'v_and_b32 v1, 7, v{vN}')
    a(f'v_lshlrev_b32 v1, 1, v1')
    a(f'v_xor_b32 v2, v1, v{vG}')
    a(f'v_lshlrev_b32 v2, 4, v2')
    a(f'v_lshl_add_u32 v3, v{vN}, 8, v2')
    a(f'v_add_u32 v{vRB}, {L_XO}, v3')
    a(f'v_and_b32 v3, 3, v{vN}')
    a(f'v_lshrrev_b32 v{vTMP}, 2, v{vN}')
    a(f'v_lshl_add_u32 v{vA1A}, v3, 2, v{vTMP}')
    a(f'v_lshl_add_u32 v{vA1A}, v{vA1A}, 8, v2')
    a(f'v_add_u32 v{vA1A}, s42, v{vA1A}')
    for s in range(1, 4):
        a(f'v_xor_b32 v{vRB+s}, {s<<6}, v{vRB}')
        a(f'v_xor_b32 v{vA1A+s}, {s<<6}, v{vA1A}')
    a(f'v_and_b32 v2, 1, v{vG}')
    a(f'v_lshl_or_b32 v2, v2, 2, v{vTMP}')
    a(f'v_lshlrev_b32 v2, 5, v2')
    a(f'v_lshl_or_b32 v2, v3, 3, v2')
    a(f'v_lshl_add_u32 v{vTRA}, v{vTMP}, 2, v{vG}')
    a(f'v_lshl_add_u32 v{vTRA}, v{vTRA}, 8, v2')
    a(f'v_add_u32 v{vTRA}, s42, v{vTRA}')
    for t in range(1, 8): a(f'v_xor_b32 v{vTRA+t}, {t<<5}, v{vTRA}')
    a(f'v_and_b32 v2, 0xe0, v2')
    a(f'v_lshlrev_b32 v3, 4, v3')
    a(f'v_xor_b32 v2, v2, v3')
    a('s_and_b32 s50, s3, 3')
    a('s_lshl_b32 s50, s50, 6')
    a(f'v_xor_b32 v2, s50, v2')
    a(f'v_lshl_add_u32 v{vX+6}, v{vG}, 3, v{vTMP}')
    a(f'v_lshl_add_u32 v{vX+6}, v{vX+6}, 8, v2')
    a(f'v_add_u32 v{vX+6}, {L_WQ}, v{vX+6}')
    a(f'v_lshl_add_u32 v{vX+7}, v{vG}, 2, v{vTMP}')
    a(f'v_lshl_add_u32 v{vX+7}, v{vX+7}, 8, v2')
    a(f'v_add_u32 v{vX+7}, {L_WV}, v{vX+7}')
    a(f'v_and_b32 v2, 1, v{vG}')
    a(f'v_lshlrev_b32 v2, 3, v2')
    a(f'v_xor_b32 v2, v2, v{vN}')
    a(f'v_lshlrev_b32 v{vGO}, 4, v2')
    for j in range(1, 4): a(f'v_xor_b32 v{vGO+j}, {j<<5}, v{vGO}')
    a('s_lshl_b32 s51, s3, 4')
    a('s_add_u32 s51, s51, 1')
    a(f'v_add_u32 v{vKEY}, s51, v{vN}')
    a('s_lshr_b32 s51, s3, 2')
    a('s_lshl_b32 s51, s51, 14')
    for s in range(4): a(f'v_add_u32 v{vX+8+s}, s51, v{vRB+s}')
    a(f'v_xor_b32 v1, s50, v{vX+8}')
    a(f'v_add_u32 v1, {L_QS-L_XO}, v1')
    if SP:
        a('s_lshl_b32 s46, s43, 3')
        a('s_add_u32 s46, s46, s3')
        a('s_cmp_lt_u32 s46, 6')
    else:
        a('s_cmp_lt_u32 s3, 6')
    a('s_cbranch_scc1 L_w4')
    a('s_waitcnt vmcnt(0)')
    a.label('L_w4')
    a('s_waitcnt lgkmcnt(0)')
    a('s_barrier')
    stamp(1, 2)
    if int(opt.get('pr', 0)) == 5:
        a('s_cmp_lt_u32 s3, 4')
        a('s_cbranch_scc1 L_p5')
        a('s_setprio 1')
        a.label('L_p5')
    a('s_cmp_lg_u32 s3, 0')
    a('s_cbranch_scc1 L_nt1')
    a(f'v_lshlrev_b32 v2, 2, v0')
    a(f'buffer_load_dword v3, v2, s[16:19], 0 offen sc0 sc1')
    a.label('L_nt1')
    srd(a, 12, 32, 32768)
    a('s_lshl_b32 s46, s3, 12')
    a(f's_add_u32 m0, s46, {L_WV}')
    a(f'v_lshlrev_b32 v{vS}, 1, v{vG}')
    a(f'v_xor_b32 v{vS}, v{vS}, v{vN}')
    a(f'v_lshlrev_b32 v{vS}, 4, v{vS}')
    a(f'v_lshl_add_u32 v{vS}, v{vG}, 8, v{vS}')
    a(f'v_xor_b32 v{vS+1}, 128, v{vS}')
    for u in range(4):
        a(f'buffer_load_dwordx4 v{vS+(u&1)}, s[12:15], s46 offen offset:{1024*u} lds')
    def prefetch(r0, rows, fixed=None):
        c = rows * 2 // 256
        ni = (c + 63) // 64
        a('s_lshl_b32 s47, s56, 3')
        a('s_add_u32 s46, s3, s47')
        a(f's_mul_i32 s46, s46, {c*128}')
        a(f's_add_u32 s46, s46, {r0*256}')
        a(f'v_lshlrev_b32 v{vS+2}, 7, v{vLN}')
        for u in range(fixed or ni):
            n = max(1, min(64, c - 64 * u))
            if n < 64: a(f's_mov_b64 exec, {hex((1 << n) - 1)}')
            a(f'buffer_load_dword v{vPF}, v{vS+2}, s[4:7], s46 offen')
            if n < 64: a('s_mov_b64 exec, -1')
            if c > 64 * (u + 1): a(f's_add_u32 s46, s46, 8192')
    PF1 = int(opt.get('pf1', 0)); NPF = 2
    if PF1 > 0:
        c = PF1 * 2 // 128
        NPF = (c + 63) // 64
        a('s_lshr_b32 s47, s56, 1')
        a('s_lshl_b32 s47, s47, 3')
        a('s_add_u32 s46, s3, s47')
        a(f's_mul_i32 s46, s46, {c*128}')
        a(f's_add_u32 s46, s46, {PF0*256}')
        a(f'v_lshlrev_b32 v{vS+2}, 7, v{vLN}')
        a('s_cmp_lg_u32 s43, 0')
        a('s_cselect_b64 exec, -1, 1')
        for u in range(NPF):
            a(f'buffer_load_dword v{vPF}, v{vS+2}, s[4:7], s46 offen')
            a(f's_add_u32 s46, s46, 8192')
        a('s_mov_b64 exec, -1')
    elif int(opt.get('opf', 0)):
        srd(a, 12, 24, PFN * 256)
        a('s_lshl_b32 s47, s56, 3')
        a('s_add_u32 s46, s3, s47')
        a(f's_mul_i32 s46, s46, 8192')
        a(f'v_mul_u32_u24 v{vS+2}, 128, v{vLN}')
        a(f'v_add_u32 v{vS+2}, s46, v{vS+2}')
        a(f'v_add_u32 v{vS+3}, 2097152, v{vS+2}')
        a(f'buffer_load_dword v{vPF}, v{vS+2}, s[12:15], 0 offen')
        a(f'buffer_load_dword v{vPF}, v{vS+3}, s[12:15], 0 offen')
    elif PFN > 0:
        prefetch(PF0, PFN, 2)
    else:
        slotld()
    for h in range(2):
        for k in range(8):
            r = vQB + 16 * h + 2 * k
            a(f'ds_read_b64_tr_b16 v[{r}:{r+1}], v{vX+6} offset:{8192*(k>>1)+1024*(k&1)+8*h}')
        a('s_waitcnt lgkmcnt(3)')
    gemm4(a, vQB, vX + 8, lambda T: 4096 * T, vACC)
    if ES:
        slotld(); NPF += 2
    a('s_nop 4')
    a('s_mov_b32 s51, 0xbe0293ee')
    for T in range(4):
        for r in range(8): a(f'v_mul_f32 v{vACC+8*T+r}, s51, v{vACC+8*T+r}')
        for r in range(4): a(f'v_cvt_pk_bf16_f32 v{vA1+4*T+r}, v{vACC+8*T+2*r}, v{vACC+8*T+2*r+1}')
        a(f'ds_write_b128 v1, v[{vA1+4*T}:{vA1+4*T+3}] offset:{4096*T}')
    for i in range(32): a(f'v_mov_b32 v{vACC+i}, 0')
    a('s_lshl_b32 s51, s3, 12')
    a(f's_add_u32 s51, s51, {L_QS-L_XO}')
    for s in range(4): a(f'v_add_u32 v{vX+s}, s51, v{vRB+s}')
    a(f's_waitcnt vmcnt({NPF})')
    a('s_cmp_lg_u32 s3, 0')
    a('s_cbranch_scc1 L_nt2')
    a(f's_mov_b32 s50, {TMO}')
    a('s_mov_b32 s51, 0x80008000')
    a.label('L_tp')
    a(f'v_and_b32 v1, s51, v3')
    a('v_cmp_ne_u32 vcc, s51, v1')
    a('s_cbranch_vccz L_tp2')
    a(f'buffer_load_dword v3, v2, s[16:19], 0 offen sc0 sc1')
    a('s_waitcnt vmcnt(0)')
    a('s_sub_u32 s50, s50, 1')
    a('s_cbranch_scc0 L_tp')
    a.label('L_tp2')
    a(f'ds_write_b32 v2, v3 offset:{L_TAGS}')
    a.label('L_nt2')
    stamp(2, 2)
    srd(a, 16, 34, XB)
    a(f'v_lshrrev_b32 v1, 2, v0')
    a(f'v_and_b32 v1, 0x7e, v1')
    a('s_waitcnt lgkmcnt(0)')
    a('s_barrier')
    a(f'ds_read_u16 v2, v1 offset:{L_TAGS}')
    a(f'ds_read_u16 v3, v1 offset:{L_TAGS+128}')
    for s in range(4): a(f'ds_read_b128 v[{vQB+4*s}:{vQB+4*s+3}], v{vX+s}')
    if PFN > 0 and not ES:
        slotld()
    stamp(3)
    for h in range(2):
        for k in range(8):
            r = vWV + 16 * h + 2 * k
            a(f'ds_read_b64_tr_b16 v[{r}:{r+1}], v{vX+7} offset:{8192*(k>>1)+4096*(k&1)+8*h}')
        if h == 0: a('s_waitcnt lgkmcnt(7)')
    a(f's_mov_b32 s50, {TMO}')
    a('s_mov_b32 s51, 0xff800000')
    for h in range(2):
        a(f'v_lshlrev_b32 v{vTB+4*h}, 23, v{2+h}')
        a(f'v_lshrrev_b32 v{vTB+4*h+1}, 6, v{2+h}')
        a(f'v_lshlrev_b32 v{vTB+4*h+1}, 23, v{vTB+4*h+1}')
        a(f'v_xor_b32 v{vTB+4*h+2}, s51, v{vTB+4*h}')
        a(f'v_xor_b32 v{vTB+4*h+3}, s51, v{vTB+4*h+1}')
    a('v_and_b32 v2, v2, v3')
    a('v_cmp_gt_u32 vcc, 0x8000, v2')
    a('s_cbranch_vccnz L_fail')
    a('s_mov_b32 s51, 0x800000')
    a.label('L_poll')
    a('s_waitcnt vmcnt(0)')
    for j in range(8): a(f'v_xor_b32 v{vRK+j}, v{vTB+j}, v{vPE+j}')
    a(f'v_or3_b32 v1, v{vRK}, v{vRK+1}, v{vRK+2}')
    a(f'v_or3_b32 v2, v{vRK+4}, v{vRK+5}, v{vRK+6}')
    a(f'v_or3_b32 v1, v1, v{vRK+3}, v{vRK+7}')
    a(f'v_or_b32 v1, v1, v2')
    a('v_cmpx_le_u32 vcc, s51, v1')
    a('s_cbranch_execz L_got')
    a(f'buffer_load_dwordx4 v[{vPE}:{vPE+3}], v{vT16}, s[8:11], 0 offen sc0 sc1')
    a(f'buffer_load_dwordx4 v[{vPE+4}:{vPE+7}], v{vX+5}, s[8:11], 0 offen sc0 sc1')
    a('s_sub_u32 s50, s50, 1')
    a('s_cbranch_scc0 L_poll')
    a('s_mov_b64 exec, -1')
    a.label('L_fail')
    a('s_waitcnt vmcnt(0)')
    a('s_lshl_b32 s50, s3, 3')
    a('s_lshl_b32 s50, 0xff, s50')
    a('s_and_b32 s51, s3, 4')
    a('v_mov_b32 v1, s50')
    a('v_mov_b32 v2, s51')
    a(f'ds_or_b32 v2, v1 offset:{L_RS}')
    a(f'ds_or_b32 v2, v1 offset:{L_RS+8}')
    for j in range(8): a(f'v_mov_b32 v{vRK+j}, 0')
    a.label('L_got')
    a('s_mov_b64 exec, -1')
    stamp(4)
    if PF2 > 0: prefetch(PFN, PF2)
    a(f'v_cmp_eq_u32 vcc, 0x70, v{vRK}')
    a(f'v_cmp_eq_u32 s[50:51], v{vRK+4}, v{vRK+5}')
    a.lines.pop()
    a(f'v_mov_b32 v1, 0x70')
    a(f'v_cmp_eq_u32 s[50:51], v1, v{vRK+4}')
    for j in range(8): a(f'v_mov_b32 v{vPE+j}, v{vRK+j}')
    a('s_or_b64 s[54:55], vcc, s[50:51]')
    a('s_cbranch_scc1 L_mark')
    if NS:
        a.label('L_place')
        a('v_mov_b32 v1, 1')
        for j in range(8):
            a(f'v_lshrrev_b32 v{vCA+j}, 2, v{vPE+j}')
            a(f'v_and_b32 v{vCA+j}, 0x1c, v{vCA+j}')
            a(f'v_mov_b32 v{vRK+j}, -1')
            a(f'v_cmpx_ne_u32 vcc, 0, v{vPE+j}')
            a(f'ds_add_rtn_u32 v{vRK+j}, v{vCA+j}, v1 offset:{L_C+32}')
            a('s_mov_b64 exec, -1')
        for j in range(8): a(f'v_lshlrev_b32 v{vTB+j}, 9, v{vCA+j}')
        a('s_lshl_b32 s50, s3, 2')
        a('v_mov_b32 v3, s50')
        a(f's_mov_b32 s51, {CAP}')
        for j in range(8):
            if j == 0: a(f's_waitcnt lgkmcnt(0)')
            a(f'v_lshl_add_u32 v{vTB+j}, v{vRK+j}, 2, v{vTB+j}')
            a(f'v_cmpx_gt_u32 vcc, s51, v{vRK+j}')
            a(f'ds_write_b32 v{vTB+j}, v{vPE+j}')
            a(f'v_mov_b32 v{vPE+j}, 0')
            a('s_mov_b64 exec, -1')
    else:
        a.label('L_place')
        a('v_mov_b32 v1, 1')
        for j in range(8):
            a(f'v_lshrrev_b32 v{vCA+j}, 2, v{vPE+j}')
            a(f'v_and_b32 v{vCA+j}, 0x3c, v{vCA+j}')
            a(f'v_mov_b32 v{vRK+j}, -1')
            a(f'v_cmpx_ne_u32 vcc, 0, v{vPE+j}')
            a(f'ds_add_rtn_u32 v{vRK+j}, v{vCA+j}, v1 offset:{L_C+32}')
            a('s_mov_b64 exec, -1')
        for j in range(8):
            a(f'v_and_b32 v{vTB+j}, 0x1c, v{vCA+j}')
            a(f'v_lshlrev_b32 v{vTB+j}, 9, v{vTB+j}')
        a('s_lshl_b32 s50, s3, 2')
        a('v_mov_b32 v3, s50')
        a(f's_mov_b32 s51, {CAP}')
        a('s_waitcnt lgkmcnt(0)')
        a('s_barrier')
        for j in range(8): a(f'ds_read_b32 v{vCA+j}, v{vCA+j} offset:{L_C}')
        a(f'ds_read2_b32 v[{vX}:{vX+1}], v3 offset0:0 offset1:8') ; a.lines.pop()
        a(f'ds_read_b32 v{vX}, v3 offset:{L_C+32}')
        a(f'ds_read_b32 v{vX+1}, v3 offset:{L_C+64}')
        for j in range(8):
            if j == 0: a(f's_waitcnt lgkmcnt(0)')
            a(f'v_add_u32 v{vRK+j}, v{vRK+j}, v{vCA+j}')
            a(f'v_lshl_add_u32 v{vTB+j}, v{vRK+j}, 2, v{vTB+j}')
            a(f'v_and_b32 v{vCA+j}, 0xffffff7f, v{vPE+j}')
            a(f'v_cmpx_gt_u32 vcc, s51, v{vRK+j}')
            a(f'ds_write_b32 v{vTB+j}, v{vCA+j}')
            a(f'v_mov_b32 v{vPE+j}, 0')
            a('s_mov_b64 exec, -1')
    a(f'v_or3_b32 v1, v{vPE}, v{vPE+1}, v{vPE+2}')
    a(f'v_or3_b32 v1, v1, v{vPE+3}, v{vPE+4}')
    a(f'v_or3_b32 v1, v1, v{vPE+5}, v{vPE+6}')
    a(f'v_or_b32 v1, v1, v{vPE+7}')
    a('v_cmpx_ne_u32 vcc, 0, v1')
    a(f'ds_write_b32 v{vZ}, v1 offset:{L_SLOW}')
    a('s_mov_b64 exec, -1')
    if not NS: a(f'v_add_u32 v{vX}, v{vX}, v{vX+1}')
    a('s_lshl_b32 s50, s3, 11')
    a(f'v_lshl_add_u32 v{vLA}, v{vG}, 5, s50')
    if not NS: a(f'v_readfirstlane_b32 s53, v{vX}')
    a('s_waitcnt lgkmcnt(0)')
    a('s_barrier')
    if NS: a(f'ds_read_b32 v2, v3 offset:{L_C+32}')
    eread(a, 0, 0)
    eread(a, 1, 128)
    a(f'ds_read_b32 v1, v{vZ} offset:{L_SLOW}')
    a(f'ds_read_b128 v[{vX}:{vX+3}], v{vZ} offset:{L_RS}')
    if NS:
        a('s_waitcnt lgkmcnt(6)')
        a('v_readfirstlane_b32 s53, v2')
    a('s_min_u32 s53, s53, s51')
    a('s_add_u32 s53, s53, 31')
    a('s_lshr_b32 s53, s53, 5')
    stamp(5)
    a('s_cmp_eq_u32 s53, 0')
    a('s_cbranch_scc1 L_noi')
    a('s_waitcnt lgkmcnt(4)')
    issue(a, 0)
    a('s_cmp_eq_u32 s53, 1')
    a('s_cbranch_scc1 L_noi')
    a('s_waitcnt lgkmcnt(2)')
    issue(a, 1)
    a.label('L_noi')
    a('s_waitcnt lgkmcnt(0)')
    a('v_readfirstlane_b32 s52, v1')
    for i in range(4): a(f'v_readfirstlane_b32 s{76+i}, v{vX+i}')
    a('s_cmp_eq_u32 s53, 0')
    a('s_cbranch_scc1 L_done')
    PR = int(opt.get('pr', 0))
    if PR in (1, 4):
        a('s_cmp_lt_u32 s3, 4')
        a('s_cbranch_scc1 L_loop')
        a('s_setprio 1')
    if PR in (2, 3): a('s_lshr_b32 s96, s3, 2')
    a.label('L_loop')
    for b in range(2):
        if PR == 2:
            a(f's_cmp_eq_u32 s96, {b}')
            a(f's_cbranch_scc1 L_pa{b}')
            a('s_setprio 1')
            a(f's_branch L_pb{b}')
            a.label(f'L_pa{b}')
            a('s_setprio 0')
            a.label(f'L_pb{b}')
        if PR == 3 and b == 0:
            a('s_cmp_eq_u32 s96, 2')
            a('s_cbranch_scc0 L_pc')
            a('s_setprio 1')
            a.label('L_pc')
            a('s_lshl_b32 s96, s96, 1')
        body(a, b, opt)
    a('s_branch L_loop')
    a.label('L_done')
    if PR in (1, 2, 3, 5): a('s_setprio 0')
    stamp(6)
    a('s_or_b64 s[54:55], s[76:77], s[78:79]')
    a('s_or_b32 s54, s54, s55')
    a('s_or_b32 s54, s54, s52')
    a('s_cbranch_scc1 L_slow')
    a(f's_sub_u32 s50, s42, {L_XO}')
    a('s_lshr_b32 s51, s3, 2')
    a('s_lshl_b32 s51, s51, 16')
    a(f's_add_u32 s51, s51, {(LB-L_XO)&0xffffffff}')
    for s in range(4):
        for r in range(4): a(f'v_cvt_pk_bf16_f32 v{vA1+4*s+r}, v{vACC+8*s+2*r}, v{vACC+8*s+2*r+1}')
        a(f'v_add_u32 v2, s50, v{vRB+s}')
        a(f'ds_write_b128 v2, v[{vA1+4*s}:{vA1+4*s+3}]')
        a(f'v_add_u32 v{vX+s}, s51, v{vRB+s}')
    a(f'v_lshlrev_b32 v1, 19, v{vN}')
    a(f'v_lshl_add_u32 v1, v{vG}, 4, v1')
    a('s_lshl_b32 s50, s2, 8')
    a('s_and_b32 s51, s3, 3')
    a('s_lshl_b32 s51, s51, 6')
    a('s_add_u32 s50, s50, s51')
    a('s_lshr_b32 s51, s3, 2')
    a('s_lshl_b32 s51, s51, 18')
    a('s_add_u32 s50, s50, s51')
    a('v_add_u32 v1, s50, v1')
    if int(opt.get('hb', 0)):
        a('s_and_b32 s51, s3, 4')
        a('v_mov_b32 v2, s51')
        a('v_mov_b32 v3, 1')
        a('s_waitcnt lgkmcnt(0)')
        a('s_mov_b64 exec, 1')
        a(f'ds_add_u32 v2, v3 offset:{L_C+132}')
        a('s_mov_b64 exec, -1')
        a.label('L_hb')
        a(f'ds_read_b32 v3, v2 offset:{L_C+132}')
        a('s_waitcnt lgkmcnt(0)')
        a('v_readfirstlane_b32 s51, v3')
        a('s_cmp_lt_u32 s51, 4')
        a('s_cbranch_scc1 L_hb')
    else:
        a('s_waitcnt lgkmcnt(0)')
        a('s_barrier')
    gemm4(a, vWV, vX, lambda T: 16384 * T, vACC)
    for T in range(4):
        if T == 3: a('s_nop 4')
        for r in range(4): a(f'v_cvt_pk_bf16_f32 v{vA1+4*T+r}, v{vACC+8*T+2*r}, v{vACC+8*T+2*r+1}')
        a(f'buffer_store_dwordx4 v[{vA1+4*T}:{vA1+4*T+3}], v1, s[16:19], 0 offen')
        if T < 3: a('v_add_u32 v1, 0x10000, v1')
    if DG:
        a('s_waitcnt vmcnt(0)')
        stamp(7)
        a('s_waitcnt lgkmcnt(0)')
        srd(a, 8, 38, 1 << 20, add=200 << 20)
        a('s_lshl_b32 s60, s97, 3')
        a('s_add_u32 s60, s60, s3')
        a('s_lshl_b32 s60, s60, 5')
        for i in range(8): a(f'v_mov_b32 v{16+i}, s{80+2*i}')
        a('v_mov_b32 v12, 0')
        a(f'v_cmpx_eq_u32 vcc, 0, v{vLN}')
        a('buffer_store_dwordx4 v[16:19], v12, s[8:11], s60 offen')
        a('buffer_store_dwordx4 v[20:23], v12, s[8:11], s60 offen offset:16')
    a.label('L_end')
    a('s_endpgm')
    a.label('L_ovf')
    a(f'v_lshrrev_b32 v1, 1, v0')
    a(f'v_and_b32 v1, 0xfc, v1')
    for u in range(8): a(f'ds_read_b32 v{vRK+u}, v1 offset:{L_PC+128*u}')
    a('s_waitcnt lgkmcnt(0)')
    for u in range(8):
        a(f'v_cmpx_lt_u32 vcc, 32, v{vRK+u}')
        a(f'v_mov_b32 v{vT+4*u}, 0x70')
        for k in range(1, 4): a(f'v_mov_b32 v{vT+4*u+k}, 0')
        a('s_mov_b64 exec, -1')
    a('s_branch L_copy')
    a.label('L_mark')
    a('v_lshrrev_b32 v1, 3, v0')
    a('v_lshlrev_b32_e64 v2, v1, 1')
    a('v_lshrrev_b32 v1, 3, v1')
    a('v_and_b32 v1, 4, v1')
    a('s_mov_b64 exec, vcc')
    a(f'ds_or_b32 v1, v2 offset:{L_RS}')
    a(f'v_mov_b32 v{vPE}, 0')
    a('s_mov_b64 exec, s[50:51]')
    a(f'ds_or_b32 v1, v2 offset:{L_RS+8}')
    a(f'v_mov_b32 v{vPE+4}, 0')
    a('s_mov_b64 exec, -1')
    a('s_branch L_place')
    a.label('L_slow')
    a('s_barrier')
    for i in range(4): a(f'v_mov_b32 v{vX+i}, 0')
    a(f'ds_write_b128 v{vT16}, v[{vX}:{vX+3}]')
    a(f'ds_write_b128 v{vT16}, v[{vX}:{vX+3}] offset:8192')
    a('s_cmp_lg_u32 s52, 0')
    a('s_cbranch_scc1 L_slow_go')
    a('s_cmp_eq_u64 s[76:77], 0')
    a('s_cbranch_scc1 L_slow_hi')
    a('s_ff1_i32_b64 s57, s[76:77]')
    a('s_bitset0_b64 s[76:77], s57')
    a('s_branch L_slow_ld')
    a.label('L_slow_hi')
    a('s_ff1_i32_b64 s57, s[78:79]')
    a('s_bitset0_b64 s[78:79], s57')
    a('s_add_u32 s57, s57, 64')
    a.label('L_slow_ld')
    srd(a, 12, 26, E * 4)
    a(f's_mul_i32 s58, s57, {CH*4}')
    a(f's_mov_b32 s59, {CH//8}')
    a(f's_cmp_eq_u32 s57, {P-1}')
    a(f's_cselect_b32 s59, {(E-(P-1)*CH)//8}, s59')
    edge_loads(a, 's58')
    a('s_waitcnt vmcnt(0)')
    entries(a, vPE)
    a('v_cmp_gt_u32 s[54:55], s59, v0')
    for j in range(8):
        a(f'v_and_b32 v1, 0xff, v{vA1+8+j}')
        a('v_cmp_eq_u32 vcc, s2, v1')
        a('s_and_b64 vcc, vcc, s[54:55]')
        a('s_nop 1')
        a(f'v_cndmask_b32 v{vPE+j}, 0, v{vPE+j}, vcc')
    a.label('L_slow_go')
    for i in range(4): a(f'v_mov_b32 v{vS+i}, s{76+i}')
    a(f'v_cmp_gt_u32 vcc, 7, v0')
    a('s_and_saveexec_b64 s[54:55], vcc')
    for i in range(4): a(f'v_mov_b32 v{vX+i}, 0')
    a(f'ds_write_b128 v{vT16}, v[{vX}:{vX+3}] offset:{L_C}')
    a(f'ds_write_b128 v{vZ}, v[{vS}:{vS+3}] offset:{L_RS}')
    a('s_mov_b64 exec, -1')
    a('s_waitcnt lgkmcnt(0)')
    a('s_barrier')
    a('s_branch L_place')
    return a

HDR = open('cdna_kernels/%s.s.ref' % NAME).read().split('; Override')[0]
def build(opt):
    a = kern(opt)
    for e in check(a.lines, 'k'): print('HAZARD', e)
    t = HDR + f'; @launch grid=(256,1,1) block=(512,1,1) lds={LDS}\n'
    t += '.amdgcn_target "amdgcn-amd-amdhsa--gfx950"\n.text\n'
    t += f'.globl {NAME}_kernel\n.p2align 8\n.type {NAME}_kernel,@function\n' + a.text()
    t += f'''.section .rodata,"a"
.p2align 6
.amdhsa_kernel {NAME}_kernel
  .amdhsa_next_free_vgpr {NV}
  .amdhsa_next_free_sgpr 100
  .amdhsa_accum_offset {(NV+3)//4*4}
  .amdhsa_group_segment_fixed_size 0
  .amdhsa_kernarg_size 64
  .amdhsa_user_sgpr_count 2
  .amdhsa_user_sgpr_kernarg_segment_ptr 1
  .amdhsa_system_sgpr_workgroup_id_x 1
.end_amdhsa_kernel
'''
    return t
if __name__ == '__main__':
    out = sys.argv[1] if len(sys.argv) > 1 else f'cdna_kernels/{NAME}.s'
    opt = dict(kv.split('=', 1) for kv in sys.argv[2:])
    open(out, 'w').write(build(opt))
```

```python
import sys
sys.path.insert(0, 'gen')
from asmlib import Asm, check
N = 25000; E = 400000; XB = N * 256
CH = 3128; P = 128
NAME = 'standalone__kernel_systems_refs_featgraph__graph'
L_LIST = 0; L_PC = 16384; L_C = 17408; LB = 18432
L_SLOW = L_C + 96; L_OVF = L_C + 100; L_CNT = L_C + 128; L_TAGS = L_C + 256; L_TAG = L_C + 104; L_RS = L_C + 112
L_WQ = LB; L_WV = LB + 32768; L_XO = LB + 65536; L_QS = LB + 98304
LDS = LB + 131072
CAP = 384
vGO = 4; vA1A = 8; vTRA = 12; vKEY = 20; vLA = 21; vZ = 22; vT16 = 23; vRB = 24
vN = 28; vG = 29; vLN = 30; vTMP = 31
vACC = 32; vQB = 64; vWV = 196; vA1 = 96; vT = 128; vS = 160; vE = 168; vB = 184; vAD = 188
vPE = 228; vRK = 112; vCA = 120; vTB = 144; vX = 236; vPF = 251
NV = 252
sM = 60

def srd(a, d, lo, nrec, add=None):
    if add is None:
        a(f's_mov_b32 s{d}, s{lo}')
        a(f's_and_b32 s{d+1}, s{lo+1}, 0xffff')
    else:
        a(f's_add_u32 s{d}, s{lo}, {add}')
        a(f's_addc_u32 s{d+1}, s{lo+1}, 0')
        a(f's_and_b32 s{d+1}, s{d+1}, 0xffff')
    a(f's_mov_b32 s{d+2}, {nrec}')
    a(f's_mov_b32 s{d+3}, 0x20000')

def mf(d, A, B, C): return f'v_mfma_f32_16x16x32_bf16 v[{d}:{d+3}], v[{A}:{A+3}], v[{B}:{B+3}], {C}'

def edge_loads(a, soff):
    a(f'v_lshlrev_b32 v{vX}, 5, v0')
    a(f'buffer_load_dwordx4 v[{vA1+8}:{vA1+11}], v{vX}, s[20:23], {soff} offen')
    a(f'buffer_load_dwordx4 v[{vA1+12}:{vA1+15}], v{vX}, s[20:23], {soff} offen offset:16')
    a(f'buffer_load_dwordx4 v[{vA1}:{vA1+3}], v{vX}, s[12:15], {soff} offen')
    a(f'buffer_load_dwordx4 v[{vA1+4}:{vA1+7}], v{vX}, s[12:15], {soff} offen offset:16')

def entries(a, dst):
    a(f'v_mov_b32 v{vX+1}, 0x81')
    for j in range(8):
        a(f'v_cmp_le_u32 s[{sM+2*j}:{sM+2*j+1}], s41, v{vA1+j}')
    for j in range(8):
        s, d = vA1 + j, vA1 + 8 + j
        a(f'v_lshrrev_b32 v{vX+2}, 4, v{d}')
        a(f'v_and_b32 v{vX+2}, 0x70, v{vX+2}')
        a(f'v_lshl_or_b32 v{dst+j}, v{s}, 8, v{vX+2}')
        a(f'v_lshrrev_b32 v{vX+2}, 11, v{d}')
        a(f'v_cndmask_b32 v{vX+3}, 1, v{vX+1}, s[{sM+2*j}:{sM+2*j+1}]')
        a(f'v_add3_u32 v{dst+j}, v{dst+j}, v{vX+2}, v{vX+3}')

def issue(a, b, fill=None):
    for j in range(8):
        if j == 0: a(f's_add_u32 m0, s42, {8192*b}')
        else: a('s_add_u32 m0, m0, 1024')
        a(f'v_and_or_b32 v{vAD+j}, v{vE+8*b+j}, s40, v{vGO+(j&3)}')
        a(f'buffer_load_dwordx4 v{vAD+j}, s[4:7], 0 offen lds')
        if fill: fill()

def eread(a, b, off):
    a(f'ds_read_b128 v[{vE+8*b}:{vE+8*b+3}], v{vLA} offset:{off}')
    a(f'ds_read_b128 v[{vE+8*b+4}:{vE+8*b+7}], v{vLA} offset:{off+16}')

def gemm4(a, A, addr, offs, D):
    order = [(T, s) for T in range(4) for s in range(4)]
    def rd(i):
        T, s = order[i]
        r = vA1 + 4 * i
        a(f'ds_read_b128 v[{r}:{r+3}], v{addr+s} offset:{offs(T)}')
    for i in range(12): rd(i)
    for i, (T, s) in enumerate(order):
        a(f's_waitcnt lgkmcnt({min(15, i+11) - i})')
        r = vA1 + 4 * i
        for h in range(2):
            d = D + 4 * (2 * T + h)
            a(mf(d, A + 16 * h + 4 * s, r, '0' if s == 0 else f'v[{d}:{d+3}]'))
        if i + 12 < 16: rd(i + 12)

def body(a, b, opt):
    tr = lambda k: f'ds_read_b64_tr_b16 v[{vT+2*k}:{vT+2*k+1}], v{vTRA+(k>>1)} offset:{8192*b+4096*(k&1)}'
    a('s_cmp_eq_u32 s53, 1')
    a(f's_cbranch_scc1 W0_{b}')
    a('s_waitcnt vmcnt(8)')
    a(f's_branch W1_{b}')
    a.label(f'W0_{b}')
    a('s_waitcnt vmcnt(0)')
    a.label(f'W1_{b}')
    if int(opt.get('pi', 0)) == 2: a('s_setprio 3')
    for bb in range(2):
        for s in range(4):
            r = vA1 + 16 * bb + 4 * s
            a(f'ds_read_b128 v[{r}:{r+3}], v{vA1A+s} offset:{8192*b+4096*bb}')
    for j in range(8):
        a(f'v_cmp_eq_u32_sdwa s[{sM+2*j}:{sM+2*j+1}], v{vE+8*b+j}, v{vKEY} src0_sel:BYTE_0 src1_sel:DWORD')
    eread(a, b, 256 + 128 * b)
    for k in range(5): a(tr(k))
    a('s_waitcnt lgkmcnt(11)')
    for s in range(4): a(mf(vS, vA1 + 4 * s, vQB + 4 * s, '0' if s == 0 else f'v[{vS}:{vS+3}]'))
    for k in range(5, 9): a(tr(k))
    a('s_waitcnt lgkmcnt(11)')
    for s in range(4): a(mf(vS + 4, vA1 + 16 + 4 * s, vQB + 4 * s, '0' if s == 0 else f'v[{vS+4}:{vS+7}]'))
    for k in range(9, 13): a(tr(k))
    a('s_waitcnt lgkmcnt(11)')
    for k in range(13, 16): a(tr(k))
    if b == 1: a(f'v_add_u32 v{vLA}, 256, v{vLA}')
    for j in range(4): a(f'v_exp_f32 v{vS+j}, v{vS+j}')
    sig = [f'v_exp_f32 v{vS+j}, v{vS+j}' for j in range(4, 8)]
    sig += [f'v_add_f32 v{vS+j}, 1.0, v{vS+j}' for j in range(8)]
    sig += [f'v_rcp_f32 v{vS+j}, v{vS+j}' for j in range(8)]
    sig += [f'v_cndmask_b32 v{vS+j}, 0, v{vS+j}, s[{sM+2*j}:{sM+2*j+1}]' for j in range(8)]
    sig += [f'v_cvt_pk_bf16_f32 v{vB+u}, v{vS+2*u}, v{vS+2*u+1}' for u in range(4)]
    a('s_cmp_lt_u32 s53, 3')
    a(f's_cbranch_scc1 NI_{b}')
    a('s_waitcnt lgkmcnt(0)')
    it = iter(sig)
    def fill():
        for _ in range(3):
            x = next(it, None)
            if x: a(x)
    PI = int(opt.get('pi', 0))
    if PI: a('s_setprio 3')
    issue(a, b, fill)
    if PI:
        a('s_setprio 1')
        a('s_cmp_ge_u32 s3, 4')
        a(f's_cbranch_scc1 PI_{b}')
        a('s_setprio 0')
        a.label(f'PI_{b}')
    for x in it: a(x)
    a(f's_branch DI_{b}')
    a.label(f'NI_{b}')
    a('s_nop 1')
    for x in sig: a(x)
    a('s_waitcnt lgkmcnt(0)')
    a.label(f'DI_{b}')
    a('s_sub_u32 s53, s53, 1')
    a('s_cmp_eq_u32 s53, 0')
    for t in range(8):
        a(mf(vACC + 4 * t, vT + 4 * t, vB, f'v[{vACC+4*t}:{vACC+4*t+3}]'))
    a('s_cbranch_scc1 L_done')

def kern(opt):
    a = Asm()
    DG = opt.get('diag'); H = int(opt.get('H', 12544)); PFS = int(opt.get('pfs', 128)); PFN = int(opt.get('pfn', H))
    TMO = int(opt.get('tmo', 4000)); NS = int(opt.get('ns', 0)); PF2 = int(opt.get('pf2', 0))
    if NS: H = 1 << 20
    def stamp(i, m=None):
        if DG == '2' and i in (1, 2) and m is None: return
        if DG != '2' and m is not None: return
        if DG: a(f's_memrealtime s[{80+2*i}:{81+2*i}]')
    a.label(f'{NAME}_kernel')
    a('s_cmp_ge_u32 s2, 256')
    a('s_cbranch_scc1 L_end')
    a('s_load_dwordx16 s[24:39], s[0:1], 0')
    stamp(0)
    a('v_lshrrev_b32 v1, 6, v0')
    a(f'v_lshlrev_b32 v{vT16}, 4, v0')
    a('v_readfirstlane_b32 s3, v1')
    for i in range(4): a(f'v_mov_b32 v{vX+i}, 0')
    a(f'v_cmp_gt_u32 vcc, 64, v0')
    a('s_and_saveexec_b64 s[54:55], vcc')
    a(f'ds_write_b128 v{vT16}, v[{vX}:{vX+3}] offset:16384')
    a(f'v_cmpx_gt_u32 vcc, 9, v0')
    a(f'ds_write_b128 v{vT16}, v[{vX}:{vX+3}] offset:17408')
    a('s_mov_b64 exec, s[54:55]')
    a('s_lshr_b32 s56, s2, 3')
    if int(opt.get('rm', 0)):
        a('s_bfe_u32 s43, s2, 0x10002')
        a('s_and_b32 s57, s2, 3')
        a('s_lshl_b32 s58, s56, 2')
    else:
        a('s_bfe_u32 s43, s2, 0x10003')
        a('s_and_b32 s57, s2, 7')
        a('s_lshr_b32 s58, s2, 4')
        a('s_lshl_b32 s58, s58, 3')
    CM = int(opt.get('cm', 0))
    if CM & 1:
        a('s_and_b32 s57, s2, 7')
        a('s_lshl_b32 s57, s57, 4')
        a('s_lshr_b32 s58, s2, 4')
    a('s_or_b32 s57, s57, s58')
    if DG: a('s_mov_b32 s97, s2')
    if CM & 2:
        a('s_and_b32 s2, s2, 7')
        a('s_lshl_b32 s2, s2, 5')
        a('s_or_b32 s2, s2, s56')
    a(f'v_add_u32 v1, {L_QS}, v{vT16}')
    a('s_cmp_lg_u32 s43, 0')
    a('s_cbranch_scc1 L_nz')
    for u in range(4): a(f'ds_write_b128 v1, v[{vX}:{vX+3}] offset:{8192*u}')
    a.label('L_nz')
    a(f'v_and_b32 v{vN}, 15, v0')
    a(f'v_bfe_u32 v{vG}, v0, 4, 2')
    a(f'v_and_b32 v{vLN}, 63, v0')
    a(f'v_mov_b32 v{vZ}, 0')
    a(f's_mov_b32 s41, {H}')
    a('s_mov_b32 s40, 0x7fff00')
    a('s_lshl_b32 s42, s3, 14')
    a(f's_add_u32 s42, s42, {LB}')
    a(f's_mul_i32 s58, s57, {CH*4}')
    a(f's_mov_b32 s59, {CH//8}')
    a(f's_cmp_eq_u32 s57, {P-1}')
    a(f's_cselect_b32 s59, {(E-(P-1)*CH)//8}, s59')
    a('s_waitcnt lgkmcnt(0)')
    srd(a, 12, 26, E * 4); srd(a, 20, 28, E * 4)
    srd(a, 16, 36, 256)
    a('s_cmp_lg_u32 s43, 0')
    a('s_cbranch_scc1 L_noedge')
    a('v_cmp_gt_u32 vcc, s59, v0')
    a('s_and_saveexec_b64 s[54:55], vcc')
    a('s_cbranch_execz L_noedge0')
    edge_loads(a, 's58')
    srd(a, 8, 38, 16384)
    a('s_lshl_b32 s46, s57, 7')
    a(f'buffer_load_dwordx2 v[{vTB}:{vTB+1}], v{vZ}, s[8:11], s46 offen sc0 sc1')
    a.label('L_noedge0')
    a('s_mov_b64 exec, s[54:55]')
    a.label('L_noedge')
    srd(a, 4, 24, XB)
    a('s_cmp_lg_u32 s43, 0')
    a('s_cbranch_scc1 L_nob1')
    a('s_barrier')
    a.label('L_nob1')
    SP = int(opt.get('sp', 0)); ES = int(opt.get('es', 0))
    if SP:
        a('s_cmp_eq_u32 s43, 0')
        a('s_cbranch_scc1 L_nsp')
        TW = int(opt.get('tw', 0))
        if TW & 1:
            a('s_cmp_lg_u32 s3, 0')
            a('s_cbranch_scc1 L_tw1')
            srd(a, 8, 38, 1 << 22)
            a(f'v_lshlrev_b32 v1, 16, v{vLN}')
            a(f'buffer_load_dword v{vPF}, v1, s[8:11], 0 offen')
            a.label('L_tw1')
        if TW & 2:
            a('s_sub_u32 s46, s3, 1')
            a('s_cmp_ge_u32 s46, 2')
            a('s_cbranch_scc1 L_tw2')
            srd(a, 8, 34, XB)
            a('s_lshl_b32 s46, s46, 22')
            a(f'v_lshlrev_b32 v1, 16, v{vLN}')
            a(f'v_add_u32 v1, s46, v1')
            a(f'buffer_load_dword v{vPF}, v1, s[8:11], 0 offen')
            a.label('L_tw2')
        a(f'v_lshlrev_b32 v1, 1, v{vG}')
        a(f'v_xor_b32 v1, v1, v{vN}')
        a(f'v_lshlrev_b32 v1, 4, v1')
        a(f'v_lshl_add_u32 v{vS}, v{vG}, 19, v1')
        a('s_lshl_b32 s47, s2, 8')
        a('s_lshl_b32 s46, s3, 16')
        a('s_add_u32 s47, s47, s46')
        a(f'v_add_u32 v{vS}, s47, v{vS}')
        for u in range(1, 4):
            a(f'v_add_u32 v{vS+u}, {(u*4<<19)-1024*u}, v{vS}')
            if u & 1: a(f'v_xor_b32 v{vS+u}, 128, v{vS+u}')
        a('s_lshl_b32 s46, s3, 12')
        a(f's_add_u32 m0, s46, {L_XO}')
        a(f'v_lshl_add_u32 v2, v{vG}, 8, v1')
        a('v_xor_b32 v3, 128, v2')
        for u in range(4):
            a(f'buffer_load_dwordx4 v{vS+u}, s[4:7], 0 offen offset:{1024*u} lds')
        srd(a, 8, 30, 32768)
        a('s_add_u32 s46, s56, s3')
        a('s_lshl_b32 s46, s46, 12')
        a('s_and_b32 s46, s46, 0x7000')
        a(f's_add_u32 m0, s46, {L_WQ}')
        a('s_nop 0')
        for u in range(4):
            a(f'buffer_load_dwordx4 v{2+(u>>1)}, s[8:11], s46 offen offset:{1024*u} lds')
        a('s_branch L_tag')
        a.label('L_nsp')
    a('s_cmp_lt_u32 s3, 6')
    a('s_cbranch_scc1 L_nodma')
    a(f'v_lshlrev_b32 v1, 1, v{vG}')
    a(f'v_xor_b32 v1, v1, v{vN}')
    a(f'v_lshlrev_b32 v1, 4, v1')
    a('s_add_u32 s46, s3, s43')
    a('s_cmp_eq_u32 s46, 6')
    a('s_cbranch_scc1 L_nodma')
    a('s_cmp_eq_u32 s46, 8')
    a('s_cbranch_scc1 L_wdma')
    if int(opt.get('tw', 0)) & 4:
        srd(a, 8, 38, 1 << 22)
        a(f'v_lshlrev_b32 v2, 16, v{vLN}')
        a(f'buffer_load_dword v{vPF}, v2, s[8:11], 0 offen')
    a(f'v_lshl_add_u32 v{vS}, v{vG}, 19, v1')
    a('s_lshl_b32 s47, s2, 8')
    a(f'v_add_u32 v{vS}, s47, v{vS}')
    for u in range(1, 4):
        a(f'v_add_u32 v{vS+u}, {(u*4<<19)-1024*u}, v{vS}')
        if u & 1: a(f'v_xor_b32 v{vS+u}, 128, v{vS+u}')
    a(f's_mov_b32 m0, {L_XO}')
    a('s_mov_b32 s46, 8')
    a.label('L_xl')
    for u in range(4):
        a(f'buffer_load_dwordx4 v{vS+u}, s[4:7], 0 offen offset:{1024*u} lds')
    for u in range(4):
        a(f'v_add_u32 v{vS+u}, 0x10000, v{vS+u}')
    a('s_add_u32 m0, m0, 4096')
    a('s_sub_u32 s46, s46, 1')
    a('s_cmp_lg_u32 s46, 0')
    a('s_cbranch_scc1 L_xl')
    a('s_cmp_eq_u32 s3, 6')
    a('s_cbranch_scc1 L_nodma')
    a.label('L_spin7')
    a(f'ds_read_b32 v2, v{vZ} offset:{L_CNT}')
    a('s_waitcnt lgkmcnt(0)')
    a('v_readfirstlane_b32 s50, v2')
    a(f's_cmp_lt_u32 s50, {int(opt.get("w7", 11))}')
    a('s_cbranch_scc1 L_spin7')
    a.label('L_wdma')
    a(f'v_lshl_add_u32 v2, v{vG}, 8, v1')
    a('v_xor_b32 v3, 128, v2')
    for wi, (lo, base) in enumerate(((30, L_WQ),)):
        srd(a, 8, lo, 32768)
        a('s_lshl_b32 s46, s56, 12')
        a('s_mov_b32 s47, 8')
        a.label(f'L_wl{wi}')
        a('s_and_b32 s46, s46, 0x7000')
        a(f's_add_u32 m0, s46, {base}')
        a('s_sub_u32 s47, s47, 1')
        for u in range(4):
            a(f'buffer_load_dwordx4 v{2+((u>>1) if wi == 0 else (u&1))}, s[8:11], s46 offen offset:{1024*u} lds')
        a('s_add_u32 s46, s46, 4096')
        a('s_cmp_lg_u32 s47, 0')
        a(f's_cbranch_scc1 L_wl{wi}')
    stamp(1)
    a('s_branch L_tagd')
    a.label('L_nodma')
    a('s_cmp_eq_u32 s43, 0')
    a('s_cbranch_scc1 L_prod')
    PF0 = int(opt.get('pf0', 0))
    if PF0 > 0:
        c = PF0 * 2 // 64
        a('s_cmp_ge_u32 s3, 4')
        a('s_cbranch_scc1 L_tag')
        a('s_lshr_b32 s47, s56, 1')
        a('s_lshl_b32 s47, s47, 2')
        a('s_add_u32 s46, s3, s47')
        a(f's_mul_i32 s46, s46, {c*128}')
        a(f'v_lshlrev_b32 v{vS+2}, 7, v{vLN}')
        for u in range((c + 63) // 64):
            a(f'buffer_load_dword v{vPF}, v{vS+2}, s[4:7], s46 offen')
            a(f's_add_u32 s46, s46, 8192')
    a('s_branch L_tag')
    a.label('L_prod')
    PB = int(opt.get('pb', 0))
    if PB == 1:
        a('s_cmp_lt_u32 s3, 4')
        a('s_cbranch_scc1 L_pb')
        a('s_setprio 2')
        a.label('L_pb')
    if PB == 2: a('s_setprio 2')
    a('v_cmp_gt_u32 vcc, s59, v0')
    a('s_and_saveexec_b64 s[54:55], vcc')
    a('s_cbranch_execz L_binned')
    a('s_waitcnt vmcnt(3)')
    a('s_mov_b32 s46, 0x3fc')
    a(f'v_mov_b32 v1, 1')
    for j in range(8):
        a(f'v_lshlrev_b32 v{vCA+j}, 2, v{vA1+8+j}')
        a(f'v_and_b32 v{vCA+j}, s46, v{vCA+j}')
        a(f'ds_add_rtn_u32 v{vRK+j}, v{vCA+j}, v1 offset:{L_PC}')
    a('s_waitcnt vmcnt(1)')
    entries(a, vPE)
    a('s_mov_b64 s[76:77], exec')
    a('s_waitcnt vmcnt(0)')
    a(f'v_readfirstlane_b32 s48, v{vTB}')
    a(f'v_readfirstlane_b32 s49, v{vTB+1}')
    a('s_lshr_b32 s48, s48, 23')
    a('s_lshr_b32 s49, s49, 26')
    a('s_lshl_b32 s49, s49, 9')
    a('s_or_b32 s48, s48, s49')
    a('s_add_u32 s48, s48, 1')
    a('s_bitset1_b32 s48, 15')
    a('s_lshl_b32 s44, s48, 23')
    a('s_lshr_b32 s45, s48, 6')
    a('s_lshl_b32 s45, s45, 23')
    a('s_xor_b32 s52, s44, 0xff800000')
    a('s_xor_b32 s53, s45, 0xff800000')
    a('s_cmp_lg_u32 s3, 0')
    a('s_cbranch_scc1 L_nopub')
    a('s_lshl_b32 s49, s57, 1')
    a('v_mov_b32 v2, s48')
    a('s_mov_b64 exec, 1')
    a(f'buffer_store_short v2, v{vZ}, s[16:19], s49 offen sc0 sc1')
    a('s_mov_b64 exec, s[76:77]')
    a.label('L_nopub')
    a(f's_mov_b32 s46, {L_QS}')
    for j in range(8):
        a(f'v_lshl_add_u32 v{vCA+j}, v{vCA+j}, 5, s46')
    for j in range(8):
        if j == 0: a(f's_waitcnt lgkmcnt(0)')
        a(f'v_lshl_add_u32 v{vCA+j}, v{vRK+j}, 2, v{vCA+j}')
        a(f'v_cmpx_gt_u32 vcc, 32, v{vRK+j}')
        a(f'ds_write_b32 v{vCA+j}, v{vPE+j}')
        a('s_mov_b64 exec, s[76:77]')
    a(f'v_max3_u32 v2, v{vRK}, v{vRK+1}, v{vRK+2}')
    a(f'v_max3_u32 v2, v2, v{vRK+3}, v{vRK+4}')
    a(f'v_max3_u32 v2, v2, v{vRK+5}, v{vRK+6}')
    a(f'v_max_u32 v2, v2, v{vRK+7}')
    a(f'v_cmpx_lt_u32 vcc, 31, v2')
    a(f'ds_write_b32 v{vZ}, v1 offset:{L_OVF}')
    a.label('L_binned')
    a('s_mov_b64 exec, -1')
    a.label('L_tag')
    if PB: a('s_setprio 0')
    stamp(1)
    a.label('L_tagd')
    def slotld():
        a(f'buffer_load_dwordx4 v[{vPE}:{vPE+3}], v{vT16}, s[8:11], 0 offen sc0 sc1')
        a(f'buffer_load_dwordx4 v[{vPE+4}:{vPE+7}], v{vX+5}, s[8:11], 0 offen sc0 sc1')
    a('s_lshl_b32 s46, s2, 14')
    srd(a, 8, 38, 16384, add='s46')
    a(f'v_add_u32 v{vX+5}, 0x2000, v{vT16}')
    a('s_cmp_lg_u32 s43, 0')
    a('s_cbranch_scc1 L_copied')
    a('s_cmp_eq_u32 s3, 7')
    a('s_cbranch_scc1 L_copied')
    a('v_mov_b32 v1, 1')
    a('s_mov_b64 exec, 1')
    a('s_waitcnt lgkmcnt(0)')
    a(f'ds_add_u32 v{vZ}, v1 offset:{L_CNT}')
    a('s_mov_b64 exec, -1')
    a('s_cmp_ge_u32 s3, 4')
    a('s_cbranch_scc1 L_copied')
    a(f'v_add_u32 v{vX+4}, {L_QS}, v{vT16}')
    srd(a, 12, 38, 256 * 16384)
    a(f'v_lshrrev_b32 v{vX}, 3, v0')
    a(f'v_and_b32 v{vX+1}, 7, v0')
    a(f'v_lshlrev_b32 v{vX}, 14, v{vX}')
    a(f'v_lshl_add_u32 v{vX}, v{vX+1}, 4, v{vX}')
    a.label('L_spin')
    a(f'ds_read_b32 v1, v{vZ} offset:{L_CNT}')
    a('s_waitcnt lgkmcnt(0)')
    a('v_readfirstlane_b32 s50, v1')
    a('s_cmp_lt_u32 s50, 7')
    a('s_cbranch_scc1 L_spin')
    a(f'ds_read_b32 v1, v{vZ} offset:{L_OVF}')
    for u in range(8): a(f'ds_read_b128 v[{vT+4*u}:{vT+4*u+3}], v{vX+4} offset:{4096*u}')
    a('s_waitcnt lgkmcnt(8)')
    a('v_readfirstlane_b32 s50, v1')
    a('s_cmp_lg_u32 s50, 0')
    a('s_cbranch_scc1 L_ovf')
    a.label('L_copy')
    a('s_lshl_b32 s50, s57, 7')
    for u in range(8):
        a(f's_waitcnt lgkmcnt({7-u})')
        for k in range(4): a(f'v_xor_b32 v{vT+4*u+k}, s{(44,45,52,53)[k]}, v{vT+4*u+k}')
        a(f'buffer_store_dwordx4 v[{vT+4*u}:{vT+4*u+3}], v{vX}, s[12:15], s50 offen sc0 sc1')
        if u < 7: a(f's_add_u32 s50, s50, {1<<19}')
    a('v_mov_b32 v1, 1')
    a('s_mov_b64 exec, 1')
    a(f'ds_add_u32 v{vZ}, v1 offset:{L_CNT}')
    a('s_mov_b64 exec, -1')
    a.label('L_copied')
    stamp(2)
    for i in range(4): a(f'v_mov_b32 v{vX+i}, 0')
    a(f'ds_write_b128 v{vT16}, v[{vX}:{vX+3}]')
    a(f'ds_write_b128 v{vT16}, v[{vX}:{vX+3}] offset:8192')
    a(f'v_and_b32 v1, 7, v{vN}')
    a(f'v_lshlrev_b32 v1, 1, v1')
    a(f'v_xor_b32 v2, v1, v{vG}')
    a(f'v_lshlrev_b32 v2, 4, v2')
    a(f'v_lshl_add_u32 v3, v{vN}, 8, v2')
    a(f'v_add_u32 v{vRB}, {L_XO}, v3')
    a(f'v_and_b32 v3, 3, v{vN}')
    a(f'v_lshrrev_b32 v{vTMP}, 2, v{vN}')
    a(f'v_lshl_add_u32 v{vA1A}, v3, 2, v{vTMP}')
    a(f'v_lshl_add_u32 v{vA1A}, v{vA1A}, 8, v2')
    a(f'v_add_u32 v{vA1A}, s42, v{vA1A}')
    for s in range(1, 4):
        a(f'v_xor_b32 v{vRB+s}, {s<<6}, v{vRB}')
        a(f'v_xor_b32 v{vA1A+s}, {s<<6}, v{vA1A}')
    a(f'v_and_b32 v2, 1, v{vG}')
    a(f'v_lshl_or_b32 v2, v2, 2, v{vTMP}')
    a(f'v_lshlrev_b32 v2, 5, v2')
    a(f'v_lshl_or_b32 v2, v3, 3, v2')
    a(f'v_lshl_add_u32 v{vTRA}, v{vTMP}, 2, v{vG}')
    a(f'v_lshl_add_u32 v{vTRA}, v{vTRA}, 8, v2')
    a(f'v_add_u32 v{vTRA}, s42, v{vTRA}')
    for t in range(1, 8): a(f'v_xor_b32 v{vTRA+t}, {t<<5}, v{vTRA}')
    a(f'v_and_b32 v2, 0xe0, v2')
    a(f'v_lshlrev_b32 v3, 4, v3')
    a(f'v_xor_b32 v2, v2, v3')
    a('s_and_b32 s50, s3, 3')
    a('s_lshl_b32 s50, s50, 6')
    a(f'v_xor_b32 v2, s50, v2')
    a(f'v_lshl_add_u32 v{vX+6}, v{vG}, 3, v{vTMP}')
    a(f'v_lshl_add_u32 v{vX+6}, v{vX+6}, 8, v2')
    a(f'v_add_u32 v{vX+6}, {L_WQ}, v{vX+6}')
    a(f'v_lshl_add_u32 v{vX+7}, v{vG}, 2, v{vTMP}')
    a(f'v_lshl_add_u32 v{vX+7}, v{vX+7}, 8, v2')
    a(f'v_add_u32 v{vX+7}, {L_WV}, v{vX+7}')
    a(f'v_and_b32 v2, 1, v{vG}')
    a(f'v_lshlrev_b32 v2, 3, v2')
    a(f'v_xor_b32 v2, v2, v{vN}')
    a(f'v_lshlrev_b32 v{vGO}, 4, v2')
    for j in range(1, 4): a(f'v_xor_b32 v{vGO+j}, {j<<5}, v{vGO}')
    a('s_lshl_b32 s51, s3, 4')
    a('s_add_u32 s51, s51, 1')
    a(f'v_add_u32 v{vKEY}, s51, v{vN}')
    a('s_lshr_b32 s51, s3, 2')
    a('s_lshl_b32 s51, s51, 14')
    for s in range(4): a(f'v_add_u32 v{vX+8+s}, s51, v{vRB+s}')
    a(f'v_xor_b32 v1, s50, v{vX+8}')
    a(f'v_add_u32 v1, {L_QS-L_XO}, v1')
    if SP:
        a('s_lshl_b32 s46, s43, 3')
        a('s_add_u32 s46, s46, s3')
        a('s_cmp_lt_u32 s46, 6')
    else:
        a('s_cmp_lt_u32 s3, 6')
    a('s_cbranch_scc1 L_w4')
    a('s_waitcnt vmcnt(0)')
    a.label('L_w4')
    a('s_waitcnt lgkmcnt(0)')
    a('s_barrier')
    stamp(1, 2)
    if int(opt.get('pr', 0)) == 5:
        a('s_cmp_lt_u32 s3, 4')
        a('s_cbranch_scc1 L_p5')
        a('s_setprio 1')
        a.label('L_p5')
    a('s_cmp_lg_u32 s3, 0')
    a('s_cbranch_scc1 L_nt1')
    a(f'v_lshlrev_b32 v2, 2, v0')
    a(f'buffer_load_dword v3, v2, s[16:19], 0 offen sc0 sc1')
    a.label('L_nt1')
    srd(a, 12, 32, 32768)
    a('s_lshl_b32 s46, s3, 12')
    a(f's_add_u32 m0, s46, {L_WV}')
    a(f'v_lshlrev_b32 v{vS}, 1, v{vG}')
    a(f'v_xor_b32 v{vS}, v{vS}, v{vN}')
    a(f'v_lshlrev_b32 v{vS}, 4, v{vS}')
    a(f'v_lshl_add_u32 v{vS}, v{vG}, 8, v{vS}')
    a(f'v_xor_b32 v{vS+1}, 128, v{vS}')
    for u in range(4):
        a(f'buffer_load_dwordx4 v{vS+(u&1)}, s[12:15], s46 offen offset:{1024*u} lds')
    def prefetch(r0, rows, fixed=None):
        c = rows * 2 // 256
        ni = (c + 63) // 64
        a('s_lshl_b32 s47, s56, 3')
        a('s_add_u32 s46, s3, s47')
        a(f's_mul_i32 s46, s46, {c*128}')
        a(f's_add_u32 s46, s46, {r0*256}')
        a(f'v_lshlrev_b32 v{vS+2}, 7, v{vLN}')
        for u in range(fixed or ni):
            n = max(1, min(64, c - 64 * u))
            if n < 64: a(f's_mov_b64 exec, {hex((1 << n) - 1)}')
            a(f'buffer_load_dword v{vPF}, v{vS+2}, s[4:7], s46 offen')
            if n < 64: a('s_mov_b64 exec, -1')
            if c > 64 * (u + 1): a(f's_add_u32 s46, s46, 8192')
    PF1 = int(opt.get('pf1', 0)); NPF = 2
    if PF1 > 0:
        c = PF1 * 2 // 128
        NPF = (c + 63) // 64
        a('s_lshr_b32 s47, s56, 1')
        a('s_lshl_b32 s47, s47, 3')
        a('s_add_u32 s46, s3, s47')
        a(f's_mul_i32 s46, s46, {c*128}')
        a(f's_add_u32 s46, s46, {PF0*256}')
        a(f'v_lshlrev_b32 v{vS+2}, 7, v{vLN}')
        a('s_cmp_lg_u32 s43, 0')
        a('s_cselect_b64 exec, -1, 1')
        for u in range(NPF):
            a(f'buffer_load_dword v{vPF}, v{vS+2}, s[4:7], s46 offen')
            a(f's_add_u32 s46, s46, 8192')
        a('s_mov_b64 exec, -1')
    elif int(opt.get('opf', 0)):
        srd(a, 12, 24, PFN * 256)
        a('s_lshl_b32 s47, s56, 3')
        a('s_add_u32 s46, s3, s47')
        a(f's_mul_i32 s46, s46, 8192')
        a(f'v_mul_u32_u24 v{vS+2}, 128, v{vLN}')
        a(f'v_add_u32 v{vS+2}, s46, v{vS+2}')
        a(f'v_add_u32 v{vS+3}, 2097152, v{vS+2}')
        a(f'buffer_load_dword v{vPF}, v{vS+2}, s[12:15], 0 offen')
        a(f'buffer_load_dword v{vPF}, v{vS+3}, s[12:15], 0 offen')
    elif PFN > 0:
        prefetch(PF0, PFN, 2)
    else:
        slotld()
    for h in range(2):
        for k in range(8):
            r = vQB + 16 * h + 2 * k
            a(f'ds_read_b64_tr_b16 v[{r}:{r+1}], v{vX+6} offset:{8192*(k>>1)+1024*(k&1)+8*h}')
        a('s_waitcnt lgkmcnt(3)')
    gemm4(a, vQB, vX + 8, lambda T: 4096 * T, vACC)
    if ES:
        slotld(); NPF += 2
    a('s_nop 4')
    a('s_mov_b32 s51, 0xbe0293ee')
    for T in range(4):
        for r in range(8): a(f'v_mul_f32 v{vACC+8*T+r}, s51, v{vACC+8*T+r}')
        for r in range(4): a(f'v_cvt_pk_bf16_f32 v{vA1+4*T+r}, v{vACC+8*T+2*r}, v{vACC+8*T+2*r+1}')
        a(f'ds_write_b128 v1, v[{vA1+4*T}:{vA1+4*T+3}] offset:{4096*T}')
    for i in range(32): a(f'v_mov_b32 v{vACC+i}, 0')
    a('s_lshl_b32 s51, s3, 12')
    a(f's_add_u32 s51, s51, {L_QS-L_XO}')
    for s in range(4): a(f'v_add_u32 v{vX+s}, s51, v{vRB+s}')
    a(f's_waitcnt vmcnt({NPF})')
    a('s_cmp_lg_u32 s3, 0')
    a('s_cbranch_scc1 L_nt2')
    a(f's_mov_b32 s50, {TMO}')
    a('s_mov_b32 s51, 0x80008000')
    a.label('L_tp')
    a(f'v_and_b32 v1, s51, v3')
    a('v_cmp_ne_u32 vcc, s51, v1')
    a('s_cbranch_vccz L_tp2')
    a(f'buffer_load_dword v3, v2, s[16:19], 0 offen sc0 sc1')
    a('s_waitcnt vmcnt(0)')
    a('s_sub_u32 s50, s50, 1')
    a('s_cbranch_scc0 L_tp')
    a.label('L_tp2')
    a(f'ds_write_b32 v2, v3 offset:{L_TAGS}')
    a.label('L_nt2')
    stamp(2, 2)
    srd(a, 16, 34, XB)
    a(f'v_lshrrev_b32 v1, 2, v0')
    a(f'v_and_b32 v1, 0x7e, v1')
    a('s_waitcnt lgkmcnt(0)')
    a('s_barrier')
    a(f'ds_read_u16 v2, v1 offset:{L_TAGS}')
    a(f'ds_read_u16 v3, v1 offset:{L_TAGS+128}')
    for s in range(4): a(f'ds_read_b128 v[{vQB+4*s}:{vQB+4*s+3}], v{vX+s}')
    if PFN > 0 and not ES:
        slotld()
    stamp(3)
    for h in range(2):
        for k in range(8):
            r = vWV + 16 * h + 2 * k
            a(f'ds_read_b64_tr_b16 v[{r}:{r+1}], v{vX+7} offset:{8192*(k>>1)+4096*(k&1)+8*h}')
        if h == 0: a('s_waitcnt lgkmcnt(7)')
    a(f's_mov_b32 s50, {TMO}')
    a('s_mov_b32 s51, 0xff800000')
    for h in range(2):
        a(f'v_lshlrev_b32 v{vTB+4*h}, 23, v{2+h}')
        a(f'v_lshrrev_b32 v{vTB+4*h+1}, 6, v{2+h}')
        a(f'v_lshlrev_b32 v{vTB+4*h+1}, 23, v{vTB+4*h+1}')
        a(f'v_xor_b32 v{vTB+4*h+2}, s51, v{vTB+4*h}')
        a(f'v_xor_b32 v{vTB+4*h+3}, s51, v{vTB+4*h+1}')
    a('v_and_b32 v2, v2, v3')
    a('v_cmp_gt_u32 vcc, 0x8000, v2')
    a('s_cbranch_vccnz L_fail')
    a('s_mov_b32 s51, 0x800000')
    a.label('L_poll')
    a('s_waitcnt vmcnt(0)')
    for j in range(8): a(f'v_xor_b32 v{vRK+j}, v{vTB+j}, v{vPE+j}')
    a(f'v_or3_b32 v1, v{vRK}, v{vRK+1}, v{vRK+2}')
    a(f'v_or3_b32 v2, v{vRK+4}, v{vRK+5}, v{vRK+6}')
    a(f'v_or3_b32 v1, v1, v{vRK+3}, v{vRK+7}')
    a(f'v_or_b32 v1, v1, v2')
    a('v_cmpx_le_u32 vcc, s51, v1')
    a('s_cbranch_execz L_got')
    a(f'buffer_load_dwordx4 v[{vPE}:{vPE+3}], v{vT16}, s[8:11], 0 offen sc0 sc1')
    a(f'buffer_load_dwordx4 v[{vPE+4}:{vPE+7}], v{vX+5}, s[8:11], 0 offen sc0 sc1')
    a('s_sub_u32 s50, s50, 1')
    a('s_cbranch_scc0 L_poll')
    a('s_mov_b64 exec, -1')
    a.label('L_fail')
    a('s_waitcnt vmcnt(0)')
    a('s_lshl_b32 s50, s3, 3')
    a('s_lshl_b32 s50, 0xff, s50')
    a('s_and_b32 s51, s3, 4')
    a('v_mov_b32 v1, s50')
    a('v_mov_b32 v2, s51')
    a(f'ds_or_b32 v2, v1 offset:{L_RS}')
    a(f'ds_or_b32 v2, v1 offset:{L_RS+8}')
    for j in range(8): a(f'v_mov_b32 v{vRK+j}, 0')
    a.label('L_got')
    a('s_mov_b64 exec, -1')
    stamp(4)
    if PF2 > 0: prefetch(PFN, PF2)
    a(f'v_cmp_eq_u32 vcc, 0x70, v{vRK}')
    a(f'v_cmp_eq_u32 s[50:51], v{vRK+4}, v{vRK+5}')
    a.lines.pop()
    a(f'v_mov_b32 v1, 0x70')
    a(f'v_cmp_eq_u32 s[50:51], v1, v{vRK+4}')
    for j in range(8): a(f'v_mov_b32 v{vPE+j}, v{vRK+j}')
    a('s_or_b64 s[54:55], vcc, s[50:51]')
    a('s_cbranch_scc1 L_mark')
    if NS:
        a.label('L_place')
        a('v_mov_b32 v1, 1')
        for j in range(8):
            a(f'v_lshrrev_b32 v{vCA+j}, 2, v{vPE+j}')
            a(f'v_and_b32 v{vCA+j}, 0x1c, v{vCA+j}')
            a(f'v_mov_b32 v{vRK+j}, -1')
            a(f'v_cmpx_ne_u32 vcc, 0, v{vPE+j}')
            a(f'ds_add_rtn_u32 v{vRK+j}, v{vCA+j}, v1 offset:{L_C+32}')
            a('s_mov_b64 exec, -1')
        for j in range(8): a(f'v_lshlrev_b32 v{vTB+j}, 9, v{vCA+j}')
        a('s_lshl_b32 s50, s3, 2')
        a('v_mov_b32 v3, s50')
        a(f's_mov_b32 s51, {CAP}')
        for j in range(8):
            if j == 0: a(f's_waitcnt lgkmcnt(0)')
            a(f'v_lshl_add_u32 v{vTB+j}, v{vRK+j}, 2, v{vTB+j}')
            a(f'v_cmpx_gt_u32 vcc, s51, v{vRK+j}')
            a(f'ds_write_b32 v{vTB+j}, v{vPE+j}')
            a(f'v_mov_b32 v{vPE+j}, 0')
            a('s_mov_b64 exec, -1')
    else:
        a.label('L_place')
        a('v_mov_b32 v1, 1')
        for j in range(8):
            a(f'v_lshrrev_b32 v{vCA+j}, 2, v{vPE+j}')
            a(f'v_and_b32 v{vCA+j}, 0x3c, v{vCA+j}')
            a(f'v_mov_b32 v{vRK+j}, -1')
            a(f'v_cmpx_ne_u32 vcc, 0, v{vPE+j}')
            a(f'ds_add_rtn_u32 v{vRK+j}, v{vCA+j}, v1 offset:{L_C+32}')
            a('s_mov_b64 exec, -1')
        for j in range(8):
            a(f'v_and_b32 v{vTB+j}, 0x1c, v{vCA+j}')
            a(f'v_lshlrev_b32 v{vTB+j}, 9, v{vTB+j}')
        a('s_lshl_b32 s50, s3, 2')
        a('v_mov_b32 v3, s50')
        a(f's_mov_b32 s51, {CAP}')
        a('s_waitcnt lgkmcnt(0)')
        a('s_barrier')
        for j in range(8): a(f'ds_read_b32 v{vCA+j}, v{vCA+j} offset:{L_C}')
        a(f'ds_read2_b32 v[{vX}:{vX+1}], v3 offset0:0 offset1:8') ; a.lines.pop()
        a(f'ds_read_b32 v{vX}, v3 offset:{L_C+32}')
        a(f'ds_read_b32 v{vX+1}, v3 offset:{L_C+64}')
        for j in range(8):
            if j == 0: a(f's_waitcnt lgkmcnt(0)')
            a(f'v_add_u32 v{vRK+j}, v{vRK+j}, v{vCA+j}')
            a(f'v_lshl_add_u32 v{vTB+j}, v{vRK+j}, 2, v{vTB+j}')
            a(f'v_and_b32 v{vCA+j}, 0xffffff7f, v{vPE+j}')
            a(f'v_cmpx_gt_u32 vcc, s51, v{vRK+j}')
            a(f'ds_write_b32 v{vTB+j}, v{vCA+j}')
            a(f'v_mov_b32 v{vPE+j}, 0')
            a('s_mov_b64 exec, -1')
    a(f'v_or3_b32 v1, v{vPE}, v{vPE+1}, v{vPE+2}')
    a(f'v_or3_b32 v1, v1, v{vPE+3}, v{vPE+4}')
    a(f'v_or3_b32 v1, v1, v{vPE+5}, v{vPE+6}')
    a(f'v_or_b32 v1, v1, v{vPE+7}')
    a('v_cmpx_ne_u32 vcc, 0, v1')
    a(f'ds_write_b32 v{vZ}, v1 offset:{L_SLOW}')
    a('s_mov_b64 exec, -1')
    if not NS: a(f'v_add_u32 v{vX}, v{vX}, v{vX+1}')
    a('s_lshl_b32 s50, s3, 11')
    a(f'v_lshl_add_u32 v{vLA}, v{vG}, 5, s50')
    if not NS: a(f'v_readfirstlane_b32 s53, v{vX}')
    a('s_waitcnt lgkmcnt(0)')
    a('s_barrier')
    if NS: a(f'ds_read_b32 v2, v3 offset:{L_C+32}')
    eread(a, 0, 0)
    eread(a, 1, 128)
    a(f'ds_read_b32 v1, v{vZ} offset:{L_SLOW}')
    a(f'ds_read_b128 v[{vX}:{vX+3}], v{vZ} offset:{L_RS}')
    if NS:
        a('s_waitcnt lgkmcnt(6)')
        a('v_readfirstlane_b32 s53, v2')
    a('s_min_u32 s53, s53, s51')
    a('s_add_u32 s53, s53, 31')
    a('s_lshr_b32 s53, s53, 5')
    stamp(5)
    a('s_cmp_eq_u32 s53, 0')
    a('s_cbranch_scc1 L_noi')
    a('s_waitcnt lgkmcnt(4)')
    issue(a, 0)
    a('s_cmp_eq_u32 s53, 1')
    a('s_cbranch_scc1 L_noi')
    a('s_waitcnt lgkmcnt(2)')
    issue(a, 1)
    a.label('L_noi')
    a('s_waitcnt lgkmcnt(0)')
    a('v_readfirstlane_b32 s52, v1')
    for i in range(4): a(f'v_readfirstlane_b32 s{76+i}, v{vX+i}')
    a('s_cmp_eq_u32 s53, 0')
    a('s_cbranch_scc1 L_done')
    PR = int(opt.get('pr', 0))
    if PR in (1, 4):
        a('s_cmp_lt_u32 s3, 4')
        a('s_cbranch_scc1 L_loop')
        a('s_setprio 1')
    if PR in (2, 3): a('s_lshr_b32 s96, s3, 2')
    a.label('L_loop')
    for b in range(2):
        if PR == 2:
            a(f's_cmp_eq_u32 s96, {b}')
            a(f's_cbranch_scc1 L_pa{b}')
            a('s_setprio 1')
            a(f's_branch L_pb{b}')
            a.label(f'L_pa{b}')
            a('s_setprio 0')
            a.label(f'L_pb{b}')
        if PR == 3 and b == 0:
            a('s_cmp_eq_u32 s96, 2')
            a('s_cbranch_scc0 L_pc')
            a('s_setprio 1')
            a.label('L_pc')
            a('s_lshl_b32 s96, s96, 1')
        body(a, b, opt)
    a('s_branch L_loop')
    a.label('L_done')
    if PR in (1, 2, 3, 5): a('s_setprio 0')
    stamp(6)
    a('s_or_b64 s[54:55], s[76:77], s[78:79]')
    a('s_or_b32 s54, s54, s55')
    a('s_or_b32 s54, s54, s52')
    a('s_cbranch_scc1 L_slow')
    a(f's_sub_u32 s50, s42, {L_XO}')
    a('s_lshr_b32 s51, s3, 2')
    a('s_lshl_b32 s51, s51, 16')
    a(f's_add_u32 s51, s51, {(LB-L_XO)&0xffffffff}')
    for s in range(4):
        for r in range(4): a(f'v_cvt_pk_bf16_f32 v{vA1+4*s+r}, v{vACC+8*s+2*r}, v{vACC+8*s+2*r+1}')
        a(f'v_add_u32 v2, s50, v{vRB+s}')
        a(f'ds_write_b128 v2, v[{vA1+4*s}:{vA1+4*s+3}]')
        a(f'v_add_u32 v{vX+s}, s51, v{vRB+s}')
    a(f'v_lshlrev_b32 v1, 19, v{vN}')
    a(f'v_lshl_add_u32 v1, v{vG}, 4, v1')
    a('s_lshl_b32 s50, s2, 8')
    a('s_and_b32 s51, s3, 3')
    a('s_lshl_b32 s51, s51, 6')
    a('s_add_u32 s50, s50, s51')
    a('s_lshr_b32 s51, s3, 2')
    a('s_lshl_b32 s51, s51, 18')
    a('s_add_u32 s50, s50, s51')
    a('v_add_u32 v1, s50, v1')
    if int(opt.get('hb', 0)):
        a('s_and_b32 s51, s3, 4')
        a('v_mov_b32 v2, s51')
        a('v_mov_b32 v3, 1')
        a('s_waitcnt lgkmcnt(0)')
        a('s_mov_b64 exec, 1')
        a(f'ds_add_u32 v2, v3 offset:{L_C+132}')
        a('s_mov_b64 exec, -1')
        a.label('L_hb')
        a(f'ds_read_b32 v3, v2 offset:{L_C+132}')
        a('s_waitcnt lgkmcnt(0)')
        a('v_readfirstlane_b32 s51, v3')
        a('s_cmp_lt_u32 s51, 4')
        a('s_cbranch_scc1 L_hb')
    else:
        a('s_waitcnt lgkmcnt(0)')
        a('s_barrier')
    gemm4(a, vWV, vX, lambda T: 16384 * T, vACC)
    for T in range(4):
        if T == 3: a('s_nop 4')
        for r in range(4): a(f'v_cvt_pk_bf16_f32 v{vA1+4*T+r}, v{vACC+8*T+2*r}, v{vACC+8*T+2*r+1}')
        a(f'buffer_store_dwordx4 v[{vA1+4*T}:{vA1+4*T+3}], v1, s[16:19], 0 offen' + ['', ' sc0 sc1', ' nt', ' sc1', ' sc0 sc1 nt'][int(opt.get('st', 0))])
        if T < 3: a('v_add_u32 v1, 0x10000, v1')
    if DG:
        a('s_waitcnt vmcnt(0)')
        stamp(7)
        a('s_waitcnt lgkmcnt(0)')
        srd(a, 8, 38, 1 << 20, add=200 << 20)
        a('s_lshl_b32 s60, s97, 3')
        a('s_add_u32 s60, s60, s3')
        a('s_lshl_b32 s60, s60, 5')
        for i in range(8): a(f'v_mov_b32 v{16+i}, s{80+2*i}')
        a('v_mov_b32 v12, 0')
        a(f'v_cmpx_eq_u32 vcc, 0, v{vLN}')
        a('buffer_store_dwordx4 v[16:19], v12, s[8:11], s60 offen')
        a('buffer_store_dwordx4 v[20:23], v12, s[8:11], s60 offen offset:16')
    a.label('L_end')
    a('s_endpgm')
    a.label('L_ovf')
    a(f'v_lshrrev_b32 v1, 1, v0')
    a(f'v_and_b32 v1, 0xfc, v1')
    for u in range(8): a(f'ds_read_b32 v{vRK+u}, v1 offset:{L_PC+128*u}')
    a('s_waitcnt lgkmcnt(0)')
    for u in range(8):
        a(f'v_cmpx_lt_u32 vcc, 32, v{vRK+u}')
        a(f'v_mov_b32 v{vT+4*u}, 0x70')
        for k in range(1, 4): a(f'v_mov_b32 v{vT+4*u+k}, 0')
        a('s_mov_b64 exec, -1')
    a('s_branch L_copy')
    a.label('L_mark')
    a('v_lshrrev_b32 v1, 3, v0')
    a('v_lshlrev_b32_e64 v2, v1, 1')
    a('v_lshrrev_b32 v1, 3, v1')
    a('v_and_b32 v1, 4, v1')
    a('s_mov_b64 exec, vcc')
    a(f'ds_or_b32 v1, v2 offset:{L_RS}')
    a(f'v_mov_b32 v{vPE}, 0')
    a('s_mov_b64 exec, s[50:51]')
    a(f'ds_or_b32 v1, v2 offset:{L_RS+8}')
    a(f'v_mov_b32 v{vPE+4}, 0')
    a('s_mov_b64 exec, -1')
    a('s_branch L_place')
    a.label('L_slow')
    a('s_barrier')
    for i in range(4): a(f'v_mov_b32 v{vX+i}, 0')
    a(f'ds_write_b128 v{vT16}, v[{vX}:{vX+3}]')
    a(f'ds_write_b128 v{vT16}, v[{vX}:{vX+3}] offset:8192')
    a('s_cmp_lg_u32 s52, 0')
    a('s_cbranch_scc1 L_slow_go')
    a('s_cmp_eq_u64 s[76:77], 0')
    a('s_cbranch_scc1 L_slow_hi')
    a('s_ff1_i32_b64 s57, s[76:77]')
    a('s_bitset0_b64 s[76:77], s57')
    a('s_branch L_slow_ld')
    a.label('L_slow_hi')
    a('s_ff1_i32_b64 s57, s[78:79]')
    a('s_bitset0_b64 s[78:79], s57')
    a('s_add_u32 s57, s57, 64')
    a.label('L_slow_ld')
    srd(a, 12, 26, E * 4)
    a(f's_mul_i32 s58, s57, {CH*4}')
    a(f's_mov_b32 s59, {CH//8}')
    a(f's_cmp_eq_u32 s57, {P-1}')
    a(f's_cselect_b32 s59, {(E-(P-1)*CH)//8}, s59')
    edge_loads(a, 's58')
    a('s_waitcnt vmcnt(0)')
    entries(a, vPE)
    a('v_cmp_gt_u32 s[54:55], s59, v0')
    for j in range(8):
        a(f'v_and_b32 v1, 0xff, v{vA1+8+j}')
        a('v_cmp_eq_u32 vcc, s2, v1')
        a('s_and_b64 vcc, vcc, s[54:55]')
        a('s_nop 1')
        a(f'v_cndmask_b32 v{vPE+j}, 0, v{vPE+j}, vcc')
    a.label('L_slow_go')
    for i in range(4): a(f'v_mov_b32 v{vS+i}, s{76+i}')
    a(f'v_cmp_gt_u32 vcc, 7, v0')
    a('s_and_saveexec_b64 s[54:55], vcc')
    for i in range(4): a(f'v_mov_b32 v{vX+i}, 0')
    a(f'ds_write_b128 v{vT16}, v[{vX}:{vX+3}] offset:{L_C}')
    a(f'ds_write_b128 v{vZ}, v[{vS}:{vS+3}] offset:{L_RS}')
    a('s_mov_b64 exec, -1')
    a('s_waitcnt lgkmcnt(0)')
    a('s_barrier')
    a('s_branch L_place')
    return a

HDR = open('cdna_kernels/%s.s.ref' % NAME).read().split('; Override')[0]
def build(opt):
    a = kern(opt)
    for e in check(a.lines, 'k'): print('HAZARD', e)
    t = HDR + f'; @launch grid=(256,1,1) block=(512,1,1) lds={LDS}\n'
    t += '.amdgcn_target "amdgcn-amd-amdhsa--gfx950"\n.text\n'
    t += f'.globl {NAME}_kernel\n.p2align 8\n.type {NAME}_kernel,@function\n' + a.text()
    t += f'''.section .rodata,"a"
.p2align 6
.amdhsa_kernel {NAME}_kernel
  .amdhsa_next_free_vgpr {NV}
  .amdhsa_next_free_sgpr 100
  .amdhsa_accum_offset {(NV+3)//4*4}
  .amdhsa_group_segment_fixed_size 0
  .amdhsa_kernarg_size 64
  .amdhsa_user_sgpr_count 2
  .amdhsa_user_sgpr_kernarg_segment_ptr 1
  .amdhsa_system_sgpr_workgroup_id_x 1
.end_amdhsa_kernel
'''
    return t
if __name__ == '__main__':
    out = sys.argv[1] if len(sys.argv) > 1 else f'cdna_kernels/{NAME}.s'
    opt = dict(kv.split('=', 1) for kv in sys.argv[2:])
    open(out, 'w').write(build(opt))
```
